```python
import torch

def _softmax(x, axis=-1):
    return torch.softmax(x, dim=axis)

def _gelu(x):
    return torch.nn.functional.gelu(x, approximate='tanh')

def _silu(x):
    return torch.nn.functional.silu(x)

def _sigmoid(x):
    return torch.sigmoid(x)

def _layernorm(x, axis=-1, eps=1e-05):
    m = x.mean(dim=axis, keepdim=True)
    v = x.var(dim=axis, keepdim=True, unbiased=False)
    return (x - m) / torch.sqrt(v + eps)

def _scatter_add(tgt, idx, src, axis=0):
    return tgt.clone().index_add_(axis, idx, src)

def _segment_sum(src, seg, n):
    out = torch.zeros((n,) + src.shape[1:], dtype=src.dtype)
    return out.index_add_(0, seg, src)

def _pad(x, pw):
    flat = tuple((v for pair in reversed(pw) for v in pair))
    return torch.nn.functional.pad(x, flat)
kernel_name = 'gather_scatter__tensor_product_equiv_equiformer__graph'

def setup_inputs():

    _w = lambda a: (lambda t: t.to(torch.bfloat16) if t.is_floating_point() else t)(torch.as_tensor(a))
    N, deg, C, De = (12500, 64, 64, max(0, 1))
    E = N * deg
    src = (lambda lo, hi, *s: torch.randint(lo, hi, s))(0, N, E).to(torch.int64)
    dst = (lambda lo, hi, *s: torch.randint(lo, hi, s))(0, N, E).to(torch.int64)
    rvec = (lambda *s: torch.randn(*s, dtype=torch.bfloat16) * 0.05)(E, 3).to(float)
    rn = (torch.linalg.norm(rvec, dim=-1, keepdim=True) + 1e-06).to(float)
    rhat = (rvec / rn).to(float)
    eps = torch.zeros((3, 3, 3), dtype=float)
    eps[0, 1, 2] = eps[1, 2, 0] = eps[2, 0, 1] = 1.0
    eps[0, 2, 1] = eps[2, 1, 0] = eps[1, 0, 2] = -1.0
    return {'x': _w((lambda *s: torch.randn(*s, dtype=torch.bfloat16) * 0.4)(N, 4 * C).to(float)), 'rhat': _w(rhat), 'e_attr': _w((lambda *s: torch.randn(*s, dtype=torch.bfloat16) * 0.4)(E, De).to(float)), 'src': _w(src), 'dst': _w(dst), 'w_rad': _w((lambda *s: torch.randn(*s, dtype=torch.bfloat16) * 0.4)(De, 5 * C).to(float)), 'w_si0': _w((lambda *s: torch.randn(*s, dtype=torch.bfloat16) * 0.4)(2 * C, C).to(float)), 'w_si1': _w((lambda *s: torch.randn(*s, dtype=torch.bfloat16) * 0.05)(3 * C, C).to(float)), 'cg_eps': _w(eps)}

def reference(x, rhat, e_attr, src, dst, w_rad, w_si0, w_si1, cg_eps):
    N = x.shape[0]
    C = w_si0.shape[1]
    E = rhat.shape[0]
    x0 = x[:, :C].clone()
    x1 = x[:, C:].reshape(N, 3, C)
    R = (e_attr @ w_rad).reshape(E, 5, C)
    f0 = x0[src]
    f1 = x1[src]
    Y1 = rhat
    p00_0 = f0 * R[:, 0, :]
    p11_0 = torch.einsum('ejc,ej->ec', f1, Y1) * R[:, 1, :]
    p01_1 = torch.einsum('ec,ej->ejc', f0, Y1) * R[:, 2, :][:, None, :]
    p10_1 = f1 * R[:, 3, :][:, None, :]
    p11_1 = torch.einsum('ijk,ekc,ej->eic', cg_eps, f1, Y1) * R[:, 4, :][:, None, :]
    m0 = torch.concatenate([p00_0, p11_0], axis=-1) @ w_si0
    m1 = torch.einsum('ejp,pc->ejc', torch.concatenate([p01_1, p10_1, p11_1], axis=-1), w_si1)
    agg0 = _segment_sum(m0, dst, N)
    agg1 = _segment_sum(m1.reshape(E, 3 * C), dst, N).reshape(N, 3, C)
    gate = _sigmoid(agg0)
    out1 = agg1 * gate[:, None, :]
    return torch.concatenate([agg0, out1.reshape(N, 3 * C)], axis=-1)
```

```python
import re

TRANS = ('v_exp_f32', 'v_log_f32', 'v_rcp_f32', 'v_rsq_f32', 'v_sqrt_f32', 'v_sin_f32', 'v_cos_f32',
         'v_rcp_iflag_f32')


def v(i, n=1):
    return f"v{i}" if n == 1 else f"v[{i}:{i + n - 1}]"


def s(i, n=1):
    return f"s{i}" if n == 1 else f"s[{i}:{i + n - 1}]"


_reg_re = re.compile(r'^(-|\|)?([vsa])(?:(\d+)|\[(\d+):(\d+)\])\|?$')


def regs_of(tok):
    tok = tok.strip()
    if tok == 'vcc':
        return {'vcc_lo', 'vcc_hi'}
    if tok in ('vcc_lo', 'vcc_hi', 'm0', 'exec_lo', 'exec_hi'):
        return {tok}
    if tok == 'exec':
        return {'exec_lo', 'exec_hi'}
    m = _reg_re.match(tok)
    if not m:
        return set()
    k = m.group(2)
    if m.group(3) is not None:
        return {f"{k}{m.group(3)}"}
    return {f"{k}{i}" for i in range(int(m.group(4)), int(m.group(5)) + 1)}


class Ins:
    def __init__(self, text):
        self.text = text
        t = text.split(';')[0].strip()
        self.label = None
        self.op = None
        if t.endswith(':'):
            self.label = t[:-1]
            return
        if not t or t.startswith('.'):
            return
        parts = t.split(None, 1)
        self.op = parts[0]
        rest = parts[1] if len(parts) > 1 else ''
        toks = [x.strip() for x in rest.split(',')]
        ops = []
        self.mods = ''
        for i, x in enumerate(toks):
            w = x.split()
            if not w:
                continue
            ops.append(w[0])
            if len(w) > 1:
                self.mods += ' ' + ' '.join(w[1:])
        self.ops = ops
        op = self.op
        self.is_mfma = op.startswith('v_mfma') or op.startswith('v_smfmac')
        self.is_valu = op.startswith('v_') and not self.is_mfma
        self.is_vmem = op.startswith(('buffer_', 'global_', 'flat_'))
        self.is_ds = op.startswith('ds_')
        self.is_salu = op.startswith('s_')
        self.is_dpp = ('_dpp' in op) or ('row_' in self.mods) or ('quad_perm' in self.mods) or ('wave_' in self.mods)
        self.is_sdwa = '_sdwa' in op
        self.is_branch = op.startswith('s_cbranch') or op == 's_branch'
        self.target = ops[0] if self.is_branch else None
        dst, src = set(), set()
        R = [regs_of(x) for x in ops]
        if self.is_mfma:
            dst = R[0]
            self.srcA, self.srcB = R[1], R[2]
            if op.startswith('v_smfmac'):
                self.srcC = R[0]
                self.srcA = R[1] | R[3]
            else:
                self.srcC = R[3]
            src = self.srcA | self.srcB | self.srcC
            if '32x32x16' in op or '32x32x32' in op:
                self.passes = 8
            elif '16x16x32' in op or '16x16x64' in op:
                self.passes = 4
            else:
                raise ValueError(op)
        elif self.is_valu:
            if op.startswith('v_cmpx'):
                dst = {'exec_lo', 'exec_hi'} | R[0]
                for r in R[1:]:
                    src |= r
            elif op.startswith('v_cmp'):
                dst = R[0]
                for r in R[1:]:
                    src |= r
            elif '_co_' in op:
                dst = R[0] | R[1]
                for r in R[2:]:
                    src |= r
            elif op.startswith('v_permlane') and 'swap' in op:
                dst = R[0] | R[1]
                src = R[0] | R[1]
            else:
                dst = R[0]
                for r in R[1:]:
                    src |= r
                if op.startswith(('v_fmac', 'v_mac', 'v_writelane', 'v_dot2c')) or self.is_dpp or self.is_sdwa:
                    src |= R[0]
        elif self.is_vmem:
            if '_store' in op or ('_atomic' in op):
                for r in R:
                    src |= r
                self.store_data = R[0] if op.startswith('buffer_') else R[1]
            elif ' lds' in self.mods or '_lds_' in op:
                for r in R:
                    src |= r
                src |= {'m0'}
            else:
                dst = R[0]
                for r in R[1:]:
                    src |= r
        elif self.is_ds:
            if op.startswith(('ds_read', 'ds_bpermute', 'ds_permute', 'ds_swizzle')) or '_rtn' in op:
                dst = R[0]
                for r in R[1:]:
                    src |= r
            else:
                for r in R:
                    src |= r
        elif self.is_salu:
            if op.startswith(('s_cmp', 's_cbranch', 's_branch', 's_waitcnt', 's_nop', 's_barrier', 's_endpgm',
                              's_setprio', 's_sleep', 's_bitcmp')):
                for r in R:
                    src |= r
            else:
                dst = R[0] if R else set()
                for r in R[1:]:
                    src |= r
                if 'saveexec' in op:
                    dst = dst | {'exec_lo', 'exec_hi'}
        self.dst, self.src = dst, src

    def states(self):
        if self.op == 's_nop':
            return int(self.ops[0], 0) + 1
        return 1


def is_sreg(r):
    return r[0] == 's' or r.startswith('vcc')


def need(p, c):
    n = 0
    if p.is_valu:
        vd = {r for r in p.dst if r[0] in 'va' and not r.startswith('vcc')}
        sd = {r for r in p.dst if is_sreg(r)}
        ex = 'exec_lo' in p.dst or 'exec_hi' in p.dst
        if c.is_mfma:
            if vd & c.src:
                n = max(n, 2)
            if ex:
                n = max(n, 4)
        if c.is_valu:
            if sd & c.src:
                n = max(n, 2)
                if c.op.startswith(('v_readlane', 'v_writelane')) and sd & regs_of(c.ops[2]):
                    n = max(n, 4)
            if c.is_dpp and (vd & c.src):
                n = max(n, 2)
            if c.is_dpp and ex:
                n = max(n, 5)
            if c.op.startswith(('v_readlane', 'v_readfirstlane')) and (vd & c.src):
                n = max(n, 1)
            if c.op.startswith(('v_readlane', 'v_readfirstlane', 'v_writelane', 'v_permlane')) and ex:
                n = max(n, 4)
            if c.op.startswith('v_permlane') and (vd & c.src):
                n = max(n, 2)
            if ex and ({'exec_lo', 'exec_hi'} & c.src):
                n = max(n, 2)
            if p.op.startswith(TRANS) and not c.op.startswith(TRANS) and (vd & c.src):
                n = max(n, 1)
            if (('dst_sel' in p.mods and 'dst_sel:DWORD' not in p.mods) or 'op_sel' in p.mods) and (vd & (c.src | c.dst)):
                n = max(n, 1)
        if c.is_vmem and (sd & c.src):
            n = max(n, 5)
    if p.is_mfma:
        T = {4: (6, 8, 3), 8: (10, 12, 7)}[p.passes]
        if c.is_mfma:
            if p.dst & (c.srcA | c.srcB):
                n = max(n, T[1])
            if p.dst & c.srcC:
                if not (p.dst == c.srcC and p.passes == c.passes):
                    n = max(n, T[0])
        elif c.is_valu or c.is_vmem or c.is_ds:
            if p.dst & (c.src | c.dst):
                n = max(n, T[1])
            if c.is_valu and (p.srcC & c.dst):
                n = max(n, T[2])
    if p.is_vmem and ('_store' in p.op) and (p.op.endswith('x3') or p.op.endswith('x4')):
        if p.store_data & c.dst:
            n = max(n, 2 if c.is_valu else 1)
    if p.is_salu and 'm0' in p.dst:
        if (c.is_vmem and 'm0' in c.src) or 'addtid' in c.op or 'movrel' in c.op:
            n = max(n, 1)
    return n


def pad_hazards(lines, verbose=False):
    MAXW = 12
    ins = [Ins(l) for l in lines]
    changed = True
    total = 0
    while changed:
        changed = False
        labels = {x.label: i for i, x in enumerate(ins) if x.label}
        jumps = {}
        for i, x in enumerate(ins):
            if x.op and x.is_branch:
                jumps.setdefault(labels[x.target], []).append(i)
        for i, c in enumerate(ins):
            if not c.op or c.op in ('s_nop', 's_waitcnt', 's_barrier', 's_endpgm'):
                continue
            worst = 0
            stack = [(i - 1, 0)]
            seen = {}
            while stack:
                j, d = stack.pop()
                if j < 0 or d >= MAXW:
                    continue
                if seen.get(j, 99) <= d:
                    continue
                seen[j] = d
                p = ins[j]
                if p.label:
                    for b in jumps.get(j, []):
                        stack.append((b, d, ) if True else None)
                    k = j - 1
                    while k >= 0 and not ins[k].op and not ins[k].label:
                        k -= 1
                    if k >= 0 and not (ins[k].op in ('s_branch', 's_endpgm')):
                        stack.append((k, d))
                    continue
                if not p.op:
                    stack.append((j - 1, d))
                    continue
                r = need(p, c) - d
                if r > worst:
                    worst = r
                stack.append((j - 1, d + p.states()))
            if worst > 0:
                if verbose:
                    print(f"pad {worst} before line: {c.text.strip()}")
                ins.insert(i, Ins(f"    s_nop {worst - 1}"))
                total += worst
                changed = True
                break
    return [x.text for x in ins], total


class Asm:
    def __init__(self):
        self.lines = []

    def __call__(self, text):
        for l in text.strip('\n').split('\n'):
            l = l.strip()
            if not l:
                continue
            if l.endswith(':') or l.startswith('.'):
                self.lines.append(l)
            else:
                self.lines.append('    ' + l)

    def label(self, name):
        self.lines.append(name + ':')
```

```python
import sys
from asmlib import Asm, v, s, pad_hazards

NAME = "gather_scatter__tensor_product_equiv_equiformer__graph"
OPT = dict(stamps=0)
for a in sys.argv[2:]:
    k, val = a.split('=')
    OPT[k] = int(val, 0)

N = 12500
NCH = 250
CH = 3200
CHB = CH * 12
TBL_OFF = 0xA00000
WF_OFF = 0xA80000
SDWA = "dst_sel:DWORD dst_unused:UNUSED_PAD"


def wave_scan(a, r):
    for m in ("row_shr:1", "row_shr:2", "row_shr:4", "row_shr:8"):
        a(f"v_add_u32_dpp {v(r)}, {v(r)}, {v(r)} {m} row_mask:0xf bank_mask:0xf")
    a(f"v_add_u32_dpp {v(r)}, {v(r)}, {v(r)} row_bcast:15 row_mask:0xa bank_mask:0xf")
    a(f"v_add_u32_dpp {v(r)}, {v(r)}, {v(r)} row_bcast:31 row_mask:0xc bank_mask:0xf")


def gen_k1():
    a = Asm()
    HIST = CHB
    BASE = CHB + 1024
    a(f"""
k1_kernel:
    s_cmp_ge_u32 s2, {NCH}
    s_cbranch_scc1 k1_wb
    s_load_dwordx8 s[4:11], s[0:1], 8
    s_load_dwordx2 s[12:13], s[0:1], 88
    s_mul_i32 s14, s2, {CH * 4}
    s_mul_i32 s15, s2, {CH * 2}
    s_mul_i32 s16, s2, {CH * 6}
    v_lshlrev_b32 v1, 4, v0
    v_add_u32 v1, s14, v1
    v_lshlrev_b32 v2, 3, v0
    v_add_u32 v2, s15, v2
    v_mul_u32_u24 v3, 24, v0
    v_add_u32 v3, s16, v3
    v_cmp_gt_u32 vcc, {CH // 4}, v0
    s_mov_b64 s[20:21], vcc
    s_mov_b64 exec, vcc
    s_waitcnt lgkmcnt(0)
    global_load_dwordx4 v[4:7], v1, s[10:11]
    global_load_dwordx4 v[8:11], v1, s[8:9]
    global_load_dwordx2 v[12:13], v2, s[6:7]
    global_load_dwordx4 v[14:17], v3, s[4:5]
    global_load_dwordx2 v[18:19], v3, s[4:5] offset:16
    v_cmp_gt_u32 vcc, 256, v0
    s_mov_b64 exec, vcc
    v_lshlrev_b32 v1, 2, v0
    v_mov_b32 v2, 0
    ds_write_b32 v1, v2 offset:{HIST}
    s_mov_b64 exec, s[20:21]
    v_mov_b32 v2, 12
    s_mov_b32 s17, 0xffff0000
    s_movk_i32 s18, 5368
    s_waitcnt lgkmcnt(0)
    s_barrier
    s_waitcnt vmcnt(4)
""")
    for i in range(4):
        a(f"v_lshlrev_b32_sdwa v{20 + i}, 2, v{4 + i} {SDWA} src0_sel:DWORD src1_sel:BYTE_0")
        a(f"ds_add_rtn_u32 v{24 + i}, v{20 + i}, v2 offset:{HIST}")
    for i in range(4):
        a(f"v_lshrrev_b32 v{4 + i}, 8, v{4 + i}")
        a(f"v_mul_u32_u24 v1, 37, v{4 + i}")
        a(f"v_lshrrev_b32 v1, 8, v1")
        a(f"v_mul_u32_u24 v1, 223, v1")
        a(f"v_lshlrev_b32 v{4 + i}, 5, v{4 + i}")
        a(f"v_sub_u32 v{4 + i}, v{4 + i}, v1")
    a("s_waitcnt vmcnt(3)")
    for i in range(4):
        a(f"v_mul_u32_u24 v1, s18, v{8 + i}")
        a(f"v_lshrrev_b32 v1, 24, v1")
        a(f"v_lshl_add_u32 v1, v1, 3, v{4 + i}")
        a(f"v_lshl_or_b32 v{28 + 4 * i}, v{8 + i}, 9, v1")
    a("s_waitcnt lgkmcnt(0)")
    a("s_barrier")
    a(f"""
    s_mov_b64 exec, -1
    v_and_b32 v1, 63, v0
    v_lshlrev_b32 v1, 4, v1
    ds_read_b128 v[4:7], v1 offset:{HIST}
    s_waitcnt lgkmcnt(0)
    v_add_u32 v9, v4, v5
    v_add_u32 v10, v9, v6
    v_add_u32 v3, v10, v7
    v_mov_b32 v11, v3
""")
    wave_scan(a, 3)
    a(f"""
    v_sub_u32 v8, v3, v11
    v_add_u32 v11, v8, v10
    v_add_u32 v10, v8, v9
    v_add_u32 v9, v8, v4
    ds_write_b128 v1, v[8:11] offset:{BASE}
    v_cmp_gt_u32 vcc, 64, v0
    s_cbranch_vccz k1_notbl
    s_lshl_b32 s14, s2, 10
    s_add_u32 s14, s14, {TBL_OFF}
    v_add_u32 v1, s14, v1
""")
    for i in range(4):
        a(f"v_lshl_or_b32 v{4 + i}, v{4 + i}, 16, v{8 + i}")
    a(f"""
    s_waitcnt vmcnt(0)
    global_store_dwordx4 v1, v[4:7], s[12:13]
    s_branch k1_tbd
k1_notbl:
    s_waitcnt vmcnt(0)
k1_tbd:
    s_mov_b64 exec, s[20:21]
""")
    for i in range(4):
        a(f"ds_read_b32 v{20 + i}, v{20 + i} offset:{BASE}")

    def unpack(dst, reg, hi):
        if hi:
            a(f"v_and_b32 v{dst}, s17, v{reg}")
        else:
            a(f"v_lshlrev_b32 v{dst}, 16, v{reg}")
    for i in range(4):
        unpack(44, 12 + i // 2, i & 1)
        for j in range(3):
            hw = 3 * i + j
            unpack(45 + j, 14 + hw // 2, hw & 1)
        for j in range(3):
            a(f"v_mul_f32 v{45 + j}, v44, v{45 + j}")
        a(f"v_cvt_pk_bf16_f32 v{29 + 4 * i}, v44, v45")
        a(f"v_cvt_pk_bf16_f32 v{30 + 4 * i}, v46, v47")
    for i in range(4):
        a(f"s_waitcnt lgkmcnt({3 - i + 2 * i})")
        a(f"v_add_u32 v{20 + i}, v{20 + i}, v{24 + i}")
        a(f"ds_write2_b32 v{20 + i}, v{28 + 4 * i}, v{29 + 4 * i} offset0:0 offset1:1")
        a(f"ds_write_b32 v{20 + i}, v{30 + 4 * i} offset:8")
    a(f"""
    v_lshlrev_b32 v1, 4, v0
    s_mul_i32 s14, s2, {CHB}
    v_add_u32 v2, s14, v1
    v_add_u32 v3, {CHB // 3}, v2
    v_add_u32 v20, {2 * CHB // 3}, v2
    s_waitcnt lgkmcnt(0)
    s_barrier
    ds_read_b128 v[4:7], v1
    ds_read_b128 v[8:11], v1 offset:{CHB // 3}
    ds_read_b128 v[12:15], v1 offset:{2 * CHB // 3}
    s_waitcnt lgkmcnt(2)
    global_store_dwordx4 v2, v[4:7], s[12:13]
    s_waitcnt lgkmcnt(1)
    global_store_dwordx4 v3, v[8:11], s[12:13]
    s_waitcnt lgkmcnt(0)
    global_store_dwordx4 v20, v[12:15], s[12:13]
    s_endpgm
k1_wb:
    s_cmp_ge_u32 s2, {NCH + 6}
    s_cbranch_scc1 k1_end
    v_cmp_gt_u32 vcc, 512, v0
    s_cbranch_vccz k1_end
    s_sub_u32 s3, s2, {NCH}
    s_load_dwordx2 s[4:5], s[0:1], 40
    s_load_dwordx2 s[12:13], s[0:1], 88
    s_min_u32 s8, s3, 4
    s_cmp_ge_u32 s3, 2
    s_cbranch_scc1 k1_wb1
    s_load_dwordx2 s[6:7], s[0:1], 48
    s_lshl_b32 s9, s3, 13
    s_branch k1_wb2
k1_wb1:
    s_load_dwordx2 s[6:7], s[0:1], 56
    s_sub_u32 s9, s8, 2
    s_lshl_b32 s9, s9, 13
k1_wb2:
    s_lshl_b32 s8, s8, 7
    s_cmp_eq_u32 s3, 5
    s_cselect_b32 s10, 0x80008000, 0
    s_mov_b32 s17, 0xffff0000
    v_bfe_u32 v1, v0, 4, 2
    v_bfe_u32 v2, v0, 6, 1
    v_lshlrev_b32 v1, 4, v1
    v_lshl_add_u32 v1, v2, 2, v1
    v_lshrrev_b32 v3, 7, v0
    v_and_b32 v4, 15, v0
    v_lshl_add_u32 v4, v3, 4, v4
    v_lshlrev_b32 v4, 1, v4
    v_lshl_add_u32 v4, v1, 7, v4
    v_add_u32 v4, s9, v4
    v_lshlrev_b32 v1, 1, v1
    v_add_u32 v1, s8, v1
    s_waitcnt lgkmcnt(0)
""")
    for j in range(8):
        a(f"global_load_ushort v{8 + j}, v4, s[6:7] offset:{(8 * (j >> 2) + (j & 3)) * 128}")
    a(f"""
    global_load_dwordx2 v[16:17], v1, s[4:5]
    global_load_dwordx2 v[18:19], v1, s[4:5] offset:16
    v_mul_u32_u24 v3, 12, v3
    v_add_u32 v3, v3, v2
    s_lshl_b32 s3, s3, 1
    v_add_u32 v3, s3, v3
    v_and_b32 v2, 63, v0
    v_lshl_add_u32 v3, v3, 6, v2
    v_lshlrev_b32 v3, 4, v3
    v_add_u32 v3, {WF_OFF}, v3
    s_waitcnt vmcnt(0)
""")
    for j in range(8):
        a(f"v_lshlrev_b32 v{8 + j}, 16, v{8 + j}")
        unpack(5, 16 + j // 2, j & 1)
        a(f"v_mul_f32 v{8 + j}, v{8 + j}, v5")
    for j in range(4):
        a(f"v_cvt_pk_bf16_f32 v{20 + j}, v{8 + 2 * j}, v{9 + 2 * j}")
        a(f"v_xor_b32 v{20 + j}, s10, v{20 + j}")
    a(f"""
    global_store_dwordx4 v3, v[20:23], s[12:13]
    v_cmp_gt_u32 vcc, 256, v0
    s_cbranch_vccz k1_end
    s_lshl_b32 s14, s2, 10
    s_add_u32 s14, s14, {TBL_OFF}
    v_lshl_add_u32 v1, v0, 2, s14
    v_mov_b32 v2, 0
    global_store_dword v1, v2, s[12:13]
k1_end:
    s_endpgm
""")
    return a.lines, CHB + 2048


def gen_k2():
    a = Asm()
    LDS = 163840
    HIST, BTAB, FLAG = 0, 1024, 2048
    ROW = 2080
    SEND = 49 * ROW
    PER = 8
    ACC, WF, DATA, REC, A, SEL = 144, 96, 64, 32, 28, 24
    T = 8
    vL16, vRA, vCNT, vIDX, vG, vOFF, vT0 = 1, 2, 3, 4, 5, 6, 7
    sX, sR, sT, sW, sO = 4, 8, 12, 16, 20
    sWV, sRND, sMSK, sPH, sC = 24, 25, 26, 27, 28
    sTOT, sMORE, sTMP = 35, 36, 37
    sM = 40
    sSO = 72

    def stamp(i):
        if OPT['stamps']:
            a(f"s_memtime s[{88 + 2 * i}:{89 + 2 * i}]")

    a(f"""
k2_kernel:
    s_cmp_ge_u32 s2, 256
    s_cbranch_scc1 k2_end
""")
    stamp(0)
    a(f"""
    s_load_dwordx2 s[{sX}:{sX + 1}], s[0:1], 0
    s_load_dwordx2 s[{sR}:{sR + 1}], s[0:1], 88
    s_load_dwordx2 s[{sO}:{sO + 1}], s[0:1], 72
    v_lshrrev_b32 v{vT0}, 6, v0
    v_and_b32 v0, 63, v0
    v_readfirstlane_b32 s{sWV}, v{vT0}
    s_mov_b32 s{sX + 2}, {N * 512}
    s_mov_b32 s{sX + 3}, 0x00020000
    s_mov_b32 s{sR + 2}, {NCH * CHB}
    s_mov_b32 s{sR + 3}, 0x00020000
    s_mov_b32 s{sT + 2}, {256 * 1024}
    s_mov_b32 s{sT + 3}, 0x00020000
    s_mov_b32 s{sW + 2}, {48 * 1024}
    s_mov_b32 s{sW + 3}, 0x00020000
    s_mov_b32 s{sO + 2}, {N * 512}
    s_mov_b32 s{sO + 3}, 0x00020000
    s_mov_b32 s{sMSK}, 0xfffffe00
    s_mov_b32 s{sRND}, 0
""")
    for i in range(1, 8):
        a(f"s_mov_b32 s{sSO + i}, {i * 4096}")
        a(f"s_mov_b32 s{sSO + 8 + i}, {i * 4 * CHB}")
    a(f"""
    v_lshrrev_b32 v{vG}, 4, v0
    v_lshl_add_u32 v{vG}, v{vT0}, 5, v{vG}
    v_and_b32 v{vIDX}, 15, v0
    v_mul_u32_u24 v{vIDX}, 12, v{vIDX}
    s_lshl_b32 s{sTMP}, s2, 2
    v_lshl_add_u32 v{vOFF}, v{vG}, 10, s{sTMP}
    v_mul_u32_u24 v{vG}, {CHB}, v{vG}
    s_waitcnt lgkmcnt(0)
    s_add_u32 s{sT}, s{sR}, {TBL_OFF}
    s_addc_u32 s{sT + 1}, s{sR + 1}, 0
    s_add_u32 s{sW}, s{sR}, {WF_OFF}
    s_addc_u32 s{sW + 1}, s{sR + 1}, 0
""")

    def tbl_loads(voff):
        for i in range(8):
            so = "0" if i == 0 else f"s{sSO + i}"
            a(f"buffer_load_dword v{T + i}, v{voff}, s[{sT}:{sT + 3}], {so} offen")
    tbl_loads(vOFF)

    def zero_hist():
        a(f"""
    v_lshlrev_b32 v{T + 8}, 4, v0
    v_mov_b32 v{T + 10}, 0
    v_mov_b32 v{T + 11}, 0
    v_mov_b32 v{T + 12}, 0
    v_and_b32 v{T + 9}, 7, v0
    v_cmp_eq_u32 vcc, 7, v{T + 9}
    s_bitset0_b32 vcc_hi, 31
    v_mov_b32 v{T + 9}, {PER * 32}
    v_cndmask_b32 v{T + 13}, v{T + 10}, v{T + 9}, vcc
    ds_write_b128 v{T + 8}, v[{T + 10}:{T + 13}] offset:{HIST}
    ds_write_b32 v{T + 10}, v{T + 10} offset:{FLAG}
""")
    a(f"""
    s_cmp_lg_u32 s{sWV}, 7
    s_cbranch_scc1 k2_nz0
""")
    zero_hist()
    a("k2_nz0:")
    a(f"""
    s_and_b32 s{sTMP}, s{sWV}, 3
    s_mul_i32 s{sTMP}, s{sTMP}, {12 * 1024}
    v_lshlrev_b32 v{vT0}, 4, v0
""")
    for f in range(12):
        if f % 4 == 0 and f:
            a(f"s_add_u32 s{sTMP}, s{sTMP}, 4096")
        a(f"buffer_load_dwordx4 {v(WF + 4 * f, 4)}, v{vT0}, s[{sW}:{sW + 3}], s{sTMP} offen offset:{(f % 4) * 1024}")
    a(f"""
    v_and_b32 v{vL16}, 31, v0
    v_bfe_u32 v{T + 8}, v0, 3, 2
    v_mul_u32_u24 v{T + 8}, 0x202, v{T + 8}
    v_add_u32 v{T + 8}, 0x0c0c0100, v{T + 8}
    v_and_b32 v{T + 9}, 1, v0
    v_lshlrev_b32 v{T + 9}, 4, v{T + 9}
    v_alignbit_b32 v{T + 8}, v{T + 8}, v{T + 8}, v{T + 9}
    v_bfe_u32 v{T + 9}, v0, 1, 2
    v_mov_b32 v{T + 10}, 0x0c0c0c0c
""")
    for i in range(4):
        a(f"v_cmp_eq_u32 vcc, {i}, v{T + 9}")
        a(f"v_cndmask_b32 v{SEL + i}, v{T + 10}, v{T + 8}, vcc")
    a(f"v_lshlrev_b32 v{vL16}, 4, v{vL16}")
    for i in range(112):
        a(f"v_mov_b32 v{ACC + i}, 0")
    a(f"s_waitcnt vmcnt(12)")
    a(f"s_branch k2_round0")
    a("k2_round:")
    a(f"""
    v_lshrrev_b32 v{vOFF}, 4, v0
    s_lshl_b32 s{sTMP}, s{sWV}, 5
    v_add_u32 v{vOFF}, s{sTMP}, v{vOFF}
    s_lshl_b32 s{sTMP}, s2, 2
    v_lshl_add_u32 v{vOFF}, v{vOFF}, 10, s{sTMP}
""")
    tbl_loads(vOFF)
    a("s_waitcnt vmcnt(0)")
    a("k2_round0:")
    stamp(1)
    a(f"""
    v_add_u32 v{vOFF}, v{vG}, v{vIDX}
    v_add_u32 v{vT0}, 192, v{vIDX}
    v_max3_u32 v{T + 8}, v{T}, v{T + 1}, v{T + 2}
    v_max3_u32 v{T + 9}, v{T + 3}, v{T + 4}, v{T + 5}
    v_max3_u32 v{T + 8}, v{T + 8}, v{T + 6}, v{T + 7}
    v_max_u32 v{T + 8}, v{T + 8}, v{T + 9}
""")
    for i in range(8):
        a(f"v_cmp_lt_u32_sdwa s[{sM + 2 * i}:{sM + 2 * i + 1}], v{vIDX}, v{T + i} src0_sel:DWORD src1_sel:WORD_1")
        a(f"v_cmp_lt_u32_sdwa s[{sM + 16 + 2 * i}:{sM + 17 + 2 * i}], v{vT0}, v{T + i} src0_sel:DWORD src1_sel:WORD_1")
        a(f"v_add_u32_sdwa v{T + i}, v{vOFF}, v{T + i} {SDWA} src0_sel:DWORD src1_sel:WORD_0")
    for i in range(8):
        so = "0" if i == 0 else f"s{sSO + 8 + i}"
        a(f"s_mov_b64 exec, s[{sM + 2 * i}:{sM + 2 * i + 1}]")
        a(f"buffer_load_dwordx3 {v(REC + 4 * i, 3)}, v{T + i}, s[{sR}:{sR + 3}], {so} offen")
    for i in range(8):
        so = "0" if i == 0 else f"s{sSO + 8 + i}"
        a(f"s_mov_b64 exec, s[{sM + 16 + 2 * i}:{sM + 17 + 2 * i}]")
        a(f"s_cbranch_execz k2_l{i}")
        a(f"buffer_load_dwordx3 {v(REC + 32 + 4 * i, 3)}, v{T + i}, s[{sR}:{sR + 3}], {so} offen offset:192")
        a(f"k2_l{i}:")
    a(f"""
    s_mov_b64 exec, -1
    s_add_u32 s{sRND}, s{sRND}, 384
    v_lshrrev_b32 v{T + 8}, 16, v{T + 8}
    v_cmp_lt_u32 vcc, s{sRND}, v{T + 8}
    v_mov_b32 v{vT0}, 16
    v_mov_b32 v{vOFF}, 0
    s_waitcnt lgkmcnt(0)
    s_barrier
    s_cbranch_vccz k2_nomore
    ds_write_b32 v{vOFF}, v{vT0} offset:{FLAG}
k2_nomore:
    s_waitcnt vmcnt(0)
""")
    stamp(2)
    for i in range(16):
        a(f"s_mov_b64 exec, s[{sM + 2 * i}:{sM + 2 * i + 1}]")
        if i >= 8:
            a(f"s_cbranch_execz k2_a{i}")
        a(f"v_lshlrev_b32_sdwa v{T + i}, 2, v{REC + 4 * i} {SDWA} src0_sel:DWORD src1_sel:BYTE_0")
        a(f"ds_add_rtn_u32 v{REC + 4 * i + 3}, v{T + i}, v{vT0} offset:{HIST}")
        if i >= 8:
            a(f"k2_a{i}:")
    c = A
    a(f"""
    s_mov_b64 exec, -1
    v_lshlrev_b32 v{vRA}, 4, v0
    s_lshl_b32 s{sTMP}, s{sWV}, 7
    v_lshl_add_u32 v{vT0}, v0, 2, s{sTMP}
    s_waitcnt lgkmcnt(0)
    s_barrier
    ds_read_b128 v[{c}:{c + 3}], v{vRA} offset:{HIST}
    ds_read_b32 v{vCNT}, v{vT0} offset:{HIST}
    ds_read_b32 v{vOFF}, v{vOFF} offset:{FLAG}
    s_waitcnt lgkmcnt(0)
    v_readfirstlane_b32 s{sMORE}, v{vOFF}
""")
    for i in range(4):
        a(f"v_add_u32 v{c + i}, 16, v{c + i}")
        a(f"v_and_b32 v{c + i}, -32, v{c + i}")
    a(f"""
    v_add_u32 v{c + 1}, v{c}, v{c + 1}
    v_add_u32 v{c + 2}, v{c + 1}, v{c + 2}
    v_add_u32 v{c + 3}, v{c + 2}, v{c + 3}
    v_mov_b32 v{vOFF}, v{c + 3}
""")
    wave_scan(a, vOFF)
    a(f"""
    v_readlane_b32 s{sTOT}, v{vOFF}, 63
    v_sub_u32 v{vOFF}, v{vOFF}, v{c + 3}
    s_sub_u32 s{sTOT}, {LDS}, s{sTOT}
    v_add_u32 v{vOFF}, s{sTOT}, v{vOFF}
    v_add_u32 v{c + 3}, v{vOFF}, v{c + 2}
    v_add_u32 v{c + 2}, v{vOFF}, v{c + 1}
    v_add_u32 v{c + 1}, v{vOFF}, v{c}
    v_mov_b32 v{c}, v{vOFF}
    ds_write_b128 v{vRA}, v[{c}:{c + 3}] offset:{BTAB}
    ds_read_b32 v{vRA}, v{vT0} offset:{BTAB}
""")
    for i in range(16):
        a(f"s_mov_b64 exec, s[{sM + 2 * i}:{sM + 2 * i + 1}]")
        if i >= 8:
            a(f"s_cbranch_execz k2_b{i}")
        a(f"ds_read_b32 v{T + i}, v{T + i} offset:{BTAB}")
        if i >= 8:
            a(f"k2_b{i}:")
    a("s_waitcnt lgkmcnt(0)")
    for i in range(16):
        a(f"s_mov_b64 exec, s[{sM + 2 * i}:{sM + 2 * i + 1}]")
        if i >= 8:
            a(f"s_cbranch_execz k2_c{i}")
        a(f"v_add_u32 v{T + i}, v{T + i}, v{REC + 4 * i + 3}")
        a(f"ds_write_b96 v{T + i}, {v(REC + 4 * i, 3)}")
        if i >= 8:
            a(f"k2_c{i}:")
    a(f"""
    s_mov_b64 exec, -1
    s_cmp_eq_u32 s{sWV}, 7
    s_cbranch_scc1 k2_nopad
    v_readlane_b32 s{sTMP}, v{vRA}, 31
    v_readlane_b32 s{sTMP + 1}, v{vRA}, 0
    v_add_u32 v{vOFF}, v{vRA}, v{vCNT}
    v_and_b32 v{vT0}, 16, v{vCNT}
    v_cmp_ne_u32 vcc, 0, v{vT0}
    s_mov_b32 exec_lo, 0
    v_add_u32 v{vOFF}, s{sTMP}, v{vL16}
    s_mov_b32 exec_lo, vcc_lo
    s_mov_b32 exec_hi, {(1 << (2 * PER)) - 1}
    v_mov_b32 v{A}, 0x80000000
    v_mov_b32 v{A + 1}, 0
    v_mov_b32 v{A + 2}, 0
    ds_write_b96 v{vOFF}, v[{A}:{A + 2}]
    s_mov_b64 exec, -1
    v_add_u32 v{vCNT}, 16, v{vCNT}
    v_lshrrev_b32 v{vCNT}, 5, v{vCNT}
    v_lshrrev_b32 v{vRA}, 5, v0
    v_lshlrev_b32 v{vRA}, 4, v{vRA}
    v_add_u32 v{vRA}, s{sTMP + 1}, v{vRA}
k2_nopad:
    s_waitcnt lgkmcnt(0)
    s_barrier
""")
    stamp(3)
    a(f"""
    s_cmp_lg_u32 s{sWV}, 7
    s_cbranch_scc1 k2_main
    s_cmp_eq_u32 s{sMORE}, 0
    s_cbranch_scc1 k2_done
""")
    zero_hist()
    a("s_branch k2_done")
    a("k2_main:")
    for r in range(PER):
        a(f"ds_read_b128 {v(REC + 4 * r, 4)}, v{vRA} offset:{r * 32}")
    a(f"v_add_u32 v{vRA}, {PER * 32}, v{vRA}")
    a(f"s_mov_b32 s{sPH}, 0")
    for r in range(PER - 1):
        a(f"s_waitcnt lgkmcnt({PER - 1 - r})")
        a(f"v_and_or_b32 v{vOFF}, v{REC + 4 * r}, s{sMSK}, v{vL16}")
        a(f"buffer_load_dwordx4 {v(DATA + 4 * r, 4)}, v{vOFF}, s[{sX}:{sX + 3}], 0 offen")
    a("s_branch k2_h7_0")
    for sl in range(7):
        for r in range(PER):
            rp = (r - 1) % PER
            a(f"""
k2_h{sl}_{r}:
    s_sub_u32 s{sC + sl}, s{sC + sl}, 1
    s_cbranch_scc1 k2_h{sl + 1}_{r}
    s_waitcnt lgkmcnt(0)
    v_and_or_b32 v{vOFF}, v{REC + 4 * rp}, s{sMSK}, v{vL16}
    buffer_load_dwordx4 {v(DATA + 4 * rp, 4)}, v{vOFF}, s[{sX}:{sX + 3}], 0 offen
""")
            for i in range(4):
                a(f"v_perm_b32 v{A + i}, v{REC + 4 * r + 2}, v{REC + 4 * r + 1}, v{SEL + i}")
            a(f"ds_read_b128 {v(REC + 4 * r, 4)}, v{vRA} offset:{r * 32}")
            if r == PER - 1:
                a(f"v_add_u32 v{vRA}, {PER * 32}, v{vRA}")
            a(f"s_waitcnt vmcnt({PER - 1})")
            a(f"v_mfma_f32_32x32x16_bf16 {v(ACC + 16 * sl, 16)}, {v(A, 4)}, {v(DATA + 4 * r, 4)}, {v(ACC + 16 * sl, 16)}")
            if r == PER - 1:
                a(f"s_branch k2_h{sl}_0")
    for r in range(PER):
        a(f"""
k2_h7_{r}:
    s_cmp_eq_u32 s{sPH}, 32
    s_cbranch_scc1 k2_done
""")
        for sl in range(7):
            a(f"v_readlane_b32 s{sC + sl}, v{vCNT}, s{sPH}")
            a(f"s_add_u32 s{sPH}, s{sPH}, {1 if sl < 6 else 2}")
        a(f"s_branch k2_h0_{r}")
    a(f"""
k2_done:
    s_waitcnt vmcnt(0) lgkmcnt(0)
    v_add_u32 v{vIDX}, 384, v{vIDX}
    s_cmp_lg_u32 s{sMORE}, 0
    s_cbranch_scc1 k2_round
""")
    stamp(4)
    a(f"""
    s_cmp_ge_u32 s{sTOT}, {SEND}
    s_cbranch_scc1 k2_nob3
    s_barrier
k2_nob3:
    s_cmp_eq_u32 s{sWV}, 7
    s_cbranch_scc1 k2_nos
    s_mul_i32 s{sTMP}, s{sWV}, {ROW}
    v_lshl_add_u32 v{vOFF}, v0, 3, s{sTMP}
    v_add_u32 v{vT0}, {4 * 7 * ROW}, v{vOFF}
""")
    k = 0
    for sl in range(7):
        for q in range(4):
            t = REC + 2 * (k % 16)
            k += 1
            b = ACC + 16 * sl + 4 * q
            a(f"v_cvt_pk_bf16_f32 v{t}, v{b}, v{b + 1}")
            a(f"v_cvt_pk_bf16_f32 v{t + 1}, v{b + 2}, v{b + 3}")
            if sl < 4:
                a(f"ds_write_b64 v{vOFF}, {v(t, 2)} offset:{sl * 7 * ROW + q * 512}")
            else:
                a(f"ds_write_b64 v{vT0}, {v(t, 2)} offset:{(sl - 4) * 7 * ROW + q * 512}")
    a(f"""
k2_nos:
    s_lshr_b32 s{sTMP}, s{sWV}, 2
    s_lshl_b32 s{sTMP}, s{sTMP}, 5
    v_and_b32 v{vT0}, 15, v0
    v_add_u32 v{vT0}, s{sTMP}, v{vT0}
    v_mul_u32_u24 v{vRA}, {ROW}, v{vT0}
    v_and_b32 v{vOFF}, 48, v0
    v_add_u32 v{vRA}, v{vRA}, v{vOFF}
    s_and_b32 s{sTMP}, s{sWV}, 3
    s_lshl_b32 s{sTMP}, s{sTMP}, 5
    s_lshl_b32 s{sTMP + 1}, s2, 9
    s_add_u32 s{sTMP}, s{sTMP}, s{sTMP + 1}
    v_lshrrev_b32 v{vOFF}, 1, v{vOFF}
    v_lshl_add_u32 v{vOFF}, v{vT0}, 17, v{vOFF}
    v_add_u32 v{vOFF}, s{sTMP}, v{vOFF}
    v_add_u32 v{vT0}, {16 << 17}, v{vOFF}
    s_mov_b32 s{sTMP + 1}, 0xbfb8aa3b
    s_waitcnt lgkmcnt(0)
    s_barrier
""")
    stamp(5)
    terms = {0: [(0, 0, 0), (1, 1, 1), (1, 2, 2), (1, 3, 3)],
             1: [(3, 0, 1), (2, 1, 0), (4, 2, 3), (5, 3, 2)],
             2: [(3, 0, 2), (2, 2, 0), (4, 3, 1), (5, 1, 3)],
             3: [(3, 0, 3), (2, 3, 0), (4, 1, 2), (5, 2, 1)]}
    seq = []
    for tile in range(2):
        for ti in range(4):
            for h in range(2):
                for o in range(4):
                    t, q, b = terms[o][ti]
                    seq.append((tile, o, t, q, b, h, ti == 0 and h == 0))
    NB, AH = 24, 12
    BB = 160
    OA = 64
    def rd(i):
        tile, o, t, q, b, h, first = seq[i]
        a(f"ds_read_b128 {v(BB + 4 * (i % NB), 4)}, v{vRA} offset:{tile * 16 * ROW + q * 512 + h * 256 + b * 64}")

    def finish(tile):
        o0 = OA + 16 * tile
        g = REC + 8 * tile
        for i in range(4):
            a(f"v_mul_f32 v{g + i}, s{sTMP + 1}, v{o0 + i}")
        for i in range(4):
            a(f"v_exp_f32 v{g + i}, v{g + i}")
        for i in range(4):
            a(f"v_add_f32 v{g + i}, 1.0, v{g + i}")
        for i in range(4):
            a(f"v_rcp_f32 v{g + i}, v{g + i}")
        vo = vOFF if tile == 0 else vT0
        a(f"v_cvt_pk_bf16_f32 v{o0}, v{o0}, v{o0 + 1}")
        a(f"v_cvt_pk_bf16_f32 v{o0 + 1}, v{o0 + 2}, v{o0 + 3}")
        a(f"buffer_store_dwordx2 {v(o0, 2)}, v{vo}, s[{sO}:{sO + 3}], 0 offen")
        for o in range(1, 4):
            b = o0 + 4 * o
            for i in range(4):
                a(f"v_mul_f32 v{b + i}, v{b + i}, v{g + i}")
            a(f"v_cvt_pk_bf16_f32 v{b}, v{b}, v{b + 1}")
            a(f"v_cvt_pk_bf16_f32 v{b + 1}, v{b + 2}, v{b + 3}")
            a(f"buffer_store_dwordx2 {v(b, 2)}, v{vo}, s[{sO}:{sO + 3}], 0 offen offset:{128 * o}")

    for i in range(AH):
        rd(i)
    for i in range(64):
        tile, o, t, q, b, h, first = seq[i]
        if i + AH < 64:
            rd(i + AH)
        a(f"s_waitcnt lgkmcnt({min(AH, 63 - i)})")
        d = v(OA + 16 * tile + 4 * o, 4)
        a(f"v_mfma_f32_16x16x32_bf16 {d}, {v(WF + 4 * (2 * t + h), 4)}, {v(BB + 4 * (i % NB), 4)}, {'0' if first else d}")
        if i == 39:
            finish(0)
    finish(1)
    if OPT['stamps']:
        stamp(6)
        a(f"""
    s_load_dwordx2 s[{sX}:{sX + 1}], s[0:1], 88
    s_waitcnt vmcnt(0) lgkmcnt(0)
    s_memtime s[{sC}:{sC + 1}]
    s_lshl_b32 s{sTMP}, s2, 3
    s_add_u32 s{sTMP}, s{sTMP}, s{sWV}
    s_lshl_b32 s{sTMP}, s{sTMP}, 6
    s_add_u32 s{sTMP}, s{sTMP}, 0xB00000
    v_mov_b32 v{vOFF}, s{sTMP}
    s_waitcnt lgkmcnt(0)
""")
        for i in range(7):
            a(f"v_mov_b32 v{8 + 2 * i}, s{88 + 2 * i}")
            a(f"v_mov_b32 v{9 + 2 * i}, s{89 + 2 * i}")
        a(f"v_mov_b32 v22, s{sC}")
        a(f"v_mov_b32 v23, s{sC + 1}")
        a("s_mov_b64 exec, 1")
        for i in range(4):
            a(f"global_store_dwordx4 v{vOFF}, {v(8 + 4 * i, 4)}, s[{sX}:{sX + 1}] offset:{16 * i}")
    a("""
k2_end:
    s_endpgm
""")
    return a.lines, LDS


def main():
    out = sys.argv[1] if len(sys.argv) > 1 else f"cdna_kernels/{NAME}.s"
    ref = open(f"cdna_kernels/{NAME}.s.ref").read().split('\n')
    hdr = [l for l in ref if l.startswith(';') and '@launch' not in l and 'Override' not in l and 'grid=ceil' not in l]
    k1, lds1 = gen_k1()
    k2, lds2 = gen_k2()
    k1, n1 = pad_hazards(k1, OPT.get('verbose', 0))
    k2, n2 = pad_hazards(k2, OPT.get('verbose', 0))
    txt = hdr + [
        f"; @launch kernel=k1_kernel grid=(256,1,1) block=(832,1,1) lds={lds1}",
        f"; @launch kernel=k2_kernel grid=(256,1,1) block=(512,1,1) lds={lds2}",
        '.amdgcn_target "amdgcn-amd-amdhsa--gfx950"', '.text']
    for nm, body in (("k1_kernel", k1), ("k2_kernel", k2)):
        txt += [f".globl {nm}", ".p2align 8", f".type {nm},@function"] + body
    txt += ['.section .rodata,"a"']
    for nm, vg in (("k1_kernel", 48), ("k2_kernel", 256)):
        txt += [".p2align 6", f".amdhsa_kernel {nm}",
                f"  .amdhsa_next_free_vgpr {vg}", "  .amdhsa_next_free_sgpr 102",
                f"  .amdhsa_accum_offset {vg}", "  .amdhsa_group_segment_fixed_size 0",
                "  .amdhsa_kernarg_size 96", "  .amdhsa_user_sgpr_count 2",
                "  .amdhsa_user_sgpr_kernarg_segment_ptr 1", "  .amdhsa_system_sgpr_workgroup_id_x 1",
                ".end_amdhsa_kernel"]
    open(out, 'w').write('\n'.join(txt) + '\n')
    print(f"wrote {out}: pads k1={n1} k2={n2}, lines {len(txt)}")


main()
```

```python
import sys
from asmlib import Asm, v, s, pad_hazards

NAME = "gather_scatter__tensor_product_equiv_equiformer__graph"
OPT = dict(stamps=0, xmap=1, wlate=1, k1nt=0, k1sc=0, pf1=0, pf2=0)
for a in sys.argv[2:]:
    k, val = a.split('=')
    OPT[k] = int(val, 0)

N = 12500
NCH = 250
CH = 3200
CHB = CH * 12
TBL_OFF = 0xA00000
WF_OFF = 0xA80000
SDWA = "dst_sel:DWORD dst_unused:UNUSED_PAD"


def wave_scan(a, r):
    for m in ("row_shr:1", "row_shr:2", "row_shr:4", "row_shr:8"):
        a(f"v_add_u32_dpp {v(r)}, {v(r)}, {v(r)} {m} row_mask:0xf bank_mask:0xf")
    a(f"v_add_u32_dpp {v(r)}, {v(r)}, {v(r)} row_bcast:15 row_mask:0xa bank_mask:0xf")
    a(f"v_add_u32_dpp {v(r)}, {v(r)}, {v(r)} row_bcast:31 row_mask:0xc bank_mask:0xf")


def gen_k1():
    a = Asm()
    HIST = CHB
    BASE = CHB + 1024

    def stamp(i):
        return f"s_memrealtime s[{88 + 2 * i}:{89 + 2 * i}]" if OPT['stamps'] else ""
    NT = " nt" if OPT['k1nt'] & 1 else ""
    NT2 = " nt" if OPT['k1nt'] & 2 else ""
    SC = {0: "", 1: " sc1", 2: " sc0 sc1", 3: " nt"}[OPT['k1sc']]
    P1 = 1 if OPT['pf1'] == 1 else 0

    def pf(i):
        if OPT['pf1'] != i:
            return ""
        return f"""
    s_mul_i32 s19, s2, {200 * 128}
    v_min_u32 v48, 199, v0
    v_lshl_add_u32 v48, v48, 7, s19
    global_load_dword v48, v48, s[22:23]
"""
    a(f"""
k1_kernel:
    s_cmp_ge_u32 s2, {NCH}
    s_cbranch_scc1 k1_wb
    {stamp(0)}
    s_load_dwordx8 s[4:11], s[0:1], 8
    s_load_dwordx2 s[12:13], s[0:1], 88
    s_load_dwordx2 s[22:23], s[0:1], 0
    s_mul_i32 s14, s2, {CH * 4}
    s_mul_i32 s15, s2, {CH * 2}
    s_mul_i32 s16, s2, {CH * 6}
    v_lshlrev_b32 v1, 4, v0
    v_add_u32 v1, s14, v1
    v_lshlrev_b32 v2, 3, v0
    v_add_u32 v2, s15, v2
    v_mul_u32_u24 v3, 24, v0
    v_add_u32 v3, s16, v3
    v_cmp_gt_u32 vcc, {CH // 4}, v0
    s_mov_b64 s[20:21], vcc
    s_mov_b64 exec, vcc
    s_waitcnt lgkmcnt(0)
    global_load_dwordx4 v[4:7], v1, s[10:11]{NT}
    global_load_dwordx4 v[8:11], v1, s[8:9]{NT}
    global_load_dwordx2 v[12:13], v2, s[6:7]{NT}
    global_load_dwordx4 v[14:17], v3, s[4:5]{NT2}
    global_load_dwordx2 v[18:19], v3, s[4:5] offset:16{NT2}
    {pf(1)}
    v_cmp_gt_u32 vcc, 256, v0
    s_mov_b64 exec, vcc
    v_lshlrev_b32 v1, 2, v0
    v_mov_b32 v2, 0
    ds_write_b32 v1, v2 offset:{HIST}
    s_mov_b64 exec, s[20:21]
    v_mov_b32 v2, 12
    s_mov_b32 s17, 0xffff0000
    s_movk_i32 s18, 5368
    s_waitcnt lgkmcnt(0)
    s_barrier
    s_waitcnt vmcnt({4 + P1})
    {stamp(1)}
""")
    for i in range(4):
        a(f"v_lshlrev_b32_sdwa v{20 + i}, 2, v{4 + i} {SDWA} src0_sel:DWORD src1_sel:BYTE_0")
        a(f"ds_add_rtn_u32 v{24 + i}, v{20 + i}, v2 offset:{HIST}")
    for i in range(4):
        a(f"v_lshrrev_b32 v{4 + i}, 8, v{4 + i}")
        a(f"v_mul_u32_u24 v1, 37, v{4 + i}")
        a(f"v_lshrrev_b32 v1, 8, v1")
        a(f"v_mul_u32_u24 v1, 223, v1")
        a(f"v_lshlrev_b32 v{4 + i}, 5, v{4 + i}")
        a(f"v_sub_u32 v{4 + i}, v{4 + i}, v1")
    a(f"s_waitcnt vmcnt({3 + P1})")
    for i in range(4):
        a(f"v_mul_u32_u24 v1, s18, v{8 + i}")
        a(f"v_lshrrev_b32 v1, 24, v1")
        a(f"v_lshl_add_u32 v1, v1, 3, v{4 + i}")
        a(f"v_lshl_or_b32 v{28 + 4 * i}, v{8 + i}, 9, v1")
    a("s_waitcnt lgkmcnt(0)")
    a("s_barrier")
    a(f"""
    s_mov_b64 exec, -1
    v_and_b32 v1, 63, v0
    v_lshlrev_b32 v1, 4, v1
    ds_read_b128 v[4:7], v1 offset:{HIST}
    s_waitcnt lgkmcnt(0)
    v_add_u32 v9, v4, v5
    v_add_u32 v10, v9, v6
    v_add_u32 v3, v10, v7
    v_mov_b32 v11, v3
""")
    wave_scan(a, 3)
    a(f"""
    v_sub_u32 v8, v3, v11
    v_add_u32 v11, v8, v10
    v_add_u32 v10, v8, v9
    v_add_u32 v9, v8, v4
    ds_write_b128 v1, v[8:11] offset:{BASE}
    v_cmp_gt_u32 vcc, 64, v0
    s_cbranch_vccz k1_notbl
    s_lshl_b32 s14, s2, 10
    s_add_u32 s14, s14, {TBL_OFF}
    v_add_u32 v1, s14, v1
""")
    for i in range(4):
        a(f"v_lshl_or_b32 v{4 + i}, v{4 + i}, 16, v{8 + i}")
    a(f"""
    s_waitcnt vmcnt({P1})
    global_store_dwordx4 v1, v[4:7], s[12:13]{SC}
    s_branch k1_tbd
k1_notbl:
    s_waitcnt vmcnt({P1})
k1_tbd:
    {stamp(2)}
    s_mov_b64 exec, s[20:21]
""")
    for i in range(4):
        a(f"ds_read_b32 v{20 + i}, v{20 + i} offset:{BASE}")

    def unpack(dst, reg, hi):
        if hi:
            a(f"v_and_b32 v{dst}, s17, v{reg}")
        else:
            a(f"v_lshlrev_b32 v{dst}, 16, v{reg}")
    for i in range(4):
        unpack(44, 12 + i // 2, i & 1)
        for j in range(3):
            hw = 3 * i + j
            unpack(45 + j, 14 + hw // 2, hw & 1)
        for j in range(3):
            a(f"v_mul_f32 v{45 + j}, v44, v{45 + j}")
        a(f"v_cvt_pk_bf16_f32 v{29 + 4 * i}, v44, v45")
        a(f"v_cvt_pk_bf16_f32 v{30 + 4 * i}, v46, v47")
    for i in range(4):
        a(f"s_waitcnt lgkmcnt({3 - i + 2 * i})")
        a(f"v_add_u32 v{20 + i}, v{20 + i}, v{24 + i}")
        a(f"ds_write2_b32 v{20 + i}, v{28 + 4 * i}, v{29 + 4 * i} offset0:0 offset1:1")
        a(f"ds_write_b32 v{20 + i}, v{30 + 4 * i} offset:8")
    a(f"""
    v_lshlrev_b32 v1, 4, v0
    s_mul_i32 s14, s2, {CHB}
    v_add_u32 v2, s14, v1
    v_add_u32 v3, {CHB // 3}, v2
    v_add_u32 v20, {2 * CHB // 3}, v2
    s_waitcnt lgkmcnt(0)
    s_barrier
    {stamp(3)}
    ds_read_b128 v[4:7], v1
    ds_read_b128 v[8:11], v1 offset:{CHB // 3}
    ds_read_b128 v[12:15], v1 offset:{2 * CHB // 3}
    {pf(2)}
    s_waitcnt lgkmcnt(2)
    global_store_dwordx4 v2, v[4:7], s[12:13]{SC}
    s_waitcnt lgkmcnt(1)
    global_store_dwordx4 v3, v[8:11], s[12:13]{SC}
    s_waitcnt lgkmcnt(0)
    global_store_dwordx4 v20, v[12:15], s[12:13]{SC}
""")
    if OPT['stamps']:
        a(f"""
    s_waitcnt vmcnt(0)
    {stamp(4)}
    v_cmp_eq_u32 vcc, 0, v0
    s_mov_b64 exec, vcc
    s_cbranch_execz k1_nost
    s_lshl_b32 s14, s2, 6
    s_add_u32 s14, s14, 0xB20000
    v_mov_b32 v1, s14
    s_waitcnt lgkmcnt(0)
""")
        for i in range(10):
            a(f"v_mov_b32 v{4 + i}, s{88 + i}")
        a("""
    global_store_dwordx4 v1, v[4:7], s[12:13]
    global_store_dwordx4 v1, v[8:11], s[12:13] offset:16
    global_store_dwordx2 v1, v[12:13], s[12:13] offset:32
k1_nost:
""")
    a(f"""
    s_endpgm
k1_wb:
    s_cmp_ge_u32 s2, {NCH + 6}
    s_cbranch_scc1 k1_end
    v_cmp_gt_u32 vcc, 512, v0
    s_cbranch_vccz k1_end
    s_sub_u32 s3, s2, {NCH}
    s_load_dwordx2 s[4:5], s[0:1], 40
    s_load_dwordx2 s[12:13], s[0:1], 88
    s_min_u32 s8, s3, 4
    s_cmp_ge_u32 s3, 2
    s_cbranch_scc1 k1_wb1
    s_load_dwordx2 s[6:7], s[0:1], 48
    s_lshl_b32 s9, s3, 13
    s_branch k1_wb2
k1_wb1:
    s_load_dwordx2 s[6:7], s[0:1], 56
    s_sub_u32 s9, s8, 2
    s_lshl_b32 s9, s9, 13
k1_wb2:
    s_lshl_b32 s8, s8, 7
    s_cmp_eq_u32 s3, 5
    s_cselect_b32 s10, 0x80008000, 0
    s_mov_b32 s17, 0xffff0000
    v_bfe_u32 v1, v0, 4, 2
    v_bfe_u32 v2, v0, 6, 1
    v_lshlrev_b32 v1, 4, v1
    v_lshl_add_u32 v1, v2, 2, v1
    v_lshrrev_b32 v3, 7, v0
    v_and_b32 v4, 15, v0
    v_lshl_add_u32 v4, v3, 4, v4
    v_lshlrev_b32 v4, 1, v4
    v_lshl_add_u32 v4, v1, 7, v4
    v_add_u32 v4, s9, v4
    v_lshlrev_b32 v1, 1, v1
    v_add_u32 v1, s8, v1
    s_waitcnt lgkmcnt(0)
""")
    for j in range(8):
        a(f"global_load_ushort v{8 + j}, v4, s[6:7] offset:{(8 * (j >> 2) + (j & 3)) * 128}")
    a(f"""
    global_load_dwordx2 v[16:17], v1, s[4:5]
    global_load_dwordx2 v[18:19], v1, s[4:5] offset:16
    v_mul_u32_u24 v3, 12, v3
    v_add_u32 v3, v3, v2
    s_lshl_b32 s3, s3, 1
    v_add_u32 v3, s3, v3
    v_and_b32 v2, 63, v0
    v_lshl_add_u32 v3, v3, 6, v2
    v_lshlrev_b32 v3, 4, v3
    v_add_u32 v3, {WF_OFF}, v3
    s_waitcnt vmcnt(0)
""")
    for j in range(8):
        a(f"v_lshlrev_b32 v{8 + j}, 16, v{8 + j}")
        unpack(5, 16 + j // 2, j & 1)
        a(f"v_mul_f32 v{8 + j}, v{8 + j}, v5")
    for j in range(4):
        a(f"v_cvt_pk_bf16_f32 v{20 + j}, v{8 + 2 * j}, v{9 + 2 * j}")
        a(f"v_xor_b32 v{20 + j}, s10, v{20 + j}")
    a(f"""
    global_store_dwordx4 v3, v[20:23], s[12:13]
    v_cmp_gt_u32 vcc, 256, v0
    s_cbranch_vccz k1_end
    s_lshl_b32 s14, s2, 10
    s_add_u32 s14, s14, {TBL_OFF}
    v_lshl_add_u32 v1, v0, 2, s14
    v_mov_b32 v2, 0
    global_store_dword v1, v2, s[12:13]
k1_end:
    s_endpgm
""")
    return a.lines, CHB + 2048


def gen_k2():
    a = Asm()
    LDS = 163840
    HIST, BTAB, FLAG = 0, 1024, 2048
    ROW = 2080
    SEND = 49 * ROW
    PER = 8
    ACC, WF, DATA, REC, A, SEL = 144, 96, 64, 32, 28, 24
    T = 8
    vL16, vRA, vCNT, vIDX, vG, vOFF, vT0 = 1, 2, 3, 4, 5, 6, 7
    sX, sR, sT, sW, sO = 4, 8, 12, 16, 20
    sWV, sRND, sMSK, sPH, sC = 24, 25, 26, 27, 28
    sTOT, sMORE, sTMP = 35, 36, 37
    sM = 40
    sSO = 72

    def stamp(i):
        if OPT['stamps']:
            a(f"s_memrealtime s[{88 + 2 * i}:{89 + 2 * i}]")

    a(f"""
k2_kernel:
    s_cmp_ge_u32 s2, 256
    s_cbranch_scc1 k2_end
""")
    stamp(0)
    if OPT['xmap']:
        a("""
    s_and_b32 s3, s2, 7
    s_lshr_b32 s2, s2, 3
    s_lshl_b32 s3, s3, 5
    s_or_b32 s2, s2, s3
""")
    a(f"""
    s_load_dwordx2 s[{sX}:{sX + 1}], s[0:1], 0
    s_load_dwordx2 s[{sR}:{sR + 1}], s[0:1], 88
    s_load_dwordx2 s[{sO}:{sO + 1}], s[0:1], 72
    v_lshrrev_b32 v{vT0}, 6, v0
    v_and_b32 v0, 63, v0
    v_readfirstlane_b32 s{sWV}, v{vT0}
    s_mov_b32 s{sX + 2}, {N * 512}
    s_mov_b32 s{sX + 3}, 0x00020000
    s_mov_b32 s{sR + 2}, {NCH * CHB}
    s_mov_b32 s{sR + 3}, 0x00020000
    s_mov_b32 s{sT + 2}, {256 * 1024}
    s_mov_b32 s{sT + 3}, 0x00020000
    s_mov_b32 s{sW + 2}, {48 * 1024}
    s_mov_b32 s{sW + 3}, 0x00020000
    s_mov_b32 s{sO + 2}, {N * 512}
    s_mov_b32 s{sO + 3}, 0x00020000
    s_mov_b32 s{sMSK}, 0xfffffe00
    s_mov_b32 s{sRND}, 0
""")
    for i in range(1, 8):
        a(f"s_mov_b32 s{sSO + i}, {i * 4096}")
        a(f"s_mov_b32 s{sSO + 8 + i}, {i * 4 * CHB}")
    a(f"""
    v_lshrrev_b32 v{vG}, 4, v0
    v_lshl_add_u32 v{vG}, v{vT0}, 5, v{vG}
    v_and_b32 v{vIDX}, 15, v0
    v_mul_u32_u24 v{vIDX}, 12, v{vIDX}
    s_lshl_b32 s{sTMP}, s2, 2
    v_lshl_add_u32 v{vOFF}, v{vG}, 10, s{sTMP}
    v_mul_u32_u24 v{vG}, {CHB}, v{vG}
    s_waitcnt lgkmcnt(0)
    s_add_u32 s{sT}, s{sR}, {TBL_OFF}
    s_addc_u32 s{sT + 1}, s{sR + 1}, 0
    s_add_u32 s{sW}, s{sR}, {WF_OFF}
    s_addc_u32 s{sW + 1}, s{sR + 1}, 0
""")

    def tbl_loads(voff):
        for i in range(8):
            so = "0" if i == 0 else f"s{sSO + i}"
            a(f"buffer_load_dword v{T + i}, v{voff}, s[{sT}:{sT + 3}], {so} offen")
    tbl_loads(vOFF)

    def zero_hist():
        a(f"""
    v_lshlrev_b32 v{T + 8}, 4, v0
    v_mov_b32 v{T + 10}, 0
    v_mov_b32 v{T + 11}, 0
    v_mov_b32 v{T + 12}, 0
    v_and_b32 v{T + 9}, 7, v0
    v_cmp_eq_u32 vcc, 7, v{T + 9}
    s_bitset0_b32 vcc_hi, 31
    v_mov_b32 v{T + 9}, {PER * 32}
    v_cndmask_b32 v{T + 13}, v{T + 10}, v{T + 9}, vcc
    ds_write_b128 v{T + 8}, v[{T + 10}:{T + 13}] offset:{HIST}
    ds_write_b32 v{T + 10}, v{T + 10} offset:{FLAG}
""")
    a(f"""
    s_cmp_lg_u32 s{sWV}, 7
    s_cbranch_scc1 k2_nz0
""")
    zero_hist()
    a("k2_nz0:")
    def wloads(vt):
        a(f"""
    s_and_b32 s{sTMP}, s{sWV}, 3
    s_mul_i32 s{sTMP}, s{sTMP}, {12 * 1024}
    v_lshlrev_b32 v{vt}, 4, v0
""")
        for f in range(12):
            if f % 4 == 0 and f:
                a(f"s_add_u32 s{sTMP}, s{sTMP}, 4096")
            a(f"buffer_load_dwordx4 {v(WF + 4 * f, 4)}, v{vt}, s[{sW}:{sW + 3}], s{sTMP} offen offset:{(f % 4) * 1024}")
    if not OPT['wlate']:
        wloads(vT0)
    a(f"""
    v_and_b32 v{vL16}, 31, v0
    v_bfe_u32 v{T + 8}, v0, 3, 2
    v_mul_u32_u24 v{T + 8}, 0x202, v{T + 8}
    v_add_u32 v{T + 8}, 0x0c0c0100, v{T + 8}
    v_and_b32 v{T + 9}, 1, v0
    v_lshlrev_b32 v{T + 9}, 4, v{T + 9}
    v_alignbit_b32 v{T + 8}, v{T + 8}, v{T + 8}, v{T + 9}
    v_bfe_u32 v{T + 9}, v0, 1, 2
    v_mov_b32 v{T + 10}, 0x0c0c0c0c
""")
    for i in range(4):
        a(f"v_cmp_eq_u32 vcc, {i}, v{T + 9}")
        a(f"v_cndmask_b32 v{SEL + i}, v{T + 10}, v{T + 8}, vcc")
    a(f"v_lshlrev_b32 v{vL16}, 4, v{vL16}")
    for i in range(112):
        a(f"v_mov_b32 v{ACC + i}, 0")
    a(f"s_waitcnt vmcnt({0 if OPT['wlate'] else 12})")
    a(f"s_branch k2_round0")
    a("k2_round:")
    a(f"""
    v_lshrrev_b32 v{vOFF}, 4, v0
    s_lshl_b32 s{sTMP}, s{sWV}, 5
    v_add_u32 v{vOFF}, s{sTMP}, v{vOFF}
    s_lshl_b32 s{sTMP}, s2, 2
    v_lshl_add_u32 v{vOFF}, v{vOFF}, 10, s{sTMP}
""")
    tbl_loads(vOFF)
    a("s_waitcnt vmcnt(0)")
    a("k2_round0:")
    stamp(1)
    a(f"""
    v_add_u32 v{vOFF}, v{vG}, v{vIDX}
    v_add_u32 v{vT0}, 192, v{vIDX}
    v_max3_u32 v{T + 8}, v{T}, v{T + 1}, v{T + 2}
    v_max3_u32 v{T + 9}, v{T + 3}, v{T + 4}, v{T + 5}
    v_max3_u32 v{T + 8}, v{T + 8}, v{T + 6}, v{T + 7}
    v_max_u32 v{T + 8}, v{T + 8}, v{T + 9}
""")
    for i in range(8):
        a(f"v_cmp_lt_u32_sdwa s[{sM + 2 * i}:{sM + 2 * i + 1}], v{vIDX}, v{T + i} src0_sel:DWORD src1_sel:WORD_1")
        a(f"v_cmp_lt_u32_sdwa s[{sM + 16 + 2 * i}:{sM + 17 + 2 * i}], v{vT0}, v{T + i} src0_sel:DWORD src1_sel:WORD_1")
        a(f"v_add_u32_sdwa v{T + i}, v{vOFF}, v{T + i} {SDWA} src0_sel:DWORD src1_sel:WORD_0")
    for i in range(8):
        so = "0" if i == 0 else f"s{sSO + 8 + i}"
        a(f"s_mov_b64 exec, s[{sM + 2 * i}:{sM + 2 * i + 1}]")
        a(f"buffer_load_dwordx3 {v(REC + 4 * i, 3)}, v{T + i}, s[{sR}:{sR + 3}], {so} offen")
    for i in range(8):
        so = "0" if i == 0 else f"s{sSO + 8 + i}"
        a(f"s_mov_b64 exec, s[{sM + 16 + 2 * i}:{sM + 17 + 2 * i}]")
        a(f"s_cbranch_execz k2_l{i}")
        a(f"buffer_load_dwordx3 {v(REC + 32 + 4 * i, 3)}, v{T + i}, s[{sR}:{sR + 3}], {so} offen offset:192")
        a(f"k2_l{i}:")
    a("s_mov_b64 exec, -1")
    if OPT['pf2']:
        a(f"""
    s_and_b32 s{sTMP}, s2, 31
    s_lshl_b32 s{sTMP}, s{sTMP}, 3
    s_add_u32 s{sTMP}, s{sTMP}, s{sWV}
    s_lshl_b32 s{sTMP}, s{sTMP}, 13
    v_lshl_add_u32 v{vRA}, v0, 7, s{sTMP}
""")
        for i in range(OPT['pf2']):
            if i:
                a(f"v_add_u32 v{vRA}, {1 << 21}, v{vRA}")
            a(f"buffer_load_dword v{WF + i}, v{vRA}, s[{sX}:{sX + 3}], 0 offen")
    a(f"""
    s_add_u32 s{sRND}, s{sRND}, 384
    v_lshrrev_b32 v{T + 8}, 16, v{T + 8}
    v_cmp_lt_u32 vcc, s{sRND}, v{T + 8}
    v_mov_b32 v{vT0}, 16
    v_mov_b32 v{vOFF}, 0
    s_waitcnt lgkmcnt(0)
    s_barrier
    s_cbranch_vccz k2_nomore
    ds_write_b32 v{vOFF}, v{vT0} offset:{FLAG}
k2_nomore:
    s_waitcnt vmcnt({OPT['pf2']})
""")
    stamp(2)
    if OPT['wlate']:
        wloads(vRA)
    for i in range(16):
        a(f"s_mov_b64 exec, s[{sM + 2 * i}:{sM + 2 * i + 1}]")
        if i >= 8:
            a(f"s_cbranch_execz k2_a{i}")
        a(f"v_lshlrev_b32_sdwa v{T + i}, 2, v{REC + 4 * i} {SDWA} src0_sel:DWORD src1_sel:BYTE_0")
        a(f"ds_add_rtn_u32 v{REC + 4 * i + 3}, v{T + i}, v{vT0} offset:{HIST}")
        if i >= 8:
            a(f"k2_a{i}:")
    c = A
    a(f"""
    s_mov_b64 exec, -1
    v_lshlrev_b32 v{vRA}, 4, v0
    s_lshl_b32 s{sTMP}, s{sWV}, 7
    v_lshl_add_u32 v{vT0}, v0, 2, s{sTMP}
    s_waitcnt lgkmcnt(0)
    s_barrier
    ds_read_b128 v[{c}:{c + 3}], v{vRA} offset:{HIST}
    ds_read_b32 v{vCNT}, v{vT0} offset:{HIST}
    ds_read_b32 v{vOFF}, v{vOFF} offset:{FLAG}
    s_waitcnt lgkmcnt(0)
    v_readfirstlane_b32 s{sMORE}, v{vOFF}
""")
    for i in range(4):
        a(f"v_add_u32 v{c + i}, 16, v{c + i}")
        a(f"v_and_b32 v{c + i}, -32, v{c + i}")
    a(f"""
    v_add_u32 v{c + 1}, v{c}, v{c + 1}
    v_add_u32 v{c + 2}, v{c + 1}, v{c + 2}
    v_add_u32 v{c + 3}, v{c + 2}, v{c + 3}
    v_mov_b32 v{vOFF}, v{c + 3}
""")
    wave_scan(a, vOFF)
    a(f"""
    v_readlane_b32 s{sTOT}, v{vOFF}, 63
    v_sub_u32 v{vOFF}, v{vOFF}, v{c + 3}
    s_sub_u32 s{sTOT}, {LDS}, s{sTOT}
    v_add_u32 v{vOFF}, s{sTOT}, v{vOFF}
    v_add_u32 v{c + 3}, v{vOFF}, v{c + 2}
    v_add_u32 v{c + 2}, v{vOFF}, v{c + 1}
    v_add_u32 v{c + 1}, v{vOFF}, v{c}
    v_mov_b32 v{c}, v{vOFF}
    ds_write_b128 v{vRA}, v[{c}:{c + 3}] offset:{BTAB}
    ds_read_b32 v{vRA}, v{vT0} offset:{BTAB}
""")
    for i in range(16):
        a(f"s_mov_b64 exec, s[{sM + 2 * i}:{sM + 2 * i + 1}]")
        if i >= 8:
            a(f"s_cbranch_execz k2_b{i}")
        a(f"ds_read_b32 v{T + i}, v{T + i} offset:{BTAB}")
        if i >= 8:
            a(f"k2_b{i}:")
    a("s_waitcnt lgkmcnt(0)")
    for i in range(16):
        a(f"s_mov_b64 exec, s[{sM + 2 * i}:{sM + 2 * i + 1}]")
        if i >= 8:
            a(f"s_cbranch_execz k2_c{i}")
        a(f"v_add_u32 v{T + i}, v{T + i}, v{REC + 4 * i + 3}")
        a(f"ds_write_b96 v{T + i}, {v(REC + 4 * i, 3)}")
        if i >= 8:
            a(f"k2_c{i}:")
    a(f"""
    s_mov_b64 exec, -1
    s_cmp_eq_u32 s{sWV}, 7
    s_cbranch_scc1 k2_nopad
    v_readlane_b32 s{sTMP}, v{vRA}, 31
    v_readlane_b32 s{sTMP + 1}, v{vRA}, 0
    v_add_u32 v{vOFF}, v{vRA}, v{vCNT}
    v_and_b32 v{vT0}, 16, v{vCNT}
    v_cmp_ne_u32 vcc, 0, v{vT0}
    s_mov_b32 exec_lo, 0
    v_add_u32 v{vOFF}, s{sTMP}, v{vL16}
    s_mov_b32 exec_lo, vcc_lo
    s_mov_b32 exec_hi, {(1 << (2 * PER)) - 1}
    v_mov_b32 v{A}, 0x80000000
    v_mov_b32 v{A + 1}, 0
    v_mov_b32 v{A + 2}, 0
    ds_write_b96 v{vOFF}, v[{A}:{A + 2}]
    s_mov_b64 exec, -1
    v_add_u32 v{vCNT}, 16, v{vCNT}
    v_lshrrev_b32 v{vCNT}, 5, v{vCNT}
    v_lshrrev_b32 v{vRA}, 5, v0
    v_lshlrev_b32 v{vRA}, 4, v{vRA}
    v_add_u32 v{vRA}, s{sTMP + 1}, v{vRA}
k2_nopad:
    s_waitcnt lgkmcnt(0)
    s_barrier
""")
    stamp(3)
    a(f"""
    s_cmp_lg_u32 s{sWV}, 7
    s_cbranch_scc1 k2_main
    s_cmp_eq_u32 s{sMORE}, 0
    s_cbranch_scc1 k2_done
""")
    zero_hist()
    a("s_branch k2_done")
    a("k2_main:")
    for r in range(PER):
        a(f"ds_read_b128 {v(REC + 4 * r, 4)}, v{vRA} offset:{r * 32}")
    a(f"v_add_u32 v{vRA}, {PER * 32}, v{vRA}")
    a(f"s_mov_b32 s{sPH}, 0")
    for r in range(PER - 1):
        a(f"s_waitcnt lgkmcnt({PER - 1 - r})")
        a(f"v_and_or_b32 v{vOFF}, v{REC + 4 * r}, s{sMSK}, v{vL16}")
        a(f"buffer_load_dwordx4 {v(DATA + 4 * r, 4)}, v{vOFF}, s[{sX}:{sX + 3}], 0 offen")
    a("s_branch k2_h7_0")
    for sl in range(7):
        for r in range(PER):
            rp = (r - 1) % PER
            a(f"""
k2_h{sl}_{r}:
    s_sub_u32 s{sC + sl}, s{sC + sl}, 1
    s_cbranch_scc1 k2_h{sl + 1}_{r}
    s_waitcnt lgkmcnt(0)
    v_and_or_b32 v{vOFF}, v{REC + 4 * rp}, s{sMSK}, v{vL16}
    buffer_load_dwordx4 {v(DATA + 4 * rp, 4)}, v{vOFF}, s[{sX}:{sX + 3}], 0 offen
""")
            for i in range(4):
                a(f"v_perm_b32 v{A + i}, v{REC + 4 * r + 2}, v{REC + 4 * r + 1}, v{SEL + i}")
            a(f"ds_read_b128 {v(REC + 4 * r, 4)}, v{vRA} offset:{r * 32}")
            if r == PER - 1:
                a(f"v_add_u32 v{vRA}, {PER * 32}, v{vRA}")
            a(f"s_waitcnt vmcnt({PER - 1})")
            a(f"v_mfma_f32_32x32x16_bf16 {v(ACC + 16 * sl, 16)}, {v(A, 4)}, {v(DATA + 4 * r, 4)}, {v(ACC + 16 * sl, 16)}")
            if r == PER - 1:
                a(f"s_branch k2_h{sl}_0")
    for r in range(PER):
        a(f"""
k2_h7_{r}:
    s_cmp_eq_u32 s{sPH}, 32
    s_cbranch_scc1 k2_done
""")
        for sl in range(7):
            a(f"v_readlane_b32 s{sC + sl}, v{vCNT}, s{sPH}")
            a(f"s_add_u32 s{sPH}, s{sPH}, {1 if sl < 6 else 2}")
        a(f"s_branch k2_h0_{r}")
    a(f"""
k2_done:
    s_waitcnt vmcnt(0) lgkmcnt(0)
    v_add_u32 v{vIDX}, 384, v{vIDX}
    s_cmp_lg_u32 s{sMORE}, 0
    s_cbranch_scc1 k2_round
""")
    stamp(4)
    a(f"""
    s_cmp_ge_u32 s{sTOT}, {SEND}
    s_cbranch_scc1 k2_nob3
    s_barrier
k2_nob3:
    s_cmp_eq_u32 s{sWV}, 7
    s_cbranch_scc1 k2_nos
    s_mul_i32 s{sTMP}, s{sWV}, {ROW}
    v_lshl_add_u32 v{vOFF}, v0, 3, s{sTMP}
    v_add_u32 v{vT0}, {4 * 7 * ROW}, v{vOFF}
""")
    k = 0
    for sl in range(7):
        for q in range(4):
            t = REC + 2 * (k % 16)
            k += 1
            b = ACC + 16 * sl + 4 * q
            a(f"v_cvt_pk_bf16_f32 v{t}, v{b}, v{b + 1}")
            a(f"v_cvt_pk_bf16_f32 v{t + 1}, v{b + 2}, v{b + 3}")
            if sl < 4:
                a(f"ds_write_b64 v{vOFF}, {v(t, 2)} offset:{sl * 7 * ROW + q * 512}")
            else:
                a(f"ds_write_b64 v{vT0}, {v(t, 2)} offset:{(sl - 4) * 7 * ROW + q * 512}")
    a(f"""
k2_nos:
    s_lshr_b32 s{sTMP}, s{sWV}, 2
    s_lshl_b32 s{sTMP}, s{sTMP}, 5
    v_and_b32 v{vT0}, 15, v0
    v_add_u32 v{vT0}, s{sTMP}, v{vT0}
    v_mul_u32_u24 v{vRA}, {ROW}, v{vT0}
    v_and_b32 v{vOFF}, 48, v0
    v_add_u32 v{vRA}, v{vRA}, v{vOFF}
    s_and_b32 s{sTMP}, s{sWV}, 3
    s_lshl_b32 s{sTMP}, s{sTMP}, 5
    s_lshl_b32 s{sTMP + 1}, s2, 9
    s_add_u32 s{sTMP}, s{sTMP}, s{sTMP + 1}
    v_lshrrev_b32 v{vOFF}, 1, v{vOFF}
    v_lshl_add_u32 v{vOFF}, v{vT0}, 17, v{vOFF}
    v_add_u32 v{vOFF}, s{sTMP}, v{vOFF}
    v_add_u32 v{vT0}, {16 << 17}, v{vOFF}
    s_mov_b32 s{sTMP + 1}, 0xbfb8aa3b
    s_waitcnt lgkmcnt(0)
    s_barrier
""")
    stamp(5)
    terms = {0: [(0, 0, 0), (1, 1, 1), (1, 2, 2), (1, 3, 3)],
             1: [(3, 0, 1), (2, 1, 0), (4, 2, 3), (5, 3, 2)],
             2: [(3, 0, 2), (2, 2, 0), (4, 3, 1), (5, 1, 3)],
             3: [(3, 0, 3), (2, 3, 0), (4, 1, 2), (5, 2, 1)]}
    seq = []
    for tile in range(2):
        for ti in range(4):
            for h in range(2):
                for o in range(4):
                    t, q, b = terms[o][ti]
                    seq.append((tile, o, t, q, b, h, ti == 0 and h == 0))
    NB, AH = 24, 12
    BB = 160
    OA = 64
    def rd(i):
        tile, o, t, q, b, h, first = seq[i]
        a(f"ds_read_b128 {v(BB + 4 * (i % NB), 4)}, v{vRA} offset:{tile * 16 * ROW + q * 512 + h * 256 + b * 64}")

    def finish(tile):
        o0 = OA + 16 * tile
        g = REC + 8 * tile
        for i in range(4):
            a(f"v_mul_f32 v{g + i}, s{sTMP + 1}, v{o0 + i}")
        for i in range(4):
            a(f"v_exp_f32 v{g + i}, v{g + i}")
        for i in range(4):
            a(f"v_add_f32 v{g + i}, 1.0, v{g + i}")
        for i in range(4):
            a(f"v_rcp_f32 v{g + i}, v{g + i}")
        vo = vOFF if tile == 0 else vT0
        a(f"v_cvt_pk_bf16_f32 v{o0}, v{o0}, v{o0 + 1}")
        a(f"v_cvt_pk_bf16_f32 v{o0 + 1}, v{o0 + 2}, v{o0 + 3}")
        a(f"buffer_store_dwordx2 {v(o0, 2)}, v{vo}, s[{sO}:{sO + 3}], 0 offen")
        for o in range(1, 4):
            b = o0 + 4 * o
            for i in range(4):
                a(f"v_mul_f32 v{b + i}, v{b + i}, v{g + i}")
            a(f"v_cvt_pk_bf16_f32 v{b}, v{b}, v{b + 1}")
            a(f"v_cvt_pk_bf16_f32 v{b + 1}, v{b + 2}, v{b + 3}")
            a(f"buffer_store_dwordx2 {v(b, 2)}, v{vo}, s[{sO}:{sO + 3}], 0 offen offset:{128 * o}")

    for i in range(AH):
        rd(i)
    for i in range(64):
        tile, o, t, q, b, h, first = seq[i]
        if i + AH < 64:
            rd(i + AH)
        a(f"s_waitcnt lgkmcnt({min(AH, 63 - i)})")
        d = v(OA + 16 * tile + 4 * o, 4)
        a(f"v_mfma_f32_16x16x32_bf16 {d}, {v(WF + 4 * (2 * t + h), 4)}, {v(BB + 4 * (i % NB), 4)}, {'0' if first else d}")
        if i == 39:
            finish(0)
    finish(1)
    if OPT['stamps']:
        stamp(6)
        a(f"""
    s_load_dwordx2 s[{sX}:{sX + 1}], s[0:1], 88
    s_waitcnt vmcnt(0) lgkmcnt(0)
    s_memrealtime s[{sC}:{sC + 1}]
    s_lshl_b32 s{sTMP}, s2, 3
    s_add_u32 s{sTMP}, s{sTMP}, s{sWV}
    s_lshl_b32 s{sTMP}, s{sTMP}, 6
    s_add_u32 s{sTMP}, s{sTMP}, 0xB00000
    v_mov_b32 v{vOFF}, s{sTMP}
    s_waitcnt lgkmcnt(0)
""")
        for i in range(7):
            a(f"v_mov_b32 v{8 + 2 * i}, s{88 + 2 * i}")
            a(f"v_mov_b32 v{9 + 2 * i}, s{89 + 2 * i}")
        a(f"v_mov_b32 v22, s{sC}")
        a(f"v_mov_b32 v23, s{sC + 1}")
        a("s_mov_b64 exec, 1")
        for i in range(4):
            a(f"global_store_dwordx4 v{vOFF}, {v(8 + 4 * i, 4)}, s[{sX}:{sX + 1}] offset:{16 * i}")
    a("""
k2_end:
    s_endpgm
""")
    return a.lines, LDS


def main():
    out = sys.argv[1] if len(sys.argv) > 1 else f"cdna_kernels/{NAME}.s"
    ref = open(f"cdna_kernels/{NAME}.s.ref").read().split('\n')
    hdr = [l for l in ref if l.startswith(';') and '@launch' not in l and 'Override' not in l and 'grid=ceil' not in l]
    k1, lds1 = gen_k1()
    k2, lds2 = gen_k2()
    k1, n1 = pad_hazards(k1, OPT.get('verbose', 0))
    k2, n2 = pad_hazards(k2, OPT.get('verbose', 0))
    txt = hdr + [
        f"; @launch kernel=k1_kernel grid=(256,1,1) block=(832,1,1) lds={lds1}",
        f"; @launch kernel=k2_kernel grid=(256,1,1) block=(512,1,1) lds={lds2}",
        '.amdgcn_target "amdgcn-amd-amdhsa--gfx950"', '.text']
    for nm, body in (("k1_kernel", k1), ("k2_kernel", k2)):
        txt += [f".globl {nm}", ".p2align 8", f".type {nm},@function"] + body
    txt += ['.section .rodata,"a"']
    for nm, vg in (("k1_kernel", 52), ("k2_kernel", 256)):
        txt += [".p2align 6", f".amdhsa_kernel {nm}",
                f"  .amdhsa_next_free_vgpr {vg}", "  .amdhsa_next_free_sgpr 102",
                f"  .amdhsa_accum_offset {vg}", "  .amdhsa_group_segment_fixed_size 0",
                "  .amdhsa_kernarg_size 96", "  .amdhsa_user_sgpr_count 2",
                "  .amdhsa_user_sgpr_kernarg_segment_ptr 1", "  .amdhsa_system_sgpr_workgroup_id_x 1",
                ".end_amdhsa_kernel"]
    open(out, 'w').write('\n'.join(txt) + '\n')
    print(f"wrote {out}: pads k1={n1} k2={n2}, lines {len(txt)}")


main()
```

```python
import sys
from asmlib import Asm, v, s, pad_hazards

NAME = "gather_scatter__tensor_product_equiv_equiformer__graph"
OPT = dict(stamps=0, k1nt=3, k1sc=1, pf1=1, pf3=0, wpos=0, osc=0)
for a in sys.argv[2:]:
    k, val = a.split('=')
    OPT[k] = int(val, 0)

N = 12500
NCH = 250
CH = 3200
META_OFF = 0x640000
TBL_OFF = 0xA00000
WF_OFF = 0xA80000
WS_SIZE = 0xB00000
SDWA = "dst_sel:DWORD dst_unused:UNUSED_PAD"


def wave_scan(a, r):
    for m in ("row_shr:1", "row_shr:2", "row_shr:4", "row_shr:8"):
        a(f"v_add_u32_dpp {v(r)}, {v(r)}, {v(r)} {m} row_mask:0xf bank_mask:0xf")
    a(f"v_add_u32_dpp {v(r)}, {v(r)}, {v(r)} row_bcast:15 row_mask:0xa bank_mask:0xf")
    a(f"v_add_u32_dpp {v(r)}, {v(r)}, {v(r)} row_bcast:31 row_mask:0xc bank_mask:0xf")


def gen_k1():
    a = Asm()
    MB = CH * 8
    HIST = CH * 12
    BASE = HIST + 1024

    def stamp(i):
        return f"s_memrealtime s[{88 + 2 * i}:{89 + 2 * i}]" if OPT['stamps'] else ""
    NT = " nt" if OPT['k1nt'] & 1 else ""
    NT2 = " nt" if OPT['k1nt'] & 2 else ""
    SC = {0: "", 1: " sc1", 2: " sc0 sc1", 3: " nt"}[OPT['k1sc']]
    P1 = 1 if OPT['pf1'] == 1 else 0

    def pf(i):
        if OPT['pf1'] != i:
            return ""
        return f"""
    s_mul_i32 s19, s2, {200 * 128}
    v_min_u32 v48, 199, v0
    v_lshl_add_u32 v48, v48, 7, s19
    global_load_dword v48, v48, s[22:23]
"""
    a(f"""
k1_kernel:
    s_cmp_ge_u32 s2, {NCH}
    s_cbranch_scc1 k1_wb
    {stamp(0)}
    s_load_dwordx8 s[4:11], s[0:1], 8
    s_load_dwordx2 s[12:13], s[0:1], 88
    s_load_dwordx2 s[22:23], s[0:1], 0
    s_mul_i32 s14, s2, {CH * 4}
    s_mul_i32 s15, s2, {CH * 2}
    s_mul_i32 s16, s2, {CH * 6}
    v_lshlrev_b32 v1, 4, v0
    v_add_u32 v1, s14, v1
    v_lshlrev_b32 v2, 3, v0
    v_add_u32 v2, s15, v2
    v_mul_u32_u24 v3, 24, v0
    v_add_u32 v3, s16, v3
    v_cmp_gt_u32 vcc, {CH // 4}, v0
    s_mov_b64 s[20:21], vcc
    s_mov_b64 exec, vcc
    s_waitcnt lgkmcnt(0)
    global_load_dwordx4 v[4:7], v1, s[10:11]{NT}
    global_load_dwordx2 v[12:13], v2, s[6:7]{NT}
    global_load_dwordx4 v[14:17], v3, s[4:5]{NT2}
    global_load_dwordx2 v[18:19], v3, s[4:5] offset:16{NT2}
    global_load_dwordx4 v[8:11], v1, s[8:9]{NT}
    {pf(1)}
    v_cmp_gt_u32 vcc, 256, v0
    s_mov_b64 exec, vcc
    v_lshlrev_b32 v1, 2, v0
    v_mov_b32 v2, 0
    ds_write_b32 v1, v2 offset:{HIST}
    s_mov_b64 exec, s[20:21]
    v_mov_b32 v2, 4
    v_and_b32 v3, 3, v0
    v_lshlrev_b32 v3, 12, v3
    s_mov_b32 s17, 0xffff0000
    s_mov_b32 s18, 5497558
    s_movk_i32 s19, 12288
    s_waitcnt lgkmcnt(0)
    s_barrier
    s_waitcnt vmcnt({4 + P1})
    {stamp(1)}
""")
    for i in range(4):
        a(f"v_lshlrev_b32_sdwa v{20 + i}, 2, v{4 + i} {SDWA} src0_sel:DWORD src1_sel:BYTE_0")
        a(f"ds_add_rtn_u32 v{24 + i}, v{20 + i}, v2 offset:{HIST}")
    for i in range(4):
        a(f"v_cmp_le_u32 vcc, s19, v{4 + i}")
        a(f"v_and_b32 v{4 + i}, 0x3f00, v{4 + i}")
        a(f"v_cndmask_b32 v1, 0, v3, vcc")
        a(f"v_lshl_or_b32 v{4 + i}, v{4 + i}, 2, v1")
    a("s_waitcnt lgkmcnt(0)")
    a("s_barrier")
    a(f"""
    s_mov_b64 exec, -1
    v_and_b32 v1, 63, v0
    v_lshlrev_b32 v1, 4, v1
    ds_read_b128 v[36:39], v1 offset:{HIST}
    s_waitcnt lgkmcnt(0)
    v_add_u32 v41, v36, v37
    v_add_u32 v42, v41, v38
    v_add_u32 v3, v42, v39
    v_mov_b32 v43, v3
""")
    wave_scan(a, 3)
    a(f"""
    v_sub_u32 v40, v3, v43
    v_add_u32 v43, v40, v42
    v_add_u32 v42, v40, v41
    v_add_u32 v41, v40, v36
    ds_write_b128 v1, v[40:43] offset:{BASE}
    s_mov_b64 exec, s[20:21]
""")
    for i in range(4):
        a(f"ds_read_b32 v{20 + i}, v{20 + i} offset:{BASE}")
    for i in range(4):
        a(f"v_lshl_or_b32 v{36 + i}, v{36 + i}, 16, v{40 + i}")
    a(f"s_waitcnt vmcnt({1 + P1})")
    a(stamp(2))

    def unpack(dst, reg, hi):
        if hi:
            a(f"v_and_b32 v{dst}, s17, v{reg}")
        else:
            a(f"v_lshlrev_b32 v{dst}, 16, v{reg}")
    for i in range(4):
        unpack(44, 12 + i // 2, i & 1)
        for j in range(3):
            hw = 3 * i + j
            unpack(45 + j, 14 + hw // 2, hw & 1)
        for j in range(3):
            a(f"v_mul_f32 v{45 + j}, v44, v{45 + j}")
        a(f"v_cvt_pk_bf16_f32 v{28 + 2 * i}, v44, v45")
        a(f"v_cvt_pk_bf16_f32 v{29 + 2 * i}, v46, v47")
        if i == 0:
            a("s_waitcnt lgkmcnt(0)")
        a(f"v_add_u32 v{20 + i}, v{20 + i}, v{24 + i}")
        a(f"v_lshlrev_b32 v{24 + i}, 1, v{20 + i}")
        a(f"ds_write_b64 v{24 + i}, {v(28 + 2 * i, 2)}")
    a(f"s_waitcnt vmcnt({P1})")
    for i in range(4):
        a(f"v_mul_hi_u32_u24 v2, s18, v{8 + i}")
        a(f"v_lshl_or_b32 v2, v2, 6, v{4 + i}")
        a(f"v_lshl_or_b32 v{4 + i}, v{8 + i}, 16, v2")
        a(f"ds_write_b32 v{20 + i}, v{4 + i} offset:{MB}")
    a(f"""
    v_lshlrev_b32 v8, 4, v0
    s_mul_i32 s14, s2, {CH * 8}
    s_mul_i32 s15, s2, {CH * 4}
    s_add_u32 s15, s15, {META_OFF}
    v_add_u32 v2, s14, v8
    v_add_u32 v3, {CH * 4}, v2
    v_add_u32 v20, s15, v8
    v_cmp_gt_u32 vcc, 64, v0
    s_cbranch_vccz k1_notbl
    s_lshl_b32 s14, s2, 10
    s_add_u32 s14, s14, {TBL_OFF}
    v_add_u32 v1, s14, v1
    global_store_dwordx4 v1, v[36:39], s[12:13]{SC}
k1_notbl:
    s_waitcnt lgkmcnt(0)
    s_barrier
    {stamp(3)}
    ds_read_b128 v[12:15], v8 offset:{MB}
    ds_read_b128 v[4:7], v8
    ds_read_b128 v[8:11], v8 offset:{CH * 4}
    {pf(2)}
    s_waitcnt lgkmcnt(2)
    global_store_dwordx4 v20, v[12:15], s[12:13]{SC}
    s_waitcnt lgkmcnt(1)
    global_store_dwordx4 v2, v[4:7], s[12:13]{SC}
    s_waitcnt lgkmcnt(0)
    global_store_dwordx4 v3, v[8:11], s[12:13]{SC}
""")
    if OPT['stamps']:
        a(f"""
    s_waitcnt vmcnt(0)
    {stamp(4)}
    v_cmp_eq_u32 vcc, 0, v0
    s_mov_b64 exec, vcc
    s_cbranch_execz k1_nost
    s_lshl_b32 s14, s2, 6
    s_add_u32 s14, s14, 0xB20000
    v_mov_b32 v1, s14
    s_waitcnt lgkmcnt(0)
""")
        for i in range(10):
            a(f"v_mov_b32 v{4 + i}, s{88 + i}")
        a("""
    global_store_dwordx4 v1, v[4:7], s[12:13]
    global_store_dwordx4 v1, v[8:11], s[12:13] offset:16
    global_store_dwordx2 v1, v[12:13], s[12:13] offset:32
k1_nost:
""")
    a(f"""
    s_endpgm
k1_wb:
    s_cmp_ge_u32 s2, {NCH + 6}
    s_cbranch_scc1 k1_end
    v_cmp_gt_u32 vcc, 512, v0
    s_cbranch_vccz k1_end
    s_sub_u32 s3, s2, {NCH}
    s_load_dwordx2 s[4:5], s[0:1], 40
    s_load_dwordx2 s[12:13], s[0:1], 88
    s_min_u32 s3, s3, 4
    s_cmp_ge_u32 s3, 2
    s_cbranch_scc1 k1_wb1
    s_load_dwordx2 s[6:7], s[0:1], 48
    s_lshl_b32 s9, s3, 13
    s_branch k1_wb2
k1_wb1:
    s_load_dwordx2 s[6:7], s[0:1], 56
    s_sub_u32 s9, s3, 2
    s_lshl_b32 s9, s9, 13
k1_wb2:
    s_lshl_b32 s8, s3, 7
    s_mov_b32 s17, 0xffff0000
    v_bfe_u32 v1, v0, 4, 3
    v_bfe_u32 v2, v0, 6, 1
    v_lshlrev_b32 v1, 3, v1
    v_lshrrev_b32 v3, 7, v0
    v_and_b32 v4, 15, v0
    v_lshl_add_u32 v4, v3, 4, v4
    v_lshlrev_b32 v4, 1, v4
    v_lshl_add_u32 v4, v1, 7, v4
    v_add_u32 v4, s9, v4
    v_lshlrev_b32 v1, 1, v1
    v_add_u32 v1, s8, v1
    s_waitcnt lgkmcnt(0)
""")
    for j in range(8):
        a(f"global_load_ushort v{8 + j}, v4, s[6:7] offset:{j * 128}")
    a(f"""
    global_load_dwordx4 v[16:19], v1, s[4:5]
    v_mul_u32_u24 v3, 10, v3
    v_add_u32 v3, v3, v2
    s_lshl_b32 s3, s3, 1
    v_add_u32 v3, s3, v3
    v_and_b32 v2, 63, v0
    v_lshl_add_u32 v3, v3, 6, v2
    v_lshlrev_b32 v3, 4, v3
    v_add_u32 v3, {WF_OFF}, v3
    s_waitcnt vmcnt(0)
""")
    for j in range(8):
        a(f"v_lshlrev_b32 v{8 + j}, 16, v{8 + j}")
        unpack(5, 16 + j // 2, j & 1)
        a(f"v_mul_f32 v{8 + j}, v{8 + j}, v5")
    for j in range(4):
        a(f"v_cvt_pk_bf16_f32 v{20 + j}, v{8 + 2 * j}, v{9 + 2 * j}")
    a(f"""
    global_store_dwordx4 v3, v[20:23], s[12:13]
    v_cmp_gt_u32 vcc, 256, v0
    s_cbranch_vccz k1_end
    s_lshl_b32 s14, s2, 10
    s_add_u32 s14, s14, {TBL_OFF}
    v_lshl_add_u32 v1, v0, 2, s14
    v_mov_b32 v2, 0
    global_store_dword v1, v2, s[12:13]
k1_end:
    s_endpgm
""")
    return a.lines, CH * 12 + 2048


def gen_k2():
    a = Asm()
    LDS = 163840
    HIST, BTAB, FLAG = 0, 1024, 2048
    CB = 98304
    ROW = 1440
    SEND = 52 * ROW
    vL16, vP2, TM, A, BT, M, WF, DA, DB, ACC = 0, 1, 2, 4, 8, 16, 24, 64, 96, 128
    LANE = 2
    META, IDX, BIN, RANK = 64, 80, 96, 112
    sX, sW, sO = 4, 8, 12
    sWV, sRND, sMORE, sTOT = 16, 17, 18, 19
    sP0, sE0, sP1, sE1, sNX, sNT = 20, 21, 22, 23, 24, 25
    sLO, sHI, s512, sZI, sCB, sMSK = 26, 27, 28, 29, 30, 31
    sT = 32
    sM = 40
    X = f"s[{sX}:{sX + 3}]"
    W = f"s[{sW}:{sW + 3}]"
    O = f"s[{sO}:{sO + 3}]"
    PF = OPT['pf3']
    OSC = {0: "", 1: " sc1", 2: " sc0 sc1", 3: " nt"}[OPT['osc']]

    def stamp(i):
        if OPT['stamps']:
            a(f"s_memrealtime s[{88 + 2 * i}:{89 + 2 * i}]")

    def m1(i):
        return f"s[{sM + 4 * i}:{sM + 4 * i + 1}]"

    def m2(i):
        return f"s[{sM + 4 * i + 2}:{sM + 4 * i + 3}]"

    a(f"""
k2_kernel:
    s_cmp_ge_u32 s2, 256
    s_cbranch_scc1 k2_end
""")
    stamp(0)
    a(f"""
    s_load_dwordx2 s[{sW}:{sW + 1}], s[0:1], 88
    s_load_dwordx2 s[{sX}:{sX + 1}], s[0:1], 0
    s_load_dwordx2 s[{sO}:{sO + 1}], s[0:1], 72
    s_and_b32 s3, s2, 7
    s_lshr_b32 s2, s2, 3
    s_lshl_b32 s3, s3, 5
    s_or_b32 s2, s2, s3
    v_lshrrev_b32 v3, 6, v0
    v_and_b32 v{LANE}, 63, v0
    v_readfirstlane_b32 s{sWV}, v3
    s_mov_b32 s{sX + 2}, {N * 512}
    s_mov_b32 s{sX + 3}, 0x00020000
    s_mov_b32 s{sW + 2}, {WS_SIZE}
    s_mov_b32 s{sW + 3}, 0x00020000
    s_mov_b32 s{sO + 2}, {N * 512}
    s_mov_b32 s{sO + 3}, 0x00020000
    s_mov_b32 s{sRND}, 0
k2_round:
    v_lshrrev_b32 v3, 4, v{LANE}
    s_lshl_b32 s{sT}, s{sWV}, 5
    v_add_u32 v3, s{sT}, v3
    s_lshl_b32 s{sT}, s2, 2
    v_lshl_add_u32 v8, v3, 10, s{sT}
    s_mov_b32 s{sT}, {TBL_OFF}
    s_waitcnt lgkmcnt(0)
""")
    for i in range(8):
        if i:
            a(f"s_add_u32 s{sT}, s{sT}, 4096")
        a(f"buffer_load_dword v{M + i}, v8, {W}, s{sT} offen")
    a(f"""
    s_lshl_b32 s{sT}, s{sWV}, 10
    v_lshl_add_u32 v8, v{LANE}, 4, s{sT}
    v_mov_b32 v4, -1
    v_mov_b32 v5, -1
    v_mov_b32 v6, -1
    v_mov_b32 v7, -1
    v_add_u32 v9, {CB - 40960}, v8
    v_lshrrev_b32 v8, 2, v8
    v_mov_b32 v12, 0
    v_mov_b32 v13, 0
    ds_write_b32 v8, v12 offset:{HIST}
""")
    for i in range(5):
        a(f"ds_write_b128 v9, v[4:7] offset:{8192 * i}")
    a(f"""
    s_mov_b64 exec, 1
    v_mov_b32 v8, {LDS - 8}
    ds_write_b32 v12, v12 offset:{FLAG}
    ds_write_b64 v8, v[12:13]
    s_mov_b64 exec, -1
    v_and_b32 v{vL16}, 15, v{LANE}
    v_lshl_add_u32 v10, v{vL16}, 3, s{sRND}
    v_add_u32 v11, 4, v10
    v_mul_u32_u24 v9, {CH * 4}, v3
    v_add_u32 v9, v9, v10
    v_lshlrev_b32 v{vL16}, 4, v{vL16}
    v_lshrrev_b32 v{vP2}, 2, v{LANE}
    v_lshlrev_b32 v{vP2}, 3, v{vP2}
    v_lshl_or_b32 v{vP2}, v{LANE}, 30, v{vP2}
    v_lshl_add_u32 v{IDX}, v{LANE}, 1, s{sT}
    v_and_b32 v15, 3, v{LANE}
    v_cmp_eq_u32 vcc, 3, v15
    v_mov_b32 v15, 0x7f
    v_mov_b32 v14, 4
    v_cndmask_b32 v15, 0, v15, vcc
    s_mov_b32 s{sLO}, 0x05040100
    s_mov_b32 s{sHI}, 0x07060302
    s_movk_i32 s{s512}, 512
    s_movk_i32 s{sZI}, 8191
    s_mov_b32 s{sCB}, {CB}
    s_mov_b32 s{sMSK}, 0xffffc000
""")
    for j in range(1, 16):
        a(f"v_add_u32 v{IDX + j}, {(j >> 1) * 128 + (j & 1)}, v{IDX}")
    a(f"""
    s_lshl_b32 s{sT + 2}, s{sWV}, 13
    s_add_u32 s{sT + 2}, s{sT + 2}, {CB}
    s_mov_b32 s{sT}, {META_OFF}
    s_mov_b32 s{sT + 1}, 0
""")
    for i in range(8):
        a(f"s_waitcnt vmcnt({7 - i + i})")
        if i == 0:
            stamp(1)
        a(f"v_cmp_lt_u32_sdwa {m1(i)}, v10, v{M + i} src0_sel:DWORD src1_sel:WORD_1")
        a(f"v_add_u32_sdwa v{BIN + i}, v9, v{M + i} {SDWA} src0_sel:DWORD src1_sel:WORD_0")
        a(f"v_cmp_lt_u32_sdwa {m2(i)}, v11, v{M + i} src0_sel:DWORD src1_sel:WORD_1")
        a(f"s_mov_b64 exec, {m1(i)}")
        a(f"buffer_load_dwordx2 {v(META + 2 * i, 2)}, v{BIN + i}, {W}, s{sT} offen")
        a(f"s_mov_b64 exec, -1")
        if i < 7:
            a(f"s_add_u32 s{sT}, s{sT}, {4 * CH * 4}")
    for i in range(8):
        a(f"v_lshlrev_b32 v{BIN + i}, 1, v{BIN + i}")
    a(f"""
    v_max3_u32 v8, v{M}, v{M + 1}, v{M + 2}
    v_max3_u32 v9, v{M + 3}, v{M + 4}, v{M + 5}
    v_max3_u32 v8, v8, v{M + 6}, v{M + 7}
    v_max_u32 v8, v8, v9
""")
    for i in range(8):
        a(f"s_mov_b32 m0, s{sT + 2}")
        a(f"s_mov_b64 exec, {m1(i)}")
        a(f"buffer_load_dwordx4 v{BIN + i}, {W}, s{sT + 1} offen lds")
        if i < 7:
            a(f"s_add_u32 s{sT + 1}, s{sT + 1}, {4 * CH * 8}")
            a(f"s_add_u32 s{sT + 2}, s{sT + 2}, 1024")

    def wloads():
        a(f"""
    s_and_b32 s{sT}, s{sWV}, 3
    s_mul_i32 s{sT}, s{sT}, {10 * 1024}
    s_add_u32 s{sT}, s{sT}, {WF_OFF}
""")
        for f in range(10):
            if f % 4 == 0 and f:
                a(f"s_add_u32 s{sT}, s{sT}, 4096")
            a(f"buffer_load_dwordx4 {v(WF + 4 * f, 4)}, v9, {W}, s{sT} offen offset:{(f % 4) * 1024}")
    WB = 10 if OPT['wpos'] == 0 else 0
    a(f"""
    s_mov_b64 exec, -1
    s_add_u32 s{sT}, s{sRND}, 128
    v_lshrrev_b32 v8, 16, v8
    v_cmp_lt_u32 vcc, s{sT}, v8
    v_lshlrev_b32 v9, 4, v{LANE}
    s_waitcnt lgkmcnt(0)
    s_barrier
    s_cbranch_vccz k2_nomore
    ds_write_b32 v12, v14 offset:{FLAG}
k2_nomore:
""")
    if OPT['wpos'] == 0:
        wloads()
    a(f"""
    s_cmp_lg_u32 s{sRND}, 0
    s_cbranch_scc1 k2_noz
""")
    for i in range(64):
        a(f"v_mov_b64 {v(ACC + 2 * i, 2)}, 0")
    a("k2_noz:")
    for i in range(8):
        a(f"s_waitcnt vmcnt({15 - i + WB})")
        if i == 7:
            stamp(2)
        a(f"s_mov_b64 exec, {m1(i)}")
        for p in range(2):
            j = 2 * i + p
            a(f"v_bfe_u32 v{BIN + j}, v{META + j}, 4, 10")
        a(f"ds_add_rtn_u32 v{RANK + 2 * i}, v{BIN + 2 * i}, v14 offset:{HIST}")
        for p in range(2):
            j = 2 * i + p
            a(f"v_and_or_b32 v{META + j}, v{META + j}, s{sMSK}, v{IDX + j}")
        a(f"s_mov_b64 exec, {m2(i)}")
        a(f"ds_add_rtn_u32 v{RANK + 2 * i + 1}, v{BIN + 2 * i + 1}, v14 offset:{HIST}")
    a("s_mov_b64 exec, -1")
    if OPT['wpos'] == 1:
        wloads()
    if PF:
        a(f"""
    s_and_b32 s{sT}, s2, 31
    s_lshl_b32 s{sT}, s{sT}, 3
    s_add_u32 s{sT}, s{sT}, s{sWV}
    s_lshl_b32 s{sT}, s{sT}, 13
    v_lshl_add_u32 v8, v{LANE}, 7, s{sT}
""")
        for i in range(PF):
            if i:
                a(f"v_add_u32 v8, {1 << 21}, v8")
            a(f"buffer_load_dword v{IDX + i}, v8, {X}, 0 offen")
    a(f"""
    s_lshl_b32 s{sT}, s{sWV}, 3
    s_add_u32 s{sT + 1}, s{sT}, 4
    s_add_u32 s{sT + 2}, s{sT}, 7
    s_waitcnt lgkmcnt(0)
    s_barrier
    ds_read_b128 v[4:7], v9 offset:{HIST}
    ds_read_b32 v8, v12 offset:{FLAG}
    s_waitcnt lgkmcnt(1)
    v_add_u32 v5, v4, v5
    v_add_u32 v6, v5, v6
    v_add_u32 v7, v6, v7
    v_add_u32_dpp v10, v7, v7 quad_perm:[1,0,3,2] row_mask:0xf bank_mask:0xf
    v_add_u32_dpp v10, v10, v10 quad_perm:[2,3,0,1] row_mask:0xf bank_mask:0xf
    v_sub_u32 v10, 0, v10
    v_and_b32 v10, v15, v10
    v_add_u32 v7, v7, v10
    v_mov_b32 v10, v7
""")
    wave_scan(a, 10)
    a(f"""
    v_readlane_b32 s{sTOT}, v10, 63
    v_readlane_b32 s{sE1}, v10, s{sT + 2}
    v_sub_u32 v10, v10, v7
    s_sub_u32 s{sTOT}, {CB}, s{sTOT}
    v_add_u32 v10, s{sTOT}, v10
    v_add_u32 v7, v10, v6
    v_add_u32 v6, v10, v5
    v_add_u32 v5, v10, v4
    v_mov_b32 v4, v10
    ds_write_b128 v9, v[4:7] offset:{BTAB}
    s_add_u32 s{sE1}, s{sE1}, s{sTOT}
    v_readlane_b32 s{sP0}, v10, s{sT}
    v_readlane_b32 s{sP1}, v10, s{sT + 1}
    s_waitcnt lgkmcnt(1)
    v_readfirstlane_b32 s{sMORE}, v8
""")
    for i in range(8):
        a(f"s_mov_b64 exec, {m1(i)}")
        for p in range(2):
            j = 2 * i + p
            a(f"ds_read_b32 v{BIN + j}, v{BIN + j} offset:{BTAB}")
    a(f"s_mov_b32 s{sE0}, s{sP1}")
    for i in range(8):
        a(f"s_mov_b64 exec, {m1(i)}")
        a(f"s_waitcnt lgkmcnt(14)")
        for p in range(2):
            j = 2 * i + p
            a(f"v_add_u32 v{BIN + j}, v{BIN + j}, v{RANK + j}")
        a(f"ds_write_b32 v{BIN + 2 * i}, v{META + 2 * i}")
        a(f"s_mov_b64 exec, {m2(i)}")
        a(f"ds_write_b32 v{BIN + 2 * i + 1}, v{META + 2 * i + 1}")
    a(f"""
    s_mov_b64 exec, -1
    s_cmp_lt_u32 s{sP0}, s{sE0}
    s_cselect_b32 s{sNT}, 0, 1
    s_cselect_b32 s{sNX}, s{sP0}, s{sP1}
    s_cselect_b32 s{sT}, 128, 0
    s_add_u32 s{sP0}, s{sP0}, s{sT}
    s_sub_u32 s{sT}, 128, s{sT}
    s_add_u32 s{sP1}, s{sP1}, s{sT}
    s_waitcnt vmcnt({10 + PF}) lgkmcnt(0)
    s_barrier
""")
    stamp(3)

    def meta_reads():
        a(f"v_add_u32_sdwa v{TM}, s{sNX}, v{vP2} {SDWA} src0_sel:DWORD src1_sel:WORD_0")
        a(f"v_and_b32 v{BT}, -32, v{TM}")
        a(f"ds_read_b128 {v(M, 4)}, v{BT}")
        a(f"ds_read_b128 {v(M + 4, 4)}, v{BT} offset:16")
        a(f"ds_read_b64 {v(TM, 2)}, v{TM}")

    def loads(h):
        D = DA if h == 0 else DB
        for e in range(8):
            if h == 0:
                a(f"v_mad_u32_u16 v{M + e}, v{M + e}, s{s512}, v{vL16} op_sel:[1,0,0,0]")
            a(f"buffer_load_dwordx4 {v(D + 4 * e, 4)}, v{M + e}, {X}, 0 offen" + (" offset:256" if h else ""))

    def tr_addr():
        for i in range(2):
            a(f"v_xor_b32_sdwa v{TM + i}, v{TM + i}, v{vP2} {SDWA} src0_sel:WORD_0 src1_sel:WORD_1")
        for i in range(2):
            a(f"v_min_u32 v{TM + i}, s{sZI}, v{TM + i}")
        for i in range(2):
            a(f"v_lshl_add_u32 v{TM + i}, v{TM + i}, 3, s{sCB}")

    def tr_reads():
        a(f"ds_read_b64_tr_b16 {v(A, 2)}, v{TM}")
        a(f"ds_read_b64_tr_b16 {v(A + 2, 2)}, v{TM + 1}")

    def half(t, h, lg):
        D = DA if h == 0 else DB
        pairs = [(0, 2), (4, 6), (1, 3), (5, 7)]

        def perms(j):
            r, p = j >> 1, j & 1
            for k, (e0, e1) in enumerate(pairs):
                a(f"v_perm_b32 v{BT + 4 * (j & 1) + k}, v{D + 4 * e1 + r}, v{D + 4 * e0 + r}, s{sHI if p else sLO}")
        perms(0)
        for j in range(8):
            if j + 1 < 8:
                perms(j + 1)
            if j == 0 and lg is not None:
                a(f"s_waitcnt lgkmcnt({lg})")
            c = v(ACC + 64 * t + (8 * h + j) * 4, 4)
            a(f"v_mfma_f32_16x16x32_bf16 {c}, {v(A, 4)}, {v(BT + 4 * (j & 1), 4)}, {c}")

    a(f"""
    s_cmp_ge_u32 s{sNX}, s{sE1}
    s_cbranch_scc1 k2_done
""")
    meta_reads()
    a("s_waitcnt lgkmcnt(1)")
    loads(0)
    loads(1)
    a("s_waitcnt lgkmcnt(0)")
    tr_addr()
    tr_reads()
    a(f"""
    s_cmp_eq_u32 s{sNT}, 0
    s_cbranch_scc0 k2_stub1
""")
    for t in range(2):
        po, eo, ps, es = (sP1, sE1, sP0, sE0) if t == 0 else (sP0, sE0, sP1, sE1)
        a(f"""
k2_stub{t}:
    s_cmp_lt_u32 s{po}, s{eo}
    s_cbranch_scc1 k2_oth{t}
    s_cmp_lt_u32 s{ps}, s{es}
    s_cbranch_scc0 k2_tail{t}
    s_mov_b32 s{sNX}, s{ps}
    s_add_u32 s{ps}, s{ps}, 128
    s_mov_b32 s{sNT}, {t}
    s_branch k2_body{t}
k2_oth{t}:
    s_mov_b32 s{sNX}, s{po}
    s_add_u32 s{po}, s{po}, 128
    s_mov_b32 s{sNT}, {1 - t}
k2_body{t}:
""")
        meta_reads()
        a("s_waitcnt vmcnt(8)")
        half(t, 0, 3)
        a("s_waitcnt lgkmcnt(0)")
        loads(0)
        tr_addr()
        a("s_waitcnt vmcnt(8)")
        half(t, 1, None)
        loads(1)
        tr_reads()
        a(f"s_cmp_eq_u32 s{sNT}, 0")
        a(f"s_cbranch_scc1 k2_stub0")
        if t == 1:
            a("s_branch k2_stub1")
    for t in range(2):
        a(f"k2_tail{t}:")
        a("s_waitcnt vmcnt(8)")
        half(t, 0, 0)
        a("s_waitcnt vmcnt(0)")
        half(t, 1, None)
        if t == 0:
            a("s_branch k2_done")
    a(f"""
k2_done:
    s_waitcnt vmcnt(0)
    v_mbcnt_lo_u32_b32 v{LANE}, -1, 0
    v_mbcnt_hi_u32_b32 v{LANE}, -1, v{LANE}
    s_cmp_eq_u32 s{sMORE}, 0
    s_cbranch_scc1 k2_fin
    s_add_u32 s{sRND}, s{sRND}, 128
    s_barrier
    s_branch k2_round
k2_fin:
""")
    stamp(4)
    a(f"""
    v_lshrrev_b32 v3, 4, v{LANE}
    s_lshl_b32 s{sT}, s{sWV}, 1
    v_lshl_add_u32 v4, v3, 4, s{sT}
    s_lshr_b32 s{sT}, s{sWV}, 1
    s_add_u32 s{sT}, s{sT}, 48
    v_min_u32 v4, s{sT}, v4
    v_mul_u32_u24 v4, {ROW}, v4
    v_bfe_u32 v5, v{LANE}, 3, 1
    v_mul_u32_u24 v5, 640, v5
    v_and_b32 v6, 7, v{LANE}
    v_lshl_add_u32 v5, v6, 4, v5
    v_add_u32 v4, v4, v5
    s_bitcmp0_b32 s{sWV}, 0
    s_cselect_b32 s{sT + 1}, -1, 0xffff
    s_mov_b32 s{sT + 3}, 0xffff
""")

    def R(t, h, q, jj):
        return ACC + 64 * t + (8 * h + jj) * 4 + q
    DP = "row_mask:0xf bank_mask:0xc"
    for t in range(2):
        for jj in range(8):
            a(f"v_add_f32_dpp v{R(t, 0, 1, jj)}, v{R(t, 1, 3, jj)}, v{R(t, 0, 1, jj)} quad_perm:[0,1,2,3] {DP}")
            a(f"v_sub_f32_dpp v{R(t, 0, 2, jj)}, v{R(t, 1, 1, jj)}, v{R(t, 0, 2, jj)} row_shr:8 {DP}")
            a(f"v_subrev_f32_dpp v{R(t, 0, 3, jj)}, v{R(t, 1, 1, jj)}, v{R(t, 0, 3, jj)} quad_perm:[0,1,2,3] {DP}")
            a(f"v_add_f32_dpp v{R(t, 0, 1, jj)}, v{R(t, 1, 2, jj)}, v{R(t, 0, 1, jj)} row_shr:8 {DP}")
            a(f"v_subrev_f32_dpp v{R(t, 1, 2, jj)}, v{R(t, 1, 3, jj)}, v{R(t, 1, 2, jj)} row_shr:8 {DP}")
        regs = [(0, 0), (0, 1), (0, 2), (0, 3), (1, 0), (1, 2)]
        for u, (h, q) in enumerate(regs):
            for k in range(4):
                a(f"v_cvt_pk_bf16_f32 v{DA + 32 * t + 4 * u + k}, v{R(t, h, q, 2 * k)}, v{R(t, h, q, 2 * k + 1)}")
        if t == 0:
            a(f"""
    s_cmp_ge_u32 s{sTOT}, {SEND}
    s_cbranch_scc1 k2_nob3
    s_barrier
k2_nob3:
""")
        hi = sT + 1 + 2 * t
        a(f"s_mov_b32 exec_hi, s{hi}")
        for u in range(5):
            a(f"ds_write_b128 v4, {v(DA + 32 * t + 4 * u, 4)} offset:{t * ROW + u * 128}")
        a(f"s_mov_b32 exec_lo, 0xff00ff00")
        a(f"s_and_b32 exec_hi, s{hi}, 0xff00ff00")
        a(f"ds_write_b128 v4, {v(DA + 32 * t + 20, 4)} offset:{t * ROW + 640}")
        a("s_mov_b64 exec, -1")
    vRA, vO1, vO2, vS0, vS2, vS3, vS4 = 4, 5, 6, 7, 8, 9, 10
    a(f"""
    s_lshr_b32 s{sT}, s{sWV}, 2
    s_lshl_b32 s{sT}, s{sT}, 5
    v_and_b32 v11, 15, v{LANE}
    v_add_u32 v12, s{sT}, v11
    v_mul_u32_u24 v{vRA}, {ROW}, v12
    v_lshl_add_u32 v{vRA}, v3, 4, v{vRA}
    s_and_b32 s{sT}, s{sWV}, 3
    s_lshl_b32 s{sT}, s{sT}, 5
    s_lshl_b32 s{sT + 1}, s2, 9
    s_add_u32 s{sT}, s{sT}, s{sT + 1}
    v_lshl_add_u32 v{vO1}, v3, 3, s{sT}
    v_lshl_add_u32 v{vO1}, v12, 17, v{vO1}
    s_mov_b32 s{sT + 1}, 0xbfb8aa3b
    s_cmp_ge_u32 s{sWV}, 4
    s_cbranch_scc1 k2_gb
    v_add_u32 v{vO2}, {16 << 17}, v{vO1}
    s_waitcnt vmcnt(0) lgkmcnt(0)
    s_barrier
""")
    stamp(5)
    slot = dict(F0=0, F21=1, F22=2, F23=3, F32=4, F31=5, F1=6, F43=7, F42=8, F33=9, F41=10)
    terms = {0: [(0, 'F0'), (1, 'F1')]}
    for i in (1, 2, 3):
        terms[i] = [(2, f'F2{i}'), (3, f'F3{i}'), (4, f'F4{i}')]
    NB, AH = 24, 12
    BB = 160
    OA = 128

    def full_seq(u):
        sq = []
        for ti in range(3):
            for h in range(2):
                for o in range(4):
                    if ti < len(terms[o]):
                        t, f = terms[o][ti]
                        sq.append(dict(addr=vRA, off=u * 16 * ROW + slot[f] * 128 + h * 64, w=2 * t + h,
                                       d=OA + 16 * u + 4 * o, first=(ti == 0 and h == 0), swap=False))
        return sq

    def small_seq():
        sq = []
        c0 = [(vS0, 0, 0), (vS0, 6 * 128, 1)]
        c1 = [(vS2, 0, 2), (vS3, 0, 3), (vS4, 0, 4)]
        for ti in range(3):
            for h in range(2):
                for o, c in enumerate((c0, c1)):
                    if ti < len(c):
                        ad, off, t = c[ti]
                        sq.append(dict(addr=ad, off=off + h * 64, w=2 * t + h, d=OA + 16 + 4 * o,
                                       first=(ti == 0 and h == 0), swap=True))
        return sq

    def sigm(g, src, n):
        for i in range(n):
            a(f"v_mul_f32 v{g + i}, s{sT + 1}, v{src + i}")
        for i in range(n):
            a(f"v_exp_f32 v{g + i}, v{g + i}")
        for i in range(n):
            a(f"v_add_f32 v{g + i}, 1.0, v{g + i}")
        for i in range(n):
            a(f"v_rcp_f32 v{g + i}, v{g + i}")

    def finish(u):
        o0 = OA + 16 * u
        g = 12 + 4 * u
        vo = vO1 if u == 0 else vO2
        sigm(g, o0, 4)
        a(f"v_cvt_pk_bf16_f32 v{o0}, v{o0}, v{o0 + 1}")
        a(f"v_cvt_pk_bf16_f32 v{o0 + 1}, v{o0 + 2}, v{o0 + 3}")
        a(f"buffer_store_dwordx2 {v(o0, 2)}, v{vo}, {O}, 0 offen{OSC}")
        for o in range(1, 4):
            b = o0 + 4 * o
            for i in range(4):
                a(f"v_mul_f32 v{b + i}, v{b + i}, v{g + i}")
            a(f"v_cvt_pk_bf16_f32 v{b}, v{b}, v{b + 1}")
            a(f"v_cvt_pk_bf16_f32 v{b + 1}, v{b + 2}, v{b + 3}")
            a(f"buffer_store_dwordx2 {v(b, 2)}, v{vo}, {O}, 0 offen offset:{128 * o}{OSC}")

    def finish_small():
        o0, o1 = OA + 16, OA + 20
        for o in (o0, o1):
            a(f"v_add_f32 v{o}, v{o}, v{o + 1}")
            a(f"v_add_f32 v{o + 2}, v{o + 2}, v{o + 3}")
        for o in (o0, o1):
            a(f"v_add_f32 v{o}, v{o}, v{o + 2}")
        sigm(16, o0, 1)
        a(f"""
    v_cmp_gt_u32 vcc, 16, v{LANE}
    v_mul_f32 v{o1}, v{o1}, v16
    v_cndmask_b32 v{o1}, v{o1}, v{o0}, vcc
    v_cvt_pk_bf16_f32 v{o1}, v{o1}, v{o1}
    buffer_store_short v{o1}, v{vO2}, {O}, 0 offen{OSC}
""")

    def gemm(sq, fin_at, fin2):
        n = len(sq)

        def rd(i):
            a(f"ds_read_b128 {v(BB + 4 * (i % NB), 4)}, v{sq[i]['addr']} offset:{sq[i]['off']}")
        for i in range(AH):
            rd(i)
        for i in range(n):
            e = sq[i]
            if i + AH < n:
                rd(i + AH)
            a(f"s_waitcnt lgkmcnt({min(AH, n - 1 - i)})")
            d = v(e['d'], 4)
            x, y = v(WF + 4 * e['w'], 4), v(BB + 4 * (i % NB), 4)
            if e['swap']:
                x, y = y, x
            a(f"v_mfma_f32_16x16x32_bf16 {d}, {x}, {y}, {'0' if e['first'] else d}")
            if i == fin_at:
                finish(0)
        fin2()
    gemm(full_seq(0) + full_seq(1), 27, lambda: finish(1))
    a("s_branch k2_out")
    a(f"""
k2_gb:
    v_and_b32 v12, 3, v{LANE}
    v_mul_u32_u24 v{vS0}, {ROW}, v12
    v_lshl_add_u32 v{vS0}, v3, 4, v{vS0}
    v_add_u32 v{vS0}, {48 * ROW}, v{vS0}
    v_and_b32 v12, 12, v{LANE}
    v_lshl_add_u32 v{vS2}, v12, 5, v{vS0}
    s_movk_i32 s{sT + 2}, 0x9450
    v_bfe_u32 v{vS3}, s{sT + 2}, v12, 4
    s_movk_i32 s{sT + 2}, 0x78a0
    v_bfe_u32 v{vS4}, s{sT + 2}, v12, 4
    v_lshl_add_u32 v{vS3}, v{vS3}, 7, v{vS0}
    v_lshl_add_u32 v{vS4}, v{vS4}, 7, v{vS0}
    s_add_u32 s{sT}, s{sT}, {48 << 17}
    v_lshl_add_u32 v{vO2}, v3, 7, s{sT}
    v_lshl_add_u32 v{vO2}, v11, 1, v{vO2}
    s_waitcnt vmcnt(0) lgkmcnt(0)
    s_barrier
""")
    stamp(5)
    gemm(full_seq(0) + small_seq(), 27, finish_small)
    a("k2_out:")
    if OPT['stamps']:
        stamp(6)
        a(f"""
    s_waitcnt vmcnt(0) lgkmcnt(0)
    s_memrealtime s[20:21]
    s_lshl_b32 s{sT}, s2, 3
    s_add_u32 s{sT}, s{sT}, s{sWV}
    s_lshl_b32 s{sT}, s{sT}, 6
    s_add_u32 s{sT}, s{sT}, 0xB00000
    v_mov_b32 v4, s{sT}
    s_waitcnt lgkmcnt(0)
""")
        for i in range(7):
            a(f"v_mov_b32 v{8 + 2 * i}, s{88 + 2 * i}")
            a(f"v_mov_b32 v{9 + 2 * i}, s{89 + 2 * i}")
        a(f"v_mov_b32 v22, s20")
        a(f"v_mov_b32 v23, s21")
        a("s_mov_b64 exec, 1")
        for i in range(4):
            a(f"global_store_dwordx4 v4, {v(8 + 4 * i, 4)}, s[{sW}:{sW + 1}] offset:{16 * i}")
    a("""
k2_end:
    s_endpgm
""")
    return a.lines, LDS


def main():
    out = sys.argv[1] if len(sys.argv) > 1 else f"cdna_kernels/{NAME}.s"
    ref = open(f"cdna_kernels/{NAME}.s.ref").read().split('\n')
    hdr = [l for l in ref if l.startswith(';') and '@launch' not in l and 'Override' not in l and 'grid=ceil' not in l]
    k1, lds1 = gen_k1()
    k2, lds2 = gen_k2()
    k1, n1 = pad_hazards(k1, OPT.get('verbose', 0))
    k2, n2 = pad_hazards(k2, OPT.get('verbose', 0))
    txt = hdr + [
        f"; @launch kernel=k1_kernel grid=(256,1,1) block=(832,1,1) lds={lds1}",
        f"; @launch kernel=k2_kernel grid=(256,1,1) block=(512,1,1) lds={lds2}",
        '.amdgcn_target "amdgcn-amd-amdhsa--gfx950"', '.text']
    for nm, body in (("k1_kernel", k1), ("k2_kernel", k2)):
        txt += [f".globl {nm}", ".p2align 8", f".type {nm},@function"] + body
    txt += ['.section .rodata,"a"']
    for nm, vg in (("k1_kernel", 52), ("k2_kernel", 256)):
        txt += [".p2align 6", f".amdhsa_kernel {nm}",
                f"  .amdhsa_next_free_vgpr {vg}", "  .amdhsa_next_free_sgpr 102",
                f"  .amdhsa_accum_offset {vg}", "  .amdhsa_group_segment_fixed_size 0",
                "  .amdhsa_kernarg_size 96", "  .amdhsa_user_sgpr_count 2",
                "  .amdhsa_user_sgpr_kernarg_segment_ptr 1", "  .amdhsa_system_sgpr_workgroup_id_x 1",
                ".end_amdhsa_kernel"]
    open(out, 'w').write('\n'.join(txt) + '\n')
    print(f"wrote {out}: pads k1={n1} k2={n2}, lines {len(txt)}")


main()
```

```python
import sys
from asmlib import Asm, v, s, pad_hazards

NAME = "gather_scatter__tensor_product_equiv_equiformer__graph"
OPT = dict(stamps=0, k1nt=3, k1sc=1, pf1=1, pf3=0, nd0=4, gd0=8, ze=0, ipos=0, wr=0, osc=0, spf=0, spw=0, spo=2, prio=1)
for a in sys.argv[2:]:
    k, val = a.split('=')
    OPT[k] = int(val, 0)

N = 12500
NCH = 250
CH = 3200
META_OFF = 0x640000
TBL_OFF = 0xA00000
WF_OFF = 0xA80000
WS_SIZE = 0xB00000
SDWA = "dst_sel:DWORD dst_unused:UNUSED_PAD"


def wave_scan(a, r):
    for m in ("row_shr:1", "row_shr:2", "row_shr:4", "row_shr:8"):
        a(f"v_add_u32_dpp {v(r)}, {v(r)}, {v(r)} {m} row_mask:0xf bank_mask:0xf")
    a(f"v_add_u32_dpp {v(r)}, {v(r)}, {v(r)} row_bcast:15 row_mask:0xa bank_mask:0xf")
    a(f"v_add_u32_dpp {v(r)}, {v(r)}, {v(r)} row_bcast:31 row_mask:0xc bank_mask:0xf")


def gen_k1():
    a = Asm()
    MB = CH * 8
    HIST = CH * 12
    BASE = HIST + 1024

    def stamp(i):
        return f"s_memrealtime s[{88 + 2 * i}:{89 + 2 * i}]" if OPT['stamps'] else ""
    NT = " nt" if OPT['k1nt'] & 1 else ""
    NT2 = " nt" if OPT['k1nt'] & 2 else ""
    SC = {0: "", 1: " sc1", 2: " sc0 sc1", 3: " nt"}[OPT['k1sc']]
    P1 = 1 if OPT['pf1'] == 1 else 0

    def pf(i):
        if OPT['pf1'] != i:
            return ""
        return f"""
    s_mul_i32 s19, s2, {200 * 128}
    v_min_u32 v48, 199, v0
    v_lshl_add_u32 v48, v48, 7, s19
    global_load_dword v48, v48, s[22:23]
"""
    a(f"""
k1_kernel:
    s_cmp_ge_u32 s2, {NCH}
    s_cbranch_scc1 k1_wb
    {stamp(0)}
    s_load_dwordx8 s[4:11], s[0:1], 8
    s_load_dwordx2 s[12:13], s[0:1], 88
    s_load_dwordx2 s[22:23], s[0:1], 0
    s_mul_i32 s14, s2, {CH * 4}
    s_mul_i32 s15, s2, {CH * 2}
    s_mul_i32 s16, s2, {CH * 6}
    v_lshlrev_b32 v1, 4, v0
    v_add_u32 v1, s14, v1
    v_lshlrev_b32 v2, 3, v0
    v_add_u32 v2, s15, v2
    v_mul_u32_u24 v3, 24, v0
    v_add_u32 v3, s16, v3
    v_cmp_gt_u32 vcc, {CH // 4}, v0
    s_mov_b64 s[20:21], vcc
    s_mov_b64 exec, vcc
    s_waitcnt lgkmcnt(0)
    global_load_dwordx4 v[4:7], v1, s[10:11]{NT}
    global_load_dwordx2 v[12:13], v2, s[6:7]{NT}
    global_load_dwordx4 v[14:17], v3, s[4:5]{NT2}
    global_load_dwordx2 v[18:19], v3, s[4:5] offset:16{NT2}
    global_load_dwordx4 v[8:11], v1, s[8:9]{NT}
    {pf(1)}
    v_cmp_gt_u32 vcc, 256, v0
    s_mov_b64 exec, vcc
    v_lshlrev_b32 v1, 2, v0
    v_mov_b32 v2, 0
    ds_write_b32 v1, v2 offset:{HIST}
    s_mov_b64 exec, s[20:21]
    v_mov_b32 v2, 4
    v_and_b32 v3, 3, v0
    v_lshlrev_b32 v3, 12, v3
    s_mov_b32 s17, 0xffff0000
    s_mov_b32 s18, 5497558
    s_movk_i32 s19, 12288
    s_waitcnt lgkmcnt(0)
    s_barrier
    s_waitcnt vmcnt({4 + P1})
    {stamp(1)}
""")
    for i in range(4):
        a(f"v_lshlrev_b32_sdwa v{20 + i}, 2, v{4 + i} {SDWA} src0_sel:DWORD src1_sel:BYTE_0")
        a(f"ds_add_rtn_u32 v{24 + i}, v{20 + i}, v2 offset:{HIST}")
    for i in range(4):
        a(f"v_cmp_le_u32 vcc, s19, v{4 + i}")
        a(f"v_and_b32 v{4 + i}, 0x3f00, v{4 + i}")
        a(f"v_cndmask_b32 v1, 0, v3, vcc")
        a(f"v_lshl_or_b32 v{4 + i}, v{4 + i}, 2, v1")
    a("s_waitcnt lgkmcnt(0)")
    a("s_barrier")
    a(f"""
    s_mov_b64 exec, -1
    v_and_b32 v1, 63, v0
    v_lshlrev_b32 v1, 4, v1
    ds_read_b128 v[36:39], v1 offset:{HIST}
    s_waitcnt lgkmcnt(0)
    v_add_u32 v41, v36, v37
    v_add_u32 v42, v41, v38
    v_add_u32 v3, v42, v39
    v_mov_b32 v43, v3
""")
    wave_scan(a, 3)
    a(f"""
    v_sub_u32 v40, v3, v43
    v_add_u32 v43, v40, v42
    v_add_u32 v42, v40, v41
    v_add_u32 v41, v40, v36
    ds_write_b128 v1, v[40:43] offset:{BASE}
    s_mov_b64 exec, s[20:21]
""")
    for i in range(4):
        a(f"ds_read_b32 v{20 + i}, v{20 + i} offset:{BASE}")
    for i in range(4):
        a(f"v_lshl_or_b32 v{36 + i}, v{36 + i}, 16, v{40 + i}")
    a(f"s_waitcnt vmcnt({1 + P1})")
    a(stamp(2))

    def unpack(dst, reg, hi):
        if hi:
            a(f"v_and_b32 v{dst}, s17, v{reg}")
        else:
            a(f"v_lshlrev_b32 v{dst}, 16, v{reg}")
    for i in range(4):
        unpack(44, 12 + i // 2, i & 1)
        for j in range(3):
            hw = 3 * i + j
            unpack(45 + j, 14 + hw // 2, hw & 1)
        for j in range(3):
            a(f"v_mul_f32 v{45 + j}, v44, v{45 + j}")
        a(f"v_cvt_pk_bf16_f32 v{28 + 2 * i}, v44, v45")
        a(f"v_cvt_pk_bf16_f32 v{29 + 2 * i}, v46, v47")
        if i == 0:
            a("s_waitcnt lgkmcnt(0)")
        a(f"v_add_u32 v{20 + i}, v{20 + i}, v{24 + i}")
        a(f"v_lshlrev_b32 v{24 + i}, 1, v{20 + i}")
        a(f"ds_write_b64 v{24 + i}, {v(28 + 2 * i, 2)}")
    a(f"s_waitcnt vmcnt({P1})")
    for i in range(4):
        a(f"v_mul_hi_u32_u24 v2, s18, v{8 + i}")
        a(f"v_lshl_or_b32 v2, v2, 6, v{4 + i}")
        a(f"v_lshl_or_b32 v{4 + i}, v{8 + i}, 16, v2")
        a(f"ds_write_b32 v{20 + i}, v{4 + i} offset:{MB}")
    a(f"""
    v_lshlrev_b32 v8, 4, v0
    s_mul_i32 s14, s2, {CH * 8}
    s_mul_i32 s15, s2, {CH * 4}
    s_add_u32 s15, s15, {META_OFF}
    v_add_u32 v2, s14, v8
    v_add_u32 v3, {CH * 4}, v2
    v_add_u32 v20, s15, v8
    v_cmp_gt_u32 vcc, 64, v0
    s_cbranch_vccz k1_notbl
    s_lshl_b32 s14, s2, 10
    s_add_u32 s14, s14, {TBL_OFF}
    v_add_u32 v1, s14, v1
    global_store_dwordx4 v1, v[36:39], s[12:13]{SC}
k1_notbl:
    s_waitcnt lgkmcnt(0)
    s_barrier
    {stamp(3)}
    ds_read_b128 v[12:15], v8 offset:{MB}
    ds_read_b128 v[4:7], v8
    ds_read_b128 v[8:11], v8 offset:{CH * 4}
    {pf(2)}
    s_waitcnt lgkmcnt(2)
    global_store_dwordx4 v20, v[12:15], s[12:13]{SC}
    s_waitcnt lgkmcnt(1)
    global_store_dwordx4 v2, v[4:7], s[12:13]{SC}
    s_waitcnt lgkmcnt(0)
    global_store_dwordx4 v3, v[8:11], s[12:13]{SC}
""")
    if OPT['stamps']:
        a(f"""
    s_waitcnt vmcnt(0)
    {stamp(4)}
    v_cmp_eq_u32 vcc, 0, v0
    s_mov_b64 exec, vcc
    s_cbranch_execz k1_nost
    s_lshl_b32 s14, s2, 6
    s_add_u32 s14, s14, 0xB20000
    v_mov_b32 v1, s14
    s_waitcnt lgkmcnt(0)
""")
        for i in range(10):
            a(f"v_mov_b32 v{4 + i}, s{88 + i}")
        a("""
    global_store_dwordx4 v1, v[4:7], s[12:13]
    global_store_dwordx4 v1, v[8:11], s[12:13] offset:16
    global_store_dwordx2 v1, v[12:13], s[12:13] offset:32
k1_nost:
""")
    a(f"""
    s_endpgm
k1_wb:
    s_cmp_ge_u32 s2, {NCH + 6}
    s_cbranch_scc1 k1_end
    v_cmp_gt_u32 vcc, 512, v0
    s_cbranch_vccz k1_end
    s_sub_u32 s3, s2, {NCH}
    s_load_dwordx2 s[4:5], s[0:1], 40
    s_load_dwordx2 s[12:13], s[0:1], 88
    s_min_u32 s3, s3, 4
    s_cmp_ge_u32 s3, 2
    s_cbranch_scc1 k1_wb1
    s_load_dwordx2 s[6:7], s[0:1], 48
    s_lshl_b32 s9, s3, 13
    s_branch k1_wb2
k1_wb1:
    s_load_dwordx2 s[6:7], s[0:1], 56
    s_sub_u32 s9, s3, 2
    s_lshl_b32 s9, s9, 13
k1_wb2:
    s_lshl_b32 s8, s3, 7
    s_mov_b32 s17, 0xffff0000
    v_bfe_u32 v1, v0, 4, 3
    v_bfe_u32 v2, v0, 6, 1
    v_lshlrev_b32 v1, 3, v1
    v_lshrrev_b32 v3, 7, v0
    v_and_b32 v4, 15, v0
    v_lshl_add_u32 v4, v3, 4, v4
    v_lshlrev_b32 v4, 1, v4
    v_lshl_add_u32 v4, v1, 7, v4
    v_add_u32 v4, s9, v4
    v_lshlrev_b32 v1, 1, v1
    v_add_u32 v1, s8, v1
    s_waitcnt lgkmcnt(0)
""")
    for j in range(8):
        a(f"global_load_ushort v{8 + j}, v4, s[6:7] offset:{j * 128}")
    a(f"""
    global_load_dwordx4 v[16:19], v1, s[4:5]
    v_mul_u32_u24 v3, 10, v3
    v_add_u32 v3, v3, v2
    s_lshl_b32 s3, s3, 1
    v_add_u32 v3, s3, v3
    v_and_b32 v2, 63, v0
    v_lshl_add_u32 v3, v3, 6, v2
    v_lshlrev_b32 v3, 4, v3
    v_add_u32 v3, {WF_OFF}, v3
    s_waitcnt vmcnt(0)
""")
    for j in range(8):
        a(f"v_lshlrev_b32 v{8 + j}, 16, v{8 + j}")
        unpack(5, 16 + j // 2, j & 1)
        a(f"v_mul_f32 v{8 + j}, v{8 + j}, v5")
    for j in range(4):
        a(f"v_cvt_pk_bf16_f32 v{20 + j}, v{8 + 2 * j}, v{9 + 2 * j}")
    a(f"""
    global_store_dwordx4 v3, v[20:23], s[12:13]
    v_cmp_gt_u32 vcc, 256, v0
    s_cbranch_vccz k1_end
    s_lshl_b32 s14, s2, 10
    s_add_u32 s14, s14, {TBL_OFF}
    v_lshl_add_u32 v1, v0, 2, s14
    v_mov_b32 v2, 0
    global_store_dword v1, v2, s[12:13]
k1_end:
    s_endpgm
""")
    return a.lines, CH * 12 + 2048


def gen_k2():
    a = Asm()
    LDS = 163840
    HIST, BTAB, FLAG = 0, 1024, 2048
    CB = 98304
    ROW = 1440
    SEND = 52 * ROW
    vL16, vP2, TM, A, BT, M, WF, DA, DB, ACC = 0, 1, 2, 4, 8, 16, 24, 64, 96, 128
    LANE = 2
    META, IDX, BIN, RANK = 64, 80, 96, 112
    sX, sW, sO = 4, 8, 12
    sWV, sRND, sMORE, sTOT = 16, 17, 18, 19
    sP0, sE0, sP1, sE1, sNX, sNT = 20, 21, 22, 23, 24, 25
    sLO, sHI, s512, sZI, sCB, sMSK = 26, 27, 28, 29, 30, 31
    sT = 32
    sM = 40
    X = f"s[{sX}:{sX + 3}]"
    W = f"s[{sW}:{sW + 3}]"
    O = f"s[{sO}:{sO + 3}]"
    PF = OPT['pf3']
    OSC = {0: "", 1: " sc1", 2: " sc0 sc1", 3: " nt"}[OPT['osc']]

    SMAP = {1: dict(start=0, tbl=1, lastmeta=2, sorted=3, mainend=4, sbar=5, gend=6),
            2: dict(karg=0, tbl=1, missued=2, bar1=3, meta0=4, lastmeta=5, bar2=6),
            3: dict(start=0, bar2=1, scan=2, p2=3, sorted=4, first=5, it1=6),
            4: dict(mainend=0, dpp0=1, sw0=2, sw1=3, sbar=4, fin0=5, gend=6)}.get(OPT['stamps'], {})

    def stamp(nm):
        if nm in SMAP:
            i = SMAP[nm]
            a(f"s_memrealtime s[{88 + 2 * i}:{89 + 2 * i}]")

    def m1(i):
        return f"s[{sM + 4 * i}:{sM + 4 * i + 1}]"

    def m2(i):
        return f"s[{sM + 4 * i + 2}:{sM + 4 * i + 3}]"

    a(f"""
k2_kernel:
    s_cmp_ge_u32 s2, 256
    s_cbranch_scc1 k2_end
""")
    stamp('start')
    a(f"""
    s_load_dwordx2 s[{sW}:{sW + 1}], s[0:1], 88
    s_load_dwordx2 s[{sX}:{sX + 1}], s[0:1], 0
    s_load_dwordx2 s[{sO}:{sO + 1}], s[0:1], 72
    s_and_b32 s3, s2, 7
    s_lshr_b32 s2, s2, 3
    s_lshl_b32 s3, s3, 5
    s_or_b32 s2, s2, s3
    v_lshrrev_b32 v3, 6, v0
    v_and_b32 v{LANE}, 63, v0
    v_readfirstlane_b32 s{sWV}, v3
    s_mov_b32 s{sX + 2}, {N * 512}
    s_mov_b32 s{sX + 3}, 0x00020000
    s_mov_b32 s{sW + 2}, {WS_SIZE}
    s_mov_b32 s{sW + 3}, 0x00020000
    s_mov_b32 s{sO + 2}, {N * 512}
    s_mov_b32 s{sO + 3}, 0x00020000
    s_mov_b32 s{sRND}, 0
""")
    WST = 4096
    TT, AB, CNT = RANK + 15, RANK + 14, RANK + 13
    BC = "row_mask:0xf bank_mask:0xf"
    a(f"""
k2_round:
    v_and_b32 v3, 7, v{LANE}
    v_lshrrev_b32 v11, 4, v{LANE}
    s_lshl_b32 s{sT}, s{sWV}, 5
    v_lshl_add_u32 v3, v3, 2, v11
    v_add_u32 v3, s{sT}, v3
    s_lshl_b32 s{sT}, s2, 2
    v_lshl_add_u32 v{TT}, v3, 10, s{sT}
    v_lshlrev_b32 v9, 4, v{LANE}
    s_lshl_b32 s{sT}, s{sWV}, 10
    v_add_u32 v8, s{sT}, v9
    v_mov_b32 v4, -1
    v_mov_b32 v5, -1
    v_mov_b32 v6, -1
    v_mov_b32 v7, -1
    v_add_u32 v{AB}, {CB - 40960}, v8
    v_lshrrev_b32 v8, 2, v8
    v_mov_b32 v12, 0
    v_mov_b32 v13, 0
    v_lshl_add_u32 v{IDX}, v{LANE}, 1, s{sT}
    v_and_b32 v{vL16}, 15, v{LANE}
    v_lshl_add_u32 v10, v{vL16}, 3, s{sRND}
    v_mul_u32_u24 v3, {CH * 4}, v3
    v_lshlrev_b32 v{vL16}, 4, v{vL16}
    v_lshrrev_b32 v{vP2}, 2, v{LANE}
    v_lshlrev_b32 v{vP2}, 3, v{vP2}
    v_lshl_or_b32 v{vP2}, v{LANE}, 30, v{vP2}
    v_and_b32 v15, 3, v{LANE}
    v_cmp_eq_u32 vcc, 3, v15
    v_mov_b32 v15, 0x7f
    s_mov_b32 s{sLO}, 0x05040100
    v_cndmask_b32 v15, 0, v15, vcc
    s_mov_b32 s{sHI}, 0x07060302
    s_movk_i32 s{s512}, 512
    s_movk_i32 s{sZI}, 8191
    s_mov_b32 s{sCB}, {CB}
    s_mov_b32 s{sMSK}, 0xffffc000
    s_and_b32 s{sT}, s{sWV}, 3
    s_mul_i32 s{sT}, s{sT}, 10240
    v_add_u32 v11, s{sT}, v9
    v_mov_b32 v14, 4
    v_mov_b32 v{CNT}, {LDS - 16}
    s_mov_b32 s{sT}, {TBL_OFF}
    s_mul_i32 s{sT + 1}, s{sWV}, 5120
    s_add_u32 m0, s{sT + 1}, {WST}
    s_add_u32 s{sT + 1}, s{sT + 1}, {WF_OFF}
""")

    def idx():
        for j in range(1, 16):
            a(f"v_add_u32 v{IDX + j}, {(j >> 1) * 128 + (j & 1)}, v{IDX}")
    if OPT['ipos'] == 0:
        idx()
    a(f"""
    s_waitcnt lgkmcnt(0)
    buffer_load_dword v{TT}, v{TT}, {W}, s{sT} offen
""")
    stamp('karg')
    a(f"ds_write_b32 v8, v12 offset:{HIST}")
    for i in range(5):
        a(f"ds_write_b128 v{AB}, v[4:7] offset:{8192 * i}")
    a(f"""
    s_mov_b64 exec, 1
    ds_write_b32 v12, v12 offset:{FLAG}
    ds_write_b64 v{CNT}, v[12:13]
    ds_write_b64 v{CNT}, v[12:13] offset:8
    s_mov_b64 exec, -1
""")
    if OPT['ipos'] == 1:
        idx()
    ZE = OPT['ze']

    def zero(lo, hi):
        for i in range(lo, hi):
            a(f"v_mov_b64 {v(ACC + 2 * i, 2)}, 0")
    if ZE:
        a(f"""
    s_cmp_lg_u32 s{sRND}, 0
    s_cbranch_scc1 k2_noz0
""")
        zero(0, ZE)
        a("k2_noz0:")
    for k in range(4):
        a(f"buffer_load_dwordx4 v9, {W}, s{sT + 1} offen offset:{1024 * k} lds")
    a(f"""
    s_add_u32 m0, m0, 4096
    s_add_u32 s{sT + 1}, s{sT + 1}, 4096
    buffer_load_dwordx4 v9, {W}, s{sT + 1} offen lds
    s_lshl_b32 s{sT + 2}, s{sWV}, 13
    s_add_u32 m0, s{sT + 2}, {CB}
    s_mov_b32 s{sT}, {META_OFF}
    s_add_u32 s{sT + 1}, s{sRND}, 128
    s_waitcnt vmcnt(5)
""")
    stamp('tbl')
    a(f"v_add_u32_sdwa v{AB}, v3, v{TT} {SDWA} src0_sel:DWORD src1_sel:WORD_0")
    a(f"v_lshrrev_b32 v{CNT}, 16, v{TT}")
    for i in range(8):
        a(f"v_add_u32_dpp v{M + i}, v{AB}, v10 row_newbcast:{i} {BC}")
        a(f"buffer_load_dwordx2 {v(META + 2 * i, 2)}, v{M + i}, {W}, s{sT} offen")
    stamp('missued')
    for i in range(8):
        a(f"v_sub_u32_dpp v{RANK + i}, v{CNT}, v10 row_newbcast:{i} {BC}")
    for i in range(8):
        a(f"v_cmp_lt_i32 {m1(i)}, 0, v{RANK + i}")
        a(f"v_lshlrev_b32 v{M + i}, 1, v{M + i}")
    a(f"""
    v_cmp_lt_u32 vcc, s{sT + 1}, v{CNT}
    s_waitcnt vmcnt(8) lgkmcnt(0)
    s_barrier
""")
    stamp('bar1')
    nd = [0]

    def dma():
        i = nd[0]
        nd[0] += 1
        a(f"s_mov_b64 exec, {m1(i)}")
        a(f"buffer_load_dwordx4 v{M + i}, {W}, 0 offen lds")
        if i < 7:
            a(f"s_add_u32 m0, m0, 1024")

    def wreads():
        for f in range(10):
            a(f"ds_read_b128 {v(WF + 4 * f, 4)}, v11 offset:{WST + f * 1024}")
    if OPT['wr'] == 0:
        wreads()
    for i in range(OPT['nd0']):
        dma()
    a("s_mov_b64 exec, -1")
    if OPT['wr'] == 1:
        wreads()
    for i in range(8):
        a(f"v_cmp_lt_i32 {m2(i)}, 4, v{RANK + i}")
    a(f"""
    s_cbranch_vccz k2_nomore
    ds_write_b32 v12, v14 offset:{FLAG}
k2_nomore:
""")
    for i in range(8):
        a(f"s_waitcnt vmcnt({7 - i + nd[0]})")
        if i == 0:
            stamp('meta0')
        if i == 7:
            stamp('lastmeta')
        a(f"s_mov_b64 exec, {m1(i)}")
        for p in range(2):
            j = 2 * i + p
            a(f"v_bfe_u32 v{BIN + j}, v{META + j}, 4, 10")
        a(f"ds_add_rtn_u32 v{RANK + 2 * i}, v{BIN + 2 * i}, v14 offset:{HIST}")
        for p in range(2):
            j = 2 * i + p
            a(f"v_and_or_b32 v{META + j}, v{META + j}, s{sMSK}, v{IDX + j}")
        a(f"s_mov_b64 exec, {m2(i)}")
        a(f"ds_add_rtn_u32 v{RANK + 2 * i + 1}, v{BIN + 2 * i + 1}, v14 offset:{HIST}")
        if i >= OPT['gd0'] and nd[0] < 8:
            dma()
    while nd[0] < 8:
        dma()
    a("s_mov_b64 exec, -1")
    if PF:
        a(f"""
    s_and_b32 s{sT}, s2, 31
    s_lshl_b32 s{sT}, s{sT}, 3
    s_add_u32 s{sT}, s{sT}, s{sWV}
    s_lshl_b32 s{sT}, s{sT}, 13
    v_lshl_add_u32 v8, v{LANE}, 7, s{sT}
""")
        for i in range(PF):
            if i:
                a(f"v_add_u32 v8, {1 << 21}, v8")
            a(f"buffer_load_dword v{IDX + i}, v8, {X}, 0 offen")
    a(f"""
    s_lshl_b32 s{sT}, s{sWV}, 3
    s_add_u32 s{sT + 1}, s{sT}, 4
    s_add_u32 s{sT + 2}, s{sT}, 7
    s_waitcnt lgkmcnt(0)
    s_barrier
""")
    stamp('bar2')
    a(f"""
    ds_read_b128 v[4:7], v9 offset:{HIST}
    ds_read_b32 v8, v12 offset:{FLAG}
    s_waitcnt lgkmcnt(1)
    v_add_u32 v5, v4, v5
    v_add_u32 v6, v5, v6
    v_add_u32 v7, v6, v7
    v_add_u32_dpp v10, v7, v7 quad_perm:[1,0,3,2] row_mask:0xf bank_mask:0xf
    v_add_u32_dpp v10, v10, v10 quad_perm:[2,3,0,1] row_mask:0xf bank_mask:0xf
    v_sub_u32 v10, 0, v10
    v_and_b32 v10, v15, v10
    v_add_u32 v7, v7, v10
    v_mov_b32 v10, v7
""")
    wave_scan(a, 10)
    a(f"""
    v_readlane_b32 s{sTOT}, v10, 63
    v_readlane_b32 s{sE1}, v10, s{sT + 2}
    v_sub_u32 v10, v10, v7
    s_sub_u32 s{sTOT}, {CB}, s{sTOT}
    v_add_u32 v10, s{sTOT}, v10
    v_add_u32 v7, v10, v6
    v_add_u32 v6, v10, v5
    v_add_u32 v5, v10, v4
    v_mov_b32 v4, v10
    ds_write_b128 v9, v[4:7] offset:{BTAB}
    s_add_u32 s{sE1}, s{sE1}, s{sTOT}
    v_readlane_b32 s{sP0}, v10, s{sT}
    v_readlane_b32 s{sP1}, v10, s{sT + 1}
    s_waitcnt lgkmcnt(1)
    v_readfirstlane_b32 s{sMORE}, v8
""")
    stamp('scan')
    for i in range(8):
        a(f"s_mov_b64 exec, {m1(i)}")
        for p in range(2):
            j = 2 * i + p
            a(f"ds_read_b32 v{BIN + j}, v{BIN + j} offset:{BTAB}")
    a(f"s_mov_b32 s{sE0}, s{sP1}")
    for i in range(8):
        a(f"s_mov_b64 exec, {m1(i)}")
        a(f"s_waitcnt lgkmcnt(14)")
        for p in range(2):
            j = 2 * i + p
            a(f"v_add_u32 v{BIN + j}, v{BIN + j}, v{RANK + j}")
        a(f"ds_write_b32 v{BIN + 2 * i}, v{META + 2 * i}")
        a(f"s_mov_b64 exec, {m2(i)}")
        a(f"ds_write_b32 v{BIN + 2 * i + 1}, v{META + 2 * i + 1}")
    stamp('p2')
    a(f"""
    s_mov_b64 exec, -1
    s_cmp_lt_u32 s{sP0}, s{sE0}
    s_cselect_b32 s{sNT}, 0, 1
    s_cselect_b32 s{sNX}, s{sP0}, s{sP1}
    s_cselect_b32 s{sT}, 128, 0
    s_add_u32 s{sP0}, s{sP0}, s{sT}
    s_sub_u32 s{sT}, 128, s{sT}
    s_add_u32 s{sP1}, s{sP1}, s{sT}
    s_waitcnt vmcnt({PF}) lgkmcnt(0)
    s_barrier
""")
    stamp('sorted')

    def meta_reads():
        a(f"v_add_u32_sdwa v{TM}, s{sNX}, v{vP2} {SDWA} src0_sel:DWORD src1_sel:WORD_0")
        a(f"v_and_b32 v{BT}, -32, v{TM}")
        a(f"ds_read_b128 {v(M, 4)}, v{BT}")
        a(f"ds_read_b128 {v(M + 4, 4)}, v{BT} offset:16")
        a(f"ds_read_b64 {v(TM, 2)}, v{TM}")

    def loads(h):
        D = DA if h == 0 else DB
        for e in range(8):
            if h == 0:
                a(f"v_mad_u32_u16 v{M + e}, v{M + e}, s{s512}, v{vL16} op_sel:[1,0,0,0]")
            a(f"buffer_load_dwordx4 {v(D + 4 * e, 4)}, v{M + e}, {X}, 0 offen" + (" offset:256" if h else ""))

    def tr_addr():
        for i in range(2):
            a(f"v_xor_b32_sdwa v{TM + i}, v{TM + i}, v{vP2} {SDWA} src0_sel:WORD_0 src1_sel:WORD_1")
        for i in range(2):
            a(f"v_min_u32 v{TM + i}, s{sZI}, v{TM + i}")
        for i in range(2):
            a(f"v_lshl_add_u32 v{TM + i}, v{TM + i}, 3, s{sCB}")

    def tr_reads():
        a(f"ds_read_b64_tr_b16 {v(A, 2)}, v{TM}")
        a(f"ds_read_b64_tr_b16 {v(A + 2, 2)}, v{TM + 1}")

    def half(t, h, lg):
        D = DA if h == 0 else DB
        pairs = [(0, 2), (4, 6), (1, 3), (5, 7)]

        def perms(j):
            r, p = j >> 1, j & 1
            for k, (e0, e1) in enumerate(pairs):
                a(f"v_perm_b32 v{BT + 4 * (j & 1) + k}, v{D + 4 * e1 + r}, v{D + 4 * e0 + r}, s{sHI if p else sLO}")
        perms(0)
        for j in range(8):
            if j + 1 < 8:
                perms(j + 1)
            if j == 0 and lg is not None:
                a(f"s_waitcnt lgkmcnt({lg})")
            c = v(ACC + 64 * t + (8 * h + j) * 4, 4)
            a(f"v_mfma_f32_16x16x32_bf16 {c}, {v(A, 4)}, {v(BT + 4 * (j & 1), 4)}, {c}")

    sPF = 38
    if OPT['spf']:
        a(f"""
    s_and_b32 s{sPF}, s2, 31
    s_lshl_b32 s{sPF}, s{sPF}, 3
    s_add_u32 s{sPF}, s{sPF}, s{sWV}
    s_lshl_b32 s{sPF}, s{sPF}, 7
    s_add_u32 s{sPF}, s{sPF}, {OPT['spo'] << 20}
""")
    if OPT['prio'] >= 1:
        a(f"""
    s_cmp_lt_u32 s{sWV}, 4
    s_cselect_b64 vcc, -1, 0
    s_cbranch_scc1 k2_lop
    s_setprio 1
k2_lop:
""")
    pcnt = [0]

    def tprio(p):
        pcnt[0] += 1
        a(f"""
    s_cbranch_vccz k2_pr{pcnt[0]}
    s_setprio {p}
k2_pr{pcnt[0]}:
""")

    def spf():
        for k in range(OPT['spf']):
            if OPT['spw']:
                a(f"s_buffer_load_dwordx2 s[72:73], {X}, s{sPF} offset:{k * 32768 + 60}")
            else:
                a(f"s_buffer_load_dword s72, {X}, s{sPF} offset:{k * 32768}")
        if OPT['spf']:
            a(f"s_add_u32 s{sPF}, s{sPF}, {OPT['spf'] * 32768}")
    a(f"""
    s_cmp_ge_u32 s{sNX}, s{sE1}
    s_cbranch_scc1 k2_empty
""")
    meta_reads()
    a("s_waitcnt lgkmcnt(1)")
    loads(0)
    loads(1)
    a("s_waitcnt lgkmcnt(0)")
    tr_addr()
    tr_reads()
    stamp('first')
    a(f"""
    s_cmp_lg_u32 s{sRND}, 0
    s_cbranch_scc1 k2_noz
""")
    zero(ZE, 64)
    a("k2_noz:")
    if 'it1' in SMAP:
        a("s_waitcnt vmcnt(8)")
        stamp('it1')
    a(f"""
    s_cmp_eq_u32 s{sNT}, 0
    s_cbranch_scc0 k2_stub1
""")
    for t in range(2):
        po, eo, ps, es = (sP1, sE1, sP0, sE0) if t == 0 else (sP0, sE0, sP1, sE1)
        a(f"""
k2_stub{t}:
    s_cmp_lt_u32 s{po}, s{eo}
    s_cbranch_scc1 k2_oth{t}
    s_cmp_lt_u32 s{ps}, s{es}
    s_cbranch_scc0 k2_tail{t}
    s_mov_b32 s{sNX}, s{ps}
    s_add_u32 s{ps}, s{ps}, 128
    s_mov_b32 s{sNT}, {t}
    s_branch k2_body{t}
k2_oth{t}:
    s_mov_b32 s{sNX}, s{po}
    s_add_u32 s{po}, s{po}, 128
    s_mov_b32 s{sNT}, {1 - t}
k2_body{t}:
""")
        if OPT['prio'] == 2:
            tprio(2 - 2 * t)
        if OPT['prio'] == 3:
            tprio(2)
        meta_reads()
        a("s_waitcnt vmcnt(8)")
        half(t, 0, 3)
        a("s_waitcnt lgkmcnt(0)")
        loads(0)
        spf()
        tr_addr()
        if OPT['prio'] == 3 or (OPT['prio'] == 4 and t == 1):
            tprio(0)
        if OPT['prio'] == 4 and t == 0:
            tprio(2)
        a("s_waitcnt vmcnt(8)")
        half(t, 1, None)
        loads(1)
        tr_reads()
        a(f"s_cmp_eq_u32 s{sNT}, 0")
        a(f"s_cbranch_scc1 k2_stub0")
        if t == 1:
            a("s_branch k2_stub1")
    a(f"""
k2_empty:
    s_cmp_lg_u32 s{sRND}, 0
    s_cbranch_scc1 k2_done
""")
    zero(ZE, 64)
    a("s_branch k2_done")
    for t in range(2):
        a(f"k2_tail{t}:")
        a("s_waitcnt vmcnt(8)")
        half(t, 0, 0)
        a("s_waitcnt vmcnt(0)")
        half(t, 1, None)
        if t == 0:
            a("s_branch k2_done")
    a(f"""
k2_done:
    {"s_setprio 0" if OPT['prio'] >= 2 else ""}
    s_waitcnt vmcnt(0)
    v_mbcnt_lo_u32_b32 v{LANE}, -1, 0
    v_mbcnt_hi_u32_b32 v{LANE}, -1, v{LANE}
    s_cmp_eq_u32 s{sMORE}, 0
    s_cbranch_scc1 k2_fin
    s_add_u32 s{sRND}, s{sRND}, 128
    s_barrier
    s_branch k2_round
k2_fin:
""")
    stamp('mainend')
    a(f"""
    v_lshrrev_b32 v3, 4, v{LANE}
    s_lshl_b32 s{sT}, s{sWV}, 1
    v_lshl_add_u32 v4, v3, 4, s{sT}
    s_lshr_b32 s{sT}, s{sWV}, 1
    s_add_u32 s{sT}, s{sT}, 48
    v_min_u32 v4, s{sT}, v4
    v_mul_u32_u24 v4, {ROW}, v4
    v_bfe_u32 v5, v{LANE}, 3, 1
    v_mul_u32_u24 v5, 640, v5
    v_and_b32 v6, 7, v{LANE}
    v_lshl_add_u32 v5, v6, 4, v5
    v_add_u32 v4, v4, v5
    s_bitcmp0_b32 s{sWV}, 0
    s_cselect_b32 s{sT + 1}, -1, 0xffff
    s_mov_b32 s{sT + 3}, 0xffff
""")

    def R(t, h, q, jj):
        return ACC + 64 * t + (8 * h + jj) * 4 + q
    DP = "row_mask:0xf bank_mask:0xc"
    for t in range(2):
        for jj in range(8):
            a(f"v_add_f32_dpp v{R(t, 0, 1, jj)}, v{R(t, 1, 3, jj)}, v{R(t, 0, 1, jj)} quad_perm:[0,1,2,3] {DP}")
            a(f"v_sub_f32_dpp v{R(t, 0, 2, jj)}, v{R(t, 1, 1, jj)}, v{R(t, 0, 2, jj)} row_shr:8 {DP}")
            a(f"v_subrev_f32_dpp v{R(t, 0, 3, jj)}, v{R(t, 1, 1, jj)}, v{R(t, 0, 3, jj)} quad_perm:[0,1,2,3] {DP}")
            a(f"v_add_f32_dpp v{R(t, 0, 1, jj)}, v{R(t, 1, 2, jj)}, v{R(t, 0, 1, jj)} row_shr:8 {DP}")
            a(f"v_subrev_f32_dpp v{R(t, 1, 2, jj)}, v{R(t, 1, 3, jj)}, v{R(t, 1, 2, jj)} row_shr:8 {DP}")
        regs = [(0, 0), (0, 1), (0, 2), (0, 3), (1, 0), (1, 2)]
        for u, (h, q) in enumerate(regs):
            for k in range(4):
                a(f"v_cvt_pk_bf16_f32 v{DA + 32 * t + 4 * u + k}, v{R(t, h, q, 2 * k)}, v{R(t, h, q, 2 * k + 1)}")
        if t == 0:
            stamp('dpp0')
            a(f"""
    s_cmp_ge_u32 s{sTOT}, {SEND}
    s_cbranch_scc1 k2_nob3
    s_barrier
k2_nob3:
""")
        hi = sT + 1 + 2 * t
        a(f"s_mov_b32 exec_hi, s{hi}")
        for u in range(5):
            a(f"ds_write_b128 v4, {v(DA + 32 * t + 4 * u, 4)} offset:{t * ROW + u * 128}")
        a(f"s_mov_b32 exec_lo, 0xff00ff00")
        a(f"s_and_b32 exec_hi, s{hi}, 0xff00ff00")
        a(f"ds_write_b128 v4, {v(DA + 32 * t + 20, 4)} offset:{t * ROW + 640}")
        a("s_mov_b64 exec, -1")
        stamp(f'sw{t}')
    vRA, vO1, vO2, vS0, vS2, vS3, vS4 = 4, 5, 6, 7, 8, 9, 10
    a(f"""
    s_lshr_b32 s{sT}, s{sWV}, 2
    s_lshl_b32 s{sT}, s{sT}, 5
    v_and_b32 v11, 15, v{LANE}
    v_add_u32 v12, s{sT}, v11
    v_mul_u32_u24 v{vRA}, {ROW}, v12
    v_lshl_add_u32 v{vRA}, v3, 4, v{vRA}
    s_and_b32 s{sT}, s{sWV}, 3
    s_lshl_b32 s{sT}, s{sT}, 5
    s_lshl_b32 s{sT + 1}, s2, 9
    s_add_u32 s{sT}, s{sT}, s{sT + 1}
    v_lshl_add_u32 v{vO1}, v3, 3, s{sT}
    v_lshl_add_u32 v{vO1}, v12, 17, v{vO1}
    s_mov_b32 s{sT + 1}, 0xbfb8aa3b
    s_cmp_ge_u32 s{sWV}, 4
    s_cbranch_scc1 k2_gb
    v_add_u32 v{vO2}, {16 << 17}, v{vO1}
    s_waitcnt vmcnt(0) lgkmcnt(0)
    s_barrier
""")
    stamp('sbar')
    slot = dict(F0=0, F21=1, F22=2, F23=3, F32=4, F31=5, F1=6, F43=7, F42=8, F33=9, F41=10)
    terms = {0: [(0, 'F0'), (1, 'F1')]}
    for i in (1, 2, 3):
        terms[i] = [(2, f'F2{i}'), (3, f'F3{i}'), (4, f'F4{i}')]
    NB, AH = 24, 12
    BB = 160
    OA = 128

    def full_seq(u):
        sq = []
        for ti in range(3):
            for h in range(2):
                for o in range(4):
                    if ti < len(terms[o]):
                        t, f = terms[o][ti]
                        sq.append(dict(addr=vRA, off=u * 16 * ROW + slot[f] * 128 + h * 64, w=2 * t + h,
                                       d=OA + 16 * u + 4 * o, first=(ti == 0 and h == 0), swap=False))
        return sq

    def small_seq():
        sq = []
        c0 = [(vS0, 0, 0), (vS0, 6 * 128, 1)]
        c1 = [(vS2, 0, 2), (vS3, 0, 3), (vS4, 0, 4)]
        for ti in range(3):
            for h in range(2):
                for o, c in enumerate((c0, c1)):
                    if ti < len(c):
                        ad, off, t = c[ti]
                        sq.append(dict(addr=ad, off=off + h * 64, w=2 * t + h, d=OA + 16 + 4 * o,
                                       first=(ti == 0 and h == 0), swap=True))
        return sq

    def sigm(g, src, n):
        for i in range(n):
            a(f"v_mul_f32 v{g + i}, s{sT + 1}, v{src + i}")
        for i in range(n):
            a(f"v_exp_f32 v{g + i}, v{g + i}")
        for i in range(n):
            a(f"v_add_f32 v{g + i}, 1.0, v{g + i}")
        for i in range(n):
            a(f"v_rcp_f32 v{g + i}, v{g + i}")

    def finish(u):
        o0 = OA + 16 * u
        g = 12 + 4 * u
        vo = vO1 if u == 0 else vO2
        sigm(g, o0, 4)
        a(f"v_cvt_pk_bf16_f32 v{o0}, v{o0}, v{o0 + 1}")
        a(f"v_cvt_pk_bf16_f32 v{o0 + 1}, v{o0 + 2}, v{o0 + 3}")
        a(f"buffer_store_dwordx2 {v(o0, 2)}, v{vo}, {O}, 0 offen{OSC}")
        for o in range(1, 4):
            b = o0 + 4 * o
            for i in range(4):
                a(f"v_mul_f32 v{b + i}, v{b + i}, v{g + i}")
            a(f"v_cvt_pk_bf16_f32 v{b}, v{b}, v{b + 1}")
            a(f"v_cvt_pk_bf16_f32 v{b + 1}, v{b + 2}, v{b + 3}")
            a(f"buffer_store_dwordx2 {v(b, 2)}, v{vo}, {O}, 0 offen offset:{128 * o}{OSC}")

    def finish_small():
        o0, o1 = OA + 16, OA + 20
        for o in (o0, o1):
            a(f"v_add_f32 v{o}, v{o}, v{o + 1}")
            a(f"v_add_f32 v{o + 2}, v{o + 2}, v{o + 3}")
        for o in (o0, o1):
            a(f"v_add_f32 v{o}, v{o}, v{o + 2}")
        sigm(16, o0, 1)
        a(f"""
    v_cmp_gt_u32 vcc, 16, v{LANE}
    v_mul_f32 v{o1}, v{o1}, v16
    v_cndmask_b32 v{o1}, v{o1}, v{o0}, vcc
    v_cvt_pk_bf16_f32 v{o1}, v{o1}, v{o1}
    buffer_store_short v{o1}, v{vO2}, {O}, 0 offen{OSC}
""")

    def gemm(sq, fin_at, fin2):
        n = len(sq)

        def rd(i):
            a(f"ds_read_b128 {v(BB + 4 * (i % NB), 4)}, v{sq[i]['addr']} offset:{sq[i]['off']}")
        for i in range(AH):
            rd(i)
        for i in range(n):
            e = sq[i]
            if i + AH < n:
                rd(i + AH)
            a(f"s_waitcnt lgkmcnt({min(AH, n - 1 - i)})")
            d = v(e['d'], 4)
            x, y = v(WF + 4 * e['w'], 4), v(BB + 4 * (i % NB), 4)
            if e['swap']:
                x, y = y, x
            a(f"v_mfma_f32_16x16x32_bf16 {d}, {x}, {y}, {'0' if e['first'] else d}")
            if i == fin_at:
                finish(0)
                stamp('fin0')
        fin2()
    gemm(full_seq(0) + full_seq(1), 27, lambda: finish(1))
    a("s_branch k2_out")
    a(f"""
k2_gb:
    v_and_b32 v12, 3, v{LANE}
    v_mul_u32_u24 v{vS0}, {ROW}, v12
    v_lshl_add_u32 v{vS0}, v3, 4, v{vS0}
    v_add_u32 v{vS0}, {48 * ROW}, v{vS0}
    v_and_b32 v12, 12, v{LANE}
    v_lshl_add_u32 v{vS2}, v12, 5, v{vS0}
    s_movk_i32 s{sT + 2}, 0x9450
    v_bfe_u32 v{vS3}, s{sT + 2}, v12, 4
    s_movk_i32 s{sT + 2}, 0x78a0
    v_bfe_u32 v{vS4}, s{sT + 2}, v12, 4
    v_lshl_add_u32 v{vS3}, v{vS3}, 7, v{vS0}
    v_lshl_add_u32 v{vS4}, v{vS4}, 7, v{vS0}
    s_add_u32 s{sT}, s{sT}, {48 << 17}
    v_lshl_add_u32 v{vO2}, v3, 7, s{sT}
    v_lshl_add_u32 v{vO2}, v11, 1, v{vO2}
    s_waitcnt vmcnt(0) lgkmcnt(0)
    s_barrier
""")
    stamp('sbar')
    gemm(full_seq(0) + small_seq(), 27, finish_small)
    a("k2_out:")
    if OPT['stamps']:
        stamp('gend')
        a(f"""
    s_waitcnt vmcnt(0) lgkmcnt(0)
    s_memrealtime s[20:21]
    s_lshl_b32 s{sT}, s2, 3
    s_add_u32 s{sT}, s{sT}, s{sWV}
    s_lshl_b32 s{sT}, s{sT}, 6
    s_add_u32 s{sT}, s{sT}, 0xB00000
    v_mov_b32 v4, s{sT}
    s_waitcnt lgkmcnt(0)
""")
        for i in range(7):
            a(f"v_mov_b32 v{8 + 2 * i}, s{88 + 2 * i}")
            a(f"v_mov_b32 v{9 + 2 * i}, s{89 + 2 * i}")
        a(f"v_mov_b32 v22, s20")
        a(f"v_mov_b32 v23, s21")
        a("s_mov_b64 exec, 1")
        for i in range(4):
            a(f"global_store_dwordx4 v4, {v(8 + 4 * i, 4)}, s[{sW}:{sW + 1}] offset:{16 * i}")
    a("""
k2_end:
    s_endpgm
""")
    return a.lines, LDS


def main():
    out = sys.argv[1] if len(sys.argv) > 1 else f"cdna_kernels/{NAME}.s"
    ref = open(f"cdna_kernels/{NAME}.s.ref").read().split('\n')
    hdr = [l for l in ref if l.startswith(';') and '@launch' not in l and 'Override' not in l and 'grid=ceil' not in l]
    k1, lds1 = gen_k1()
    k2, lds2 = gen_k2()
    k1, n1 = pad_hazards(k1, OPT.get('verbose', 0))
    k2, n2 = pad_hazards(k2, OPT.get('verbose', 0))
    txt = hdr + [
        f"; @launch kernel=k1_kernel grid=(256,1,1) block=(832,1,1) lds={lds1}",
        f"; @launch kernel=k2_kernel grid=(256,1,1) block=(512,1,1) lds={lds2}",
        '.amdgcn_target "amdgcn-amd-amdhsa--gfx950"', '.text']
    for nm, body in (("k1_kernel", k1), ("k2_kernel", k2)):
        txt += [f".globl {nm}", ".p2align 8", f".type {nm},@function"] + body
    txt += ['.section .rodata,"a"']
    for nm, vg in (("k1_kernel", 52), ("k2_kernel", 256)):
        txt += [".p2align 6", f".amdhsa_kernel {nm}",
                f"  .amdhsa_next_free_vgpr {vg}", "  .amdhsa_next_free_sgpr 102",
                f"  .amdhsa_accum_offset {vg}", "  .amdhsa_group_segment_fixed_size 0",
                "  .amdhsa_kernarg_size 96", "  .amdhsa_user_sgpr_count 2",
                "  .amdhsa_user_sgpr_kernarg_segment_ptr 1", "  .amdhsa_system_sgpr_workgroup_id_x 1",
                ".end_amdhsa_kernel"]
    open(out, 'w').write('\n'.join(txt) + '\n')
    print(f"wrote {out}: pads k1={n1} k2={n2}, lines {len(txt)}")


main()
```

```python
import sys
from asmlib import Asm, v, s, pad_hazards

NAME = "gather_scatter__tensor_product_equiv_equiformer__graph"
OPT = dict(sl0=0, sl1=0, w7d=1, wb=2, dr=1, notbl=0, nodma=0, b1=2, pp=1, dbg=0, gsc=1, nst=7, stamps=0, prio=1, osc=0, lst=0, tlim=400, skip=-1, wpos=0, nt=3, ze=0, pf=1)
for a in sys.argv[2:]:
    k, val = a.split('=')
    OPT[k] = int(val, 0)

N = 12500
NCH = 250
CH = 3200
GR_OFF = 0x1000
TBL_OFF = 0xD00000
ALT = 0x1000000
WS_SIZE = ALT + 0xD80000
ST_OFF = 0xE00000
SDWA = "dst_sel:DWORD dst_unused:UNUSED_PAD"
KN = NAME + "_kernel"


def wave_scan(a, r):
    for m in ("row_shr:1", "row_shr:2", "row_shr:4", "row_shr:8"):
        a(f"v_add_u32_dpp {v(r)}, {v(r)}, {v(r)} {m} row_mask:0xf bank_mask:0xf")
    a(f"v_add_u32_dpp {v(r)}, {v(r)}, {v(r)} row_bcast:15 row_mask:0xa bank_mask:0xf")
    a(f"v_add_u32_dpp {v(r)}, {v(r)}, {v(r)} row_bcast:31 row_mask:0xc bank_mask:0xf")


def gen_k2():
    a = Asm()
    LDS = 163840
    HIST, PH, BTAB, FLAG = 0, 1024, 2048, 3072
    RAWW = 3136
    WRAD = RAWW + 40960
    STG = WRAD + 1280
    CB = 131040
    TENT = STG + CH * 16
    ZI = 4096
    ROW = 1440
    vL16, vP2, TM, A, BT, M, WF, DA, DB, ACC = 0, 1, 2, 4, 8, 16, 24, 64, 96, 128
    LANE, TID = 2, 3
    G, ADDR, BIN, META, RANK = 64, 96, 104, 112, 120
    DST, SRC, EA, RH, BOFF, RNK, SCN, UP, PG = 128, 136, 144, 148, 160, 168, 176, 184, 192
    sC = 3
    sX, sW, sO = 4, 8, 12
    sWV, sRND, sMORE, sTOT = 16, 17, 18, 19
    sP0, sE0, sP1, sE1, sNX, sNT = 20, 21, 22, 23, 24, 25
    sLO, sHI, s512, sZI, sCB, sMSK = 26, 27, 28, 29, 30, 31
    sT = 32
    sRST, sFIRST = 36, 37
    sDBG = 38
    sM = 40
    pR, pE, pS, pD, pWR, pW0, pW1 = 72, 74, 76, 78, 80, 82, 84
    sEP, sTAG = 86, 87
    sAM, sTM, sCNT, sK = 20, 22, 24, 25
    X = f"s[{sX}:{sX + 3}]"
    W = f"s[{sW}:{sW + 3}]"
    O = f"s[{sO}:{sO + 3}]"
    OSC = {0: "", 1: " sc1", 2: " sc0 sc1", 3: " nt"}[OPT['osc']]
    NT = " nt" if OPT['nt'] & 1 else ""
    NT2 = " nt" if OPT['nt'] & 2 else ""

    SMAP = {1: dict(start=0, tbl=1, lastmeta=2, sorted=3, mainend=4, sbar=5, gend=6),
            2: dict(start=0, drained=1, bar2p=2, rest=3, bar3=4, stored=5, tbl=6),
            7: dict(start=0, bar2p=1, n7b=2, g0=3, e0=4, e3=5, rest=6),
            9: dict(start=0, issued=1, dst=2, bar2p=3, g0=4, rest=5, bar3=6),
            6: dict(start=0, issued=1, pre1=2, dst=3, bar2p=4, rest=5, bar3=6),
            3: dict(start=0, drained=1, dissued=2, wdone=3, lastmeta=4, bar2=5, sorted=6),
            8: dict(start=0, tbl=1, expd=2, drained=3, dissued=4, lastmeta=5, sorted=6),
            4: dict(start=0, mainend=1, dpp0=2, sw1=3, sbar=4, fin0=5, gend=6),
            5: dict(start=0, bar2=1, scan=2, p2=3, sorted=4, first=5, it1=6)}.get(OPT['stamps'], {})

    def stamp(nm):
        if nm in SMAP:
            i = SMAP[nm]
            a(f"s_memrealtime s[{88 + 2 * i}:{89 + 2 * i}]")

    def m1(i):
        return f"s[{sM + 4 * i}:{sM + 4 * i + 1}]"

    def m2(i):
        return f"s[{sM + 4 * i + 2}:{sM + 4 * i + 3}]"

    def sp(i):
        return f"s[{i}:{i + 1}]"

    a(f"""
{KN}:
    s_cmp_ge_u32 s2, 256
    s_cbranch_scc1 k2_end
""")
    stamp('start')
    a(f"""
    s_load_dwordx16 s[72:87], s[0:1], 8
    s_load_dwordx2 s[{sW}:{sW + 1}], s[0:1], 88
    s_load_dwordx2 s[{sX}:{sX + 1}], s[0:1], 0
    s_load_dwordx2 s[{sO}:{sO + 1}], s[0:1], 72
    v_lshrrev_b32 v3, 6, v0
    s_mov_b32 s{sC}, s2
    v_readfirstlane_b32 s{sWV}, v3
    s_and_b32 s{sT}, s2, 7
    s_lshr_b32 s2, s2, 3
    s_lshl_b32 s{sT}, s{sT}, 5
    s_or_b32 s2, s2, s{sT}
    s_mov_b32 s{sX + 2}, {N * 512}
    s_mov_b32 s{sX + 3}, 0x00020000
    s_mov_b32 s{sW + 2}, {WS_SIZE}
    s_mov_b32 s{sW + 3}, 0x00020000
    s_mov_b32 s{sO + 2}, {N * 512}
    s_mov_b32 s{sO + 3}, 0x00020000
    s_mov_b32 s{sRND}, 0
    s_mov_b32 s{sRST}, 0
""")
    if OPT['skip'] >= 0:
        a(f"""
    s_cmp_eq_u32 s{sC}, {OPT['skip']}
    s_cselect_b32 s{sC}, 255, s{sC}
""")
    def wdma():
        a(f"""
    s_lshl_b32 s{sT + 2}, s{sWV}, 11
    s_add_u32 m0, s{sT + 2}, {RAWW}
    v_add_u32 v4, s{sT + 2}, v9
    s_mul_i32 s{sT + 2}, s{sWV}, 3072
    global_load_lds_dwordx4 v4, {sp(pW0)}
    global_load_lds_dwordx4 v4, {sp(pW0)} offset:1024
    s_add_u32 m0, s{sT + 2}, {RAWW + 16384}
    v_add_u32 v5, s{sT + 2}, v9
    global_load_lds_dwordx4 v5, {sp(pW1)}
    global_load_lds_dwordx4 v5, {sp(pW1)} offset:1024
    global_load_lds_dwordx4 v5, {sp(pW1)} offset:2048
""")
    el = [f"global_load_dwordx4 {v(DST, 4)}, v4, {sp(pD)}{NT}",
          f"global_load_dwordx4 {v(DST + 4, 4)}, v7, {sp(pD)}{NT}",
          f"global_load_dwordx4 {v(SRC, 4)}, v4, {sp(pS)}{NT}",
          f"global_load_dwordx2 {v(EA, 2)}, v5, {sp(pE)}{NT}",
          f"global_load_dwordx4 {v(RH, 4)}, v6, {sp(pR)}{NT2}",
          f"global_load_dwordx2 {v(RH + 4, 2)}, v6, {sp(pR)} offset:16{NT2}",
          f"global_load_dwordx4 {v(SRC + 4, 4)}, v7, {sp(pS)}{NT}",
          f"global_load_dwordx2 {v(EA + 2, 2)}, v5, {sp(pE)} offset:{CH}{NT}",
          f"global_load_dwordx4 {v(RH + 6, 4)}, v8, {sp(pR)}{NT2}",
          f"global_load_dwordx2 {v(RH + 10, 2)}, v8, {sp(pR)} offset:16{NT2}"]
    a(f"""
k2_round:
    v_mbcnt_lo_u32_b32 v{LANE}, -1, 0
    v_mbcnt_hi_u32_b32 v{LANE}, -1, v{LANE}
    s_lshl_b32 s{sT}, s{sWV}, 6
    v_add_u32 v{TID}, s{sT}, v{LANE}
    v_mov_b32 v12, 0
    v_lshlrev_b32 v14, 2, v{TID}
    ds_write_b32 v14, v12 offset:{HIST}
    s_mul_i32 s{sT}, s{sC}, {CH * 4}
    s_mul_i32 s{sT + 1}, s{sC}, {CH * 2}
    s_mul_i32 s{sT + 2}, s{sC}, {CH * 6}
    v_lshl_add_u32 v4, v{TID}, 4, s{sT}
    v_lshl_add_u32 v5, v{TID}, 3, s{sT + 1}
    v_mul_u32_u24 v6, 24, v{TID}
    v_add_u32 v6, s{sT + 2}, v6
    v_add_u32 v7, {CH * 2}, v4
    v_add_u32 v8, {CH * 3}, v6
    v_cmp_gt_u32 vcc, {CH // 8}, v{TID}
    v_lshlrev_b32 v9, 4, v{LANE}
    s_mov_b64 {sp(sAM)}, vcc
    s_or_b32 s{sFIRST}, s{sRST}, s{sRND}
    s_cmp_ge_u32 s{sC}, {NCH}
    s_cselect_b64 vcc, 0, vcc
    s_waitcnt lgkmcnt(0)
    s_cbranch_vccz k2_noedge
    s_mov_b64 exec, vcc
""")
    for i in range(10):
        if i == OPT['b1']:
            a("s_barrier")
        a(el[i])
    a(f"""
    s_mov_b64 exec, -1
    s_branch k2_init
k2_noedge:
    s_cmp_lg_u32 s{sWV}, 7
    s_cbranch_scc1 k2_nb1
    s_cmp_lg_u32 s{sFIRST}, 0
    s_cbranch_scc1 k2_noep
    s_load_dword s{sEP}, s[{sW}:{sW + 1}], 0
k2_noep:
    v_min_u32 v99, {39 * 16}, v9
    s_and_b32 s{sT}, s2, 31
    s_mul_i32 s{sT + 1}, s{sT}, 768
    s_lshl_b32 s{sT}, s{sT}, 9
    v_min_u32 v100, 3, v{LANE}
    v_min_u32 v101, 5, v{LANE}
    v_lshl_add_u32 v100, v100, 7, s{sT}
    v_lshl_add_u32 v101, v101, 7, s{sT + 1}
    global_load_dwordx4 v[64:67], v99, {sp(pWR)}
    global_load_dword v100, v100, {sp(pW0)}
    global_load_dword v101, v101, {sp(pW1)}
k2_nb1:
    s_barrier
k2_init:
""")
    stamp('issued')
    if OPT['dbg'] == 3:
        for k, n in enumerate((8, 7, 6, 4, 3, 0)):
            a(f"s_waitcnt vmcnt({n})")
            a(f"s_memrealtime s[{90 + 2 * k}:{91 + 2 * k}]")
        a("s_branch k2_out")
    a(f"""
    v_mov_b32 v4, -1
    v_mov_b32 v5, -1
    v_mov_b32 v6, -1
    v_mov_b32 v7, -1
    v_mov_b32 v13, 0
    v_lshlrev_b32 v8, 2, v14
    v_add_u32 v8, {CB - 24576}, v8
    ds_write_b128 v8, v[4:7]
    ds_write_b128 v8, v[4:7] offset:8192
    ds_write_b128 v8, v[4:7] offset:16384
    s_lshl_b32 s{sT}, s{sWV}, 12
    s_add_u32 s{sT}, s{sT}, {CB}
    v_mov_b32 v16, 16
    v_mov_b32 v17, 16
    v_mov_b32 v18, 16
    v_mov_b32 v19, 16
    v_add_u32 v8, s{sT}, v9
    ds_write_b128 v8, v[16:19]
    ds_write_b128 v8, v[16:19] offset:1024
    v_mov_b32 v8, {CB + ZI * 8}
    s_mov_b64 exec, 1
    ds_write_b64 v12, v[12:13] offset:{FLAG}
    ds_write_b64 v8, v[12:13]
    s_mov_b64 exec, -1
    v_lshl_add_u32 v17, v{LANE}, 5, s{sT}
    v_lshl_add_u32 v18, v{LANE}, 2, s{sT}
    v_lshl_add_u32 v19, v{LANE}, 3, s{sT}
    s_lshl_b32 s{sT}, s{sWV}, 9
    v_add_u32 v{META}, s{sT}, v{LANE}
    s_lshl_b32 s{sT}, s{sWV}, 5
    v_add_u32 v16, s{sT}, v{LANE}
    s_mov_b32 s{sTM}, -1
    s_mov_b32 s{sTM + 1}, 0
    s_mov_b32 s{sT}, {TENT}
    v_lshl_add_u32 v10, v16, 2, s{sT}
    v_mul_u32_u24 v16, {CH * 16}, v16
    v_add_u32 v16, s{sRND}, v16
    s_cmp_lg_u32 s{sRST}, 0
    s_cselect_b32 s{sMORE}, {ALT}, 0
    s_cselect_b32 s{sCNT}, {OPT['tlim'] - 16}, 0
    v_mov_b32 v20, 0
    v_and_b32 v{vL16}, 15, v{LANE}
    v_lshlrev_b32 v{vL16}, 4, v{vL16}
    v_lshrrev_b32 v{vP2}, 2, v{LANE}
    v_lshlrev_b32 v{vP2}, 3, v{vP2}
    v_lshl_or_b32 v{vP2}, v{LANE}, 30, v{vP2}
    v_and_b32 v15, 3, v{LANE}
    v_lshlrev_b32 v11, 3, v15
    v_lshlrev_b32 v5, 12, v15
    v_cmp_eq_u32 vcc, 3, v15
    v_mov_b32 v15, 0x7f
    s_mov_b32 s{sLO}, 0x05040100
    v_cndmask_b32 v15, 0, v15, vcc
    s_mov_b32 s{sHI}, 0x07060302
    s_movk_i32 s{s512}, 512
    s_movk_i32 s{sZI}, {ZI}
    s_mov_b32 s{sCB}, {CB}
    s_mov_b32 s{sMSK}, 0xffffc000
    s_lshr_b32 s{sK}, s2, 2
    s_lshl_b32 s{sK}, s{sK}, 12
    s_add_u32 s{sK}, s{sK}, {TBL_OFF}
    v_bfe_u32 v8, v{LANE}, 2, 2
    v_lshl_add_u32 v11, v8, 7, v11
    v_lshrrev_b32 v8, 4, v{LANE}
    v_lshl_add_u32 v11, v8, 10, v11
    v_lshlrev_b32 v13, 5, v8
    s_and_b32 s{sT}, s{sWV}, 3
    s_lshl_b32 s{sT}, s{sT}, 5
    v_add_u32 v11, s{sT}, v11
    v_mov_b32 v14, 4
    v_mov_b32 v4, 16
""")
    for j in range(1, 8):
        a(f"v_add_u32 v{META + j}, {64 * j}, v{META}")
    stamp('pre1')
    a(f"""
    s_cmp_eq_u32 s{sWV}, 7
    s_cbranch_scc1 k2_w7a
    s_cmp_ge_u32 s{sC}, {NCH}
    s_cbranch_scc1 k2_b3
    s_mov_b64 exec, {sp(sAM)}
    s_movk_i32 s{sT}, 12288
""")
    for i in range(8):
        if i % 4 == 0:
            a(f"s_waitcnt vmcnt({9 - i // 4})")
            if i == 0:
                stamp('dst')
        a(f"v_lshlrev_b32_sdwa v{BOFF + i}, 2, v{DST + i} {SDWA} src0_sel:DWORD src1_sel:BYTE_0")
        a(f"ds_add_rtn_u32 v{RNK + i}, v{BOFF + i}, v4 offset:{PH}")
    for i in range(8):
        a(f"v_cmp_le_u32 {m1(i)}, s{sT}, v{DST + i}")
        a(f"v_and_b32 v{DST + i}, 0x3f00, v{DST + i}")
    for i in range(8):
        a(f"v_cndmask_b32 v6, 0, v5, {m1(i)}")
        a(f"v_lshl_or_b32 v{DST + i}, v{DST + i}, 2, v6")
    a(f"""
    s_mov_b64 exec, -1
    s_branch k2_b2
k2_w7a:
    s_waitcnt lgkmcnt(0)
    s_mul_i32 s{sTAG}, s{sEP}, 0x9E3779B1
    s_add_u32 s{sTAG}, s{sTAG}, 0x7F4A7C15
    v_mov_b32 v76, 0
    v_mov_b32 v77, 0
    v_mov_b32 v78, 0
    v_mov_b32 v79, s{sTAG}
    s_mov_b32 s{sT}, 0xffff0000
    ds_write_b32 v12, v79 offset:{FLAG + 16}
    s_waitcnt vmcnt(2)
""")
    for k in range(4):
        a(f"v_lshlrev_b32 v{68 + 2 * k}, 16, v{64 + k}")
        a(f"v_and_b32 v{69 + 2 * k}, s{sT}, v{64 + k}")
    a(f"""
    v_lshlrev_b32 v99, 1, v99
    ds_write_b128 v99, v[68:71] offset:{WRAD}
    ds_write_b128 v99, v[72:75] offset:{WRAD + 16}
    v_lshlrev_b32 v4, 12, v{LANE}
    s_lshl_b32 s{sT}, s{sC}, 4
    s_add_u32 s{sT}, s{sT}, {TBL_OFF}
    s_cmp_ge_u32 s{sC}, {NCH}
    s_cbranch_scc1 k2_pub
k2_b2:
    s_waitcnt lgkmcnt(0)
    s_barrier
""")
    stamp('bar2p')
    H, B = SCN, SCN + 4
    a(f"""
    ds_read_b128 {v(H, 4)}, v9 offset:{PH}
    ds_read_b32 v8, v12 offset:{FLAG + 16}
    s_waitcnt lgkmcnt(1)
    v_add_u32 v{B + 1}, v{H}, v{H + 1}
    v_add_u32 v{B + 2}, v{B + 1}, v{H + 2}
    v_add_u32 v6, v{B + 2}, v{H + 3}
    v_mov_b32 v{B + 3}, v6
""")
    wave_scan(a, 6)
    a(f"""
    v_sub_u32 v{B}, v6, v{B + 3}
    v_add_u32 v{B + 3}, v{B}, v{B + 2}
    v_add_u32 v{B + 2}, v{B}, v{B + 1}
    v_add_u32 v{B + 1}, v{B}, v{H}
    ds_write_b128 v9, {v(B, 4)} offset:{BTAB}
    s_cmp_lg_u32 s{sWV}, 7
    s_cbranch_scc1 k2_n7b
""")
    a(f"""
    v_lshl_or_b32 v76, v{B + 1}, 16, v{B}
    v_lshl_or_b32 v77, v{B + 3}, 16, v{B + 2}
    v_mov_b32 v78, v6
    s_waitcnt lgkmcnt(1)
k2_pub:
    s_cmp_lg_u32 s{sFIRST}, 0
    s_cbranch_scc1 k2_hpub
    buffer_store_dwordx4 v[76:79], v4, {W}, s{sT} offen sc1
    v_mov_b32 v80, 0
    v_mov_b32 v81, 0
    v_mov_b32 v82, 0
    v_mov_b32 v83, 0
k2_w7p:
""")
    if OPT['w7d']:
        a(f"v_mov_b32 v96, v9")
        for g in range(10):
            if g == 4:
                a(f"v_mov_b32 v96, v9")
            a(f"s_mov_b32 m0, {RAWW + 4096 * g}")
            a("s_nop 0")
            for k in range(4):
                a(f"global_load_lds_dwordx4 v96, {sp(pW0 if g < 4 else pW1)}" + (f" offset:{1024 * k}" if k else ""))
            if g not in (3, 9):
                a(f"v_add_u32 v96, 4096, v96")
    a(f"""
    s_bitcmp1_b32 s2, 1
    s_cselect_b64 s[0:1], -1, 0
    s_lshl_b32 s{sT + 1}, s2, 4
    s_mov_b32 s{sT}, 0x000f000f
    v_add_u32 v7, {TENT - CB - 7 * 4096}, v18
    s_waitcnt lgkmcnt(0)
    s_barrier
""")
    for k in range(4):
        a(f"v_and_b32 v4, 2, v{80 + k}")
        a(f"v_cmp_eq_u32 {m1(k)}, 0, v4")
    if OPT['sl0']:
        a(f"s_sleep {OPT['sl0']}")
    if OPT['sl1']:
        a("s_branch k2_tp1")
    a("k2_tpoll:")
    if OPT['sl1']:
        a(f"s_sleep {OPT['sl1']}")
        a("k2_tp1:")
    for k in range(4):
        a(f"buffer_load_dwordx4 {v(64 + 4 * k, 4)}, v9, {W}, s{sK} offen offset:{1024 * k} sc1")
    for k in range(4):
        g = 64 + 4 * k
        a(f"""
    s_waitcnt vmcnt({3 - k})
    v_or3_b32 v4, v{g}, v{g + 1}, v{g + 2}
    v_xor_b32 v5, s{sTAG}, v{g + 3}
    v_and_or_b32 v4, v4, s{sT}, v5
    v_cndmask_b32 v{g}, v{g}, v{g + 1}, s[0:1]
    v_cmp_eq_u32 vcc, 0, v4
    v_cndmask_b32 v{g + 1}, v{g + 1}, v{g + 2}, s[0:1]
    s_and_b64 vcc, vcc, {m1(k)}
    v_alignbit_b32 v{g}, v{g + 1}, v{g}, s{sT + 1}
    s_andn2_b64 {m1(k)}, {m1(k)}, vcc
    v_or_b32 v{g}, 2, v{g}
    v_cndmask_b32 v{80 + k}, v{80 + k}, v{g}, vcc
""")
    a(f"""
    s_or_b64 {m2(0)}, {m1(0)}, {m1(1)}
    s_or_b64 {m2(1)}, {m1(2)}, {m1(3)}
    s_or_b64 vcc, {m2(0)}, {m2(1)}
    s_cbranch_scc0 k2_tok
    s_add_u32 s{sCNT}, s{sCNT}, 1
    s_cmp_lt_u32 s{sCNT}, {OPT['tlim']}
    s_cbranch_scc1 k2_tpoll
""")
    for k in range(4):
        a(f"""
    s_ff1_i32_b64 s{sT + 1}, {m1(k)}
    s_add_u32 s{sT + 2}, s{sT + 1}, {64 * k + 1}
    s_cmp_lt_i32 s{sT + 1}, 0
    s_cselect_b32 s{sT}, s{sT}, s{sT + 2}
""")
    a(f"""
    v_mov_b32 v4, s{sT}
    ds_write_b32 v12, v4 offset:{FLAG + 4}
k2_tok:
    ds_write2st64_b32 v7, v80, v81 offset0:0 offset1:1
    ds_write2st64_b32 v7, v82, v83 offset0:2 offset1:3
    s_branch k2_b3b
k2_n7b:
    s_mov_b64 exec, {sp(sAM)}
""")
    stamp('n7b')
    for i in range(8):
        a(f"ds_read_b32 v{BOFF + i}, v{BOFF + i} offset:{BTAB}")
    a(f"s_mov_b32 s{sT}, 0xffff0000")
    a(f"s_mov_b32 s{sT + 1}, 5497558")
    a(f"s_waitcnt lgkmcnt(9)")
    a(f"v_readfirstlane_b32 s{sTAG}, v8")
    for i in range(8):
        a(f"v_mov_b32 v{PG + 4 * i + 3}, v8")

    def unpack(dst, reg, hi):
        if hi:
            a(f"v_and_b32 v{dst}, s{sT}, v{reg}")
        else:
            a(f"v_lshlrev_b32 v{dst}, 16, v{reg}")
    for i in range(8):
        if i == 0:
            a(f"s_waitcnt vmcnt(4)")
            stamp('g0')
        if i == 4:
            a(f"s_waitcnt vmcnt(0)")
            stamp('rest')
        unpack(UP, EA + i // 2, i & 1)
        for j in range(3):
            hw = 3 * i + j
            unpack(UP + 1 + j, RH + hw // 2, hw & 1)
        for j in range(3):
            a(f"v_mul_f32 v{UP + 1 + j}, v{UP}, v{UP + 1 + j}")
        a(f"v_cvt_pk_bf16_f32 v{PG + 4 * i}, v{UP}, v{UP + 1}")
        a(f"v_cvt_pk_bf16_f32 v{PG + 4 * i + 1}, v{UP + 2}, v{UP + 3}")
        a(f"v_mul_hi_u32_u24 v6, s{sT + 1}, v{SRC + i}")
        a(f"v_lshl_or_b32 v6, v6, 6, v{DST + i}")
        a(f"v_lshl_or_b32 v{PG + 4 * i + 2}, v{SRC + i}, 16, v6")
        if i == 0:
            a("s_waitcnt lgkmcnt(0)")
        a(f"v_add_u32 v{BOFF + i}, v{BOFF + i}, v{RNK + i}")
        a(f"ds_write_b128 v{BOFF + i}, {v(PG + 4 * i, 4)} offset:{STG}")
        stamp(f'e{i}')
    def wbuild():
        T, U = ACC, ACC + 80
        a(f"s_mov_b32 s{sT}, 0xffff0000")

        def rd(f):
            a(f"ds_read_b64_tr_b16 {v(WF + 4 * f, 2)}, v11 offset:{RAWW + f * 4096}")
            a(f"ds_read_b64_tr_b16 {v(WF + 4 * f + 2, 2)}, v11 offset:{RAWW + f * 4096 + 512}")
            a(f"ds_read_b128 {v(T + 8 * f, 4)}, v13 offset:{WRAD + f * 128}")
            a(f"ds_read_b128 {v(T + 8 * f + 4, 4)}, v13 offset:{WRAD + f * 128 + 16}")
        for f in range(3):
            rd(f)
        for f in range(10):
            a(f"s_waitcnt lgkmcnt({4 * min(2, 9 - f)})")
            if f + 3 < 10:
                rd(f + 3)
            for k in range(4):
                a(f"v_lshlrev_b32 v{U + 2 * k}, 16, v{WF + 4 * f + k}")
                a(f"v_and_b32 v{U + 2 * k + 1}, s{sT}, v{WF + 4 * f + k}")
            for k in range(4):
                a(f"v_pk_mul_f32 {v(U + 2 * k, 2)}, {v(U + 2 * k, 2)}, {v(T + 8 * f + 2 * k, 2)}")
            for k in range(4):
                a(f"v_cvt_pk_bf16_f32 v{WF + 4 * f + k}, v{U + 2 * k}, v{U + 2 * k + 1}")
    GSC = {0: "", 1: " sc1", 2: " sc0 sc1", 3: " nt"}[OPT['gsc']]
    a(f"""
k2_b3:
    s_mul_i32 s{sT}, s{sWV}, 7168
    s_mov_b64 exec, -1
    v_add_u32 v8, s{sT}, v9
    s_mul_i32 s{sT}, s{sC}, {CH * 16}
    s_add_u32 s{sT}, s{sT}, {GR_OFF}
    s_add_u32 s{sT}, s{sT}, s{sMORE}
    s_add_u32 s{sT + 1}, s{sT}, 4096
    s_cmp_ge_u32 s{sC}, {NCH}
    s_waitcnt lgkmcnt(0)
    s_barrier
""")
    stamp('bar3')
    a("s_cbranch_scc1 k2_np")
    for j in range(8):
        a(f"ds_read_b128 {v(PG + 4 * j, 4)}, v8 offset:{STG + 1024 * j}")
    a(f"s_cmp_lg_u32 s{sRST}, 0")
    a(f"s_cbranch_scc1 k2_hst")
    a(f"s_cmp_lg_u32 s{sWV}, 6")
    for j in range(8):
        if j == 7:
            a("s_cbranch_scc1 k2_b3b")
        a(f"s_waitcnt lgkmcnt({7 - j})")
        a(f"buffer_store_dwordx4 {v(PG + 4 * j, 4)}, v8, {W}, s{sT + j // 4} offen offset:{1024 * (j % 4)}{GSC}")
    a("k2_b3b:")
    stamp('stored')
    a(f"""
    s_waitcnt lgkmcnt(0)
    s_barrier
    s_mov_b64 exec, {sp(sTM)}
    ds_read_b32 v20, v10
    s_mov_b64 exec, -1
    ds_read_b32 v21, v12 offset:{FLAG + 4}
""")
    stamp('tbl')
    if not OPT['w7d']:
        wdma()
    if OPT['wb'] == 2:
        a(f"""
    s_cmp_lg_u32 s{sRND}, 0
    s_cbranch_scc1 k2_now
""")
        wbuild()
        a("k2_now:")
    Q = G
    a(f"""
    s_waitcnt lgkmcnt(0)
    v_cmp_ne_u32 vcc, 0, v21
    v_and_b32 v4, 1, v20
    v_and_b32 v20, -4, v20
    s_cbranch_vccnz k2_p1h
    v_lshl_add_u32 v16, v4, 24, v16
    v_sub_u32_sdwa v4, v20, v20 {SDWA} src0_sel:WORD_1 src1_sel:WORD_0
    v_mov_b32 v5, v4
    v_add_u32_sdwa v6, v16, v20 {SDWA} src0_sel:DWORD src1_sel:WORD_0
    s_movk_i32 s{sT + 1}, 8192
""")
    for m in ("row_shr:1", "row_shr:2", "row_shr:4", "row_shr:8"):
        a(f"v_add_u32_dpp v5, v5, v5 {m} row_mask:0xf bank_mask:0xf")
    a(f"""
    v_add_u32_dpp v5, v5, v5 row_bcast:15 row_mask:0xa bank_mask:0xf
    s_lshl_b32 s{sT}, s{sWV}, 12
    s_add_u32 s{sT}, s{sT}, {CB}
    v_sub_u32 v4, v5, v4
    v_readlane_b32 s{sTOT}, v5, 31
    v_sub_u32 v6, v6, v4
    v_subrev_u32 v4, s{sRND}, v4
    v_subrev_u32 v5, s{sRND}, v5
    v_med3_i32 v4, v4, 0, s{sT + 1}
    v_med3_i32 v5, v5, 0, s{sT + 1}
    v_lshrrev_b32 v4, 2, v4
    v_lshrrev_b32 v5, 2, v5
    v_add_u32 v4, s{sT}, v4
    v_add_u32 v5, s{sT}, v5
    s_mov_b64 exec, {sp(sTM)}
    ds_add_u32 v4, v6
    ds_sub_u32 v5, v6
    s_mov_b64 exec, -1
    ds_read_b128 {v(Q, 4)}, v17
    ds_read_b128 {v(Q + 4, 4)}, v17 offset:16
    s_sub_u32 s{sTOT}, s{sTOT}, s{sRND}
    s_cmp_le_i32 s{sTOT}, 8192
    s_cbranch_scc1 k2_nomore
    ds_write_b32 v12, v14 offset:{FLAG}
k2_nomore:
""")
    for i in range(8):
        a(f"v_cmp_gt_i32 {m1(i)}, s{sTOT}, v9")
        if i < 7:
            a(f"s_sub_u32 s{sTOT}, s{sTOT}, 1024")
    a("s_waitcnt lgkmcnt(0)")
    for j in range(1, 8):
        a(f"v_add_u32 v{Q + j}, v{Q + j}, v{Q + j - 1}")
    a(f"v_mov_b32 v4, v{Q + 7}")
    wave_scan(a, Q + 7)
    a(f"v_sub_u32 v4, v{Q + 7}, v4")
    for j in range(7):
        a(f"v_add_u32 v{Q + j}, v{Q + j}, v4")
    a(f"""
    ds_write_b128 v17, {v(Q, 4)}
    ds_write_b128 v17, {v(Q + 4, 4)} offset:16
""")
    for j in range(4):
        a(f"ds_read2st64_b32 {v(ADDR + 2 * j, 2)}, v18 offset0:{2 * j} offset1:{2 * j + 1}")
    for i in range(8):
        a(f"s_mov_b64 {m2(i)}, {m1(i)}")
    a(f"""
    s_movk_i32 s{sK}, {GR_OFF - 16}
    s_mov_b32 s{sT + 3}, 0xc000003f
    s_mov_b32 s{sCNT}, 0
""")

    def dload(i):
        a(f"s_mov_b64 exec, {m2(i)}")
        a(f"buffer_load_dwordx4 {v(G + 4 * i, 4)}, v{ADDR + i}, {W}, s{sK} offen sc1")
    stamp('expd')
    if OPT['dr'] or (OPT['wb'] == 0 and not OPT['w7d']):
        a("s_waitcnt vmcnt(0)")
    if (OPT['wb'] == 0 and not OPT['w7d']) or OPT['dr'] == 2:
        a("s_barrier")
    stamp('drained')
    for i in range(8):
        if i % 2 == 0:
            a(f"s_waitcnt lgkmcnt({3 - i // 2})")
        dload(i)
    stamp('dissued')

    if OPT['wb'] == 0:
        a(f"""
    s_cmp_lg_u32 s{sRND}, 0
    s_cbranch_scc1 k2_dchk
    s_mov_b64 exec, -1
""")
        wbuild()
    stamp('wdone')
    a("s_branch k2_dchk")
    a("k2_dpoll:")
    for i in range(8):
        dload(i)
    a("k2_dchk:")
    for i in range(8):
        g = G + 4 * i
        a(f"""
    s_mov_b64 exec, {m2(i)}
    s_waitcnt vmcnt({7 - i})
    v_xor_b32 v4, s{sTAG}, v{g + 3}
    v_and_or_b32 v4, v{g + 2}, s{sT + 3}, v4
    v_cmpx_eq_u32 vcc, 0, v4
    v_bfe_u32 v{BIN + i}, v{g + 2}, 4, 10
    s_andn2_b64 {m2(i)}, {m2(i)}, vcc
    ds_add_rtn_u32 v{RANK + i}, v{BIN + i}, v14 offset:{HIST}
    v_and_or_b32 v{META + i}, v{g + 2}, s{sMSK}, v{META + i}
    ds_write_b64 v19, {v(g, 2)} offset:{512 * i}
""")
        if i == 1:
            a(f"s_or_b64 {sp(sAM)}, {m2(0)}, {m2(1)}")
        if i > 1:
            a(f"s_or_b64 {sp(sAM)}, {sp(sAM)}, {m2(i)}")
    a(f"""
    s_cbranch_scc0 k2_p1e
    s_add_u32 s{sCNT}, s{sCNT}, 1
    s_cmp_lt_u32 s{sCNT}, 0x20000
    s_cbranch_scc1 k2_dpoll
k2_p1e:
""")
    stamp('lastmeta')
    if OPT['pf']:
        a(f"""
    s_mov_b64 exec, 0x1ffffff
    s_lshl_b32 s{sT}, s{sC}, 3
    s_add_u32 s{sT}, s{sT}, s{sWV}
    s_mul_i32 s{sT}, s{sT}, 3200
    v_lshlrev_b32 v4, 3, v9
    buffer_load_dword v{ADDR}, v4, {X}, s{sT} offen
""")
    a(f"""
    s_mov_b64 exec, -1
    s_lshl_b32 s{sT}, s{sWV}, 3
    s_add_u32 s{sT + 1}, s{sT}, 4
    s_add_u32 s{sT + 2}, s{sT}, 7
    s_waitcnt lgkmcnt(0)
    s_barrier
""")
    stamp('bar2')
    a(f"""
    ds_read_b128 v[4:7], v9 offset:{HIST}
    ds_read_b32 v20, v12 offset:{FLAG}
    s_waitcnt lgkmcnt(1)
    v_add_u32 v5, v4, v5
    v_add_u32 v6, v5, v6
    v_add_u32 v7, v6, v7
    v_add_u32_dpp v10, v7, v7 quad_perm:[1,0,3,2] row_mask:0xf bank_mask:0xf
    v_add_u32_dpp v10, v10, v10 quad_perm:[2,3,0,1] row_mask:0xf bank_mask:0xf
    v_sub_u32 v10, 0, v10
    v_and_b32 v10, v15, v10
    v_add_u32 v7, v7, v10
    v_mov_b32 v10, v7
""")
    wave_scan(a, 10)
    a(f"""
    v_readlane_b32 s{sTOT}, v10, 63
    v_readlane_b32 s{sE1}, v10, s{sT + 2}
    v_sub_u32 v10, v10, v7
    s_sub_u32 s{sTOT}, {CB}, s{sTOT}
    v_add_u32 v10, s{sTOT}, v10
    v_add_u32 v7, v10, v6
    v_add_u32 v6, v10, v5
    v_add_u32 v5, v10, v4
    v_mov_b32 v4, v10
    ds_write_b128 v9, v[4:7] offset:{BTAB}
    s_add_u32 s{sE1}, s{sE1}, s{sTOT}
    v_readlane_b32 s{sP0}, v10, s{sT}
    v_readlane_b32 s{sP1}, v10, s{sT + 1}
    s_waitcnt lgkmcnt(1)
    v_readfirstlane_b32 s{sMORE}, v20
""")
    stamp('scan')
    for i in range(8):
        a(f"ds_read_b32 v{BIN + i}, v{BIN + i} offset:{BTAB}")
    a(f"""
    s_mov_b32 s{sE0}, s{sP1}
""")
    for i in range(8):
        a(f"s_mov_b64 exec, {m1(i)}")
        a(f"s_waitcnt lgkmcnt(7)")
        a(f"v_add_u32 v{BIN + i}, v{BIN + i}, v{RANK + i}")
        a(f"ds_write_b32 v{BIN + i}, v{META + i}")
    stamp('p2')
    a(f"""
    s_mov_b64 exec, -1
    s_cmp_lt_u32 s{sP0}, s{sE0}
    s_cselect_b32 s{sNT}, 0, 1
    s_cselect_b32 s{sNX}, s{sP0}, s{sP1}
    s_cselect_b32 s{sT}, 128, 0
    s_add_u32 s{sP0}, s{sP0}, s{sT}
    s_sub_u32 s{sT}, 128, s{sT}
    s_add_u32 s{sP1}, s{sP1}, s{sT}
    s_waitcnt lgkmcnt(0)
    s_barrier
""")
    stamp('sorted')
    ZE = 0

    def zero(lo, hi):
        for i in range(lo, hi):
            a(f"v_mov_b64 {v(ACC + 2 * i, 2)}, 0")

    def meta_reads():
        a(f"v_add_u32_sdwa v{TM}, s{sNX}, v{vP2} {SDWA} src0_sel:DWORD src1_sel:WORD_0")
        a(f"v_and_b32 v{BT}, -32, v{TM}")
        a(f"ds_read_b128 {v(M, 4)}, v{BT}")
        a(f"ds_read_b128 {v(M + 4, 4)}, v{BT} offset:16")
        a(f"ds_read_b64 {v(TM, 2)}, v{TM}")

    def loads(h):
        D = DA if h == 0 else DB
        for e in range(8):
            if h == 0:
                a(f"v_mad_u32_u16 v{M + e}, v{M + e}, s{s512}, v{vL16} op_sel:[1,0,0,0]")
            a(f"buffer_load_dwordx4 {v(D + 4 * e, 4)}, v{M + e}, {X}, 0 offen" + (" offset:256" if h else ""))

    def tr_addr():
        for i in range(2):
            a(f"v_xor_b32_sdwa v{TM + i}, v{TM + i}, v{vP2} {SDWA} src0_sel:WORD_0 src1_sel:WORD_1")
        for i in range(2):
            a(f"v_min_u32 v{TM + i}, s{sZI}, v{TM + i}")
        for i in range(2):
            a(f"v_lshl_add_u32 v{TM + i}, v{TM + i}, 3, s{sCB}")

    def tr_reads():
        a(f"ds_read_b64_tr_b16 {v(A, 2)}, v{TM}")
        a(f"ds_read_b64_tr_b16 {v(A + 2, 2)}, v{TM + 1}")

    def half(t, h, lg):
        D = DA if h == 0 else DB
        pairs = [(0, 2), (4, 6), (1, 3), (5, 7)]

        def perms(j):
            r, p = j >> 1, j & 1
            for k, (e0, e1) in enumerate(pairs):
                a(f"v_perm_b32 v{BT + 4 * (j & 1) + k}, v{D + 4 * e1 + r}, v{D + 4 * e0 + r}, s{sHI if p else sLO}")
        perms(0)
        for j in range(8):
            if j + 1 < 8:
                perms(j + 1)
            if j == 0 and lg is not None:
                a(f"s_waitcnt lgkmcnt({lg})")
            c = v(ACC + 64 * t + (8 * h + j) * 4, 4)
            a(f"v_mfma_f32_16x16x32_bf16 {c}, {v(A, 4)}, {v(BT + 4 * (j & 1), 4)}, {c}")

    if OPT['prio'] >= 1:
        a(f"""
    s_cmp_lt_u32 s{sWV}, 4
    s_cselect_b64 vcc, -1, 0
    s_cbranch_scc1 k2_lop
    s_setprio 1
k2_lop:
""")
    pcnt = [0]

    def tprio(p):
        pcnt[0] += 1
        a(f"""
    s_cbranch_vccz k2_pr{pcnt[0]}
    s_setprio {p}
k2_pr{pcnt[0]}:
""")

    a(f"""
    s_cmp_ge_u32 s{sNX}, s{sE1}
    s_cbranch_scc1 k2_wz
""")
    meta_reads()
    a("s_waitcnt lgkmcnt(1)")
    loads(0)
    loads(1)
    a("s_waitcnt lgkmcnt(0)")
    tr_addr()
    tr_reads()
    stamp('first')
    a(f"""
k2_wz:
    s_cmp_lg_u32 s{sRND}, 0
    s_cbranch_scc1 k2_noz
""")
    if OPT['wb'] == 1:
        wbuild()
    zero(ZE, 64)
    a(f"""
    s_xor_b32 s{sT}, s{sWV}, 7
    s_or_b32 s{sT}, s{sT}, s2
    s_or_b32 s{sT}, s{sT}, s{sRST}
    s_cbranch_scc1 k2_noz
    s_mov_b64 exec, 1
    v_mov_b32 v{BT}, s{sTAG}
    buffer_store_dword v{BT}, off, {W}, 0 sc1
    s_mov_b64 exec, -1
""")
    a(f"""
k2_noz:
    s_cmp_ge_u32 s{sNX}, s{sE1}
    s_cbranch_scc1 k2_done
""")
    if 'it1' in SMAP:
        a("s_waitcnt vmcnt(8)")
        stamp('it1')
    a(f"""
    s_cmp_eq_u32 s{sNT}, 0
    s_cbranch_scc0 k2_stub1
""")
    for t in range(2):
        po, eo, ps, es = (sP1, sE1, sP0, sE0) if t == 0 else (sP0, sE0, sP1, sE1)
        a(f"""
k2_stub{t}:
    s_cmp_lt_u32 s{po}, s{eo}
    s_cbranch_scc1 k2_oth{t}
    s_cmp_lt_u32 s{ps}, s{es}
    s_cbranch_scc0 k2_tail{t}
    s_mov_b32 s{sNX}, s{ps}
    s_add_u32 s{ps}, s{ps}, 128
    s_mov_b32 s{sNT}, {t}
    s_branch k2_body{t}
k2_oth{t}:
    s_mov_b32 s{sNX}, s{po}
    s_add_u32 s{po}, s{po}, 128
    s_mov_b32 s{sNT}, {1 - t}
k2_body{t}:
""")
        if OPT['prio'] == 2:
            tprio(2 - 2 * t)
        if OPT['prio'] == 3:
            tprio(2)
        meta_reads()
        a("s_waitcnt vmcnt(8)")
        half(t, 0, 3)
        a("s_waitcnt lgkmcnt(0)")
        loads(0)
        tr_addr()
        if OPT['prio'] == 3 or (OPT['prio'] == 4 and t == 1):
            tprio(0)
        if OPT['prio'] == 4 and t == 0:
            tprio(2)
        a("s_waitcnt vmcnt(8)")
        half(t, 1, None)
        loads(1)
        tr_reads()
        a(f"s_cmp_eq_u32 s{sNT}, 0")
        a(f"s_cbranch_scc1 k2_stub0")
        if t == 1:
            a("s_branch k2_stub1")
    for t in range(2):
        a(f"k2_tail{t}:")
        a("s_waitcnt vmcnt(8)")
        half(t, 0, 0)
        a("s_waitcnt vmcnt(0)")
        half(t, 1, None)
        if t == 0:
            a("s_branch k2_done")
    a(f"""
k2_done:
    {"s_setprio 0" if OPT['prio'] >= 2 else ""}
    s_waitcnt vmcnt(0)
    v_mbcnt_lo_u32_b32 v{LANE}, -1, 0
    v_mbcnt_hi_u32_b32 v{LANE}, -1, v{LANE}
    s_cmp_eq_u32 s{sMORE}, 0
    s_cbranch_scc1 k2_fin
    s_add_u32 s{sRND}, s{sRND}, 8192
    s_movk_i32 s{sC}, 255
    s_barrier
    s_branch k2_round
k2_p1h:
    v_readfirstlane_b32 s{sC}, v21
    s_sub_u32 s{sC}, s{sC}, 1
    s_add_u32 s{sRST}, s{sRST}, 1
    s_cmp_gt_u32 s{sRST}, 2000
    s_cbranch_scc1 k2_end
    s_waitcnt vmcnt(0) lgkmcnt(0)
    s_barrier
    s_branch k2_round
k2_np:
    ds_read_b32 v8, v12 offset:{FLAG + 16}
    s_waitcnt lgkmcnt(0)
    v_readfirstlane_b32 s{sTAG}, v8
    s_branch k2_b3b
k2_hpub:
    s_bitcmp1_b32 s2, 1
    s_cselect_b64 vcc, -1, 0
    s_lshl_b32 s{sT + 1}, s2, 4
    s_lshr_b32 s{sT + 2}, s2, 2
    s_lshl_b32 s{sT}, s{sC}, 2
    s_add_u32 s{sT}, s{sT}, {TENT}
    v_cndmask_b32 v76, v76, v77, vcc
    v_cndmask_b32 v77, v77, v78, vcc
    v_mov_b32 v4, s{sT}
    v_alignbit_b32 v76, v77, v76, s{sT + 1}
    v_or_b32 v76, 3, v76
    s_lshl_b64 exec, 1, s{sT + 2}
    ds_write_b32 v4, v76
    s_mov_b64 exec, -1
    v_add_u32 v7, {TENT - CB - 7 * 4096}, v18
    ds_read2st64_b32 v[80:81], v7 offset0:0 offset1:1
    ds_read2st64_b32 v[82:83], v7 offset0:2 offset1:3
    s_branch k2_w7p
k2_hst:
    v_mov_b32 v5, s2
    v_lshlrev_b32 v5, 2, v5
    ds_read_b32 v4, v5 offset:{PH}
    ds_read_b32 v6, v5 offset:{BTAB}
    s_waitcnt lgkmcnt(0)
    v_sub_u32 v6, v8, v6
""")
    for j in range(8):
        a(f"""
    s_mov_b64 exec, -1
    v_cmp_lt_u32 vcc, v6, v4
    v_add_u32 v6, 1024, v6
    s_mov_b64 exec, vcc
    buffer_store_dwordx4 {v(PG + 4 * j, 4)}, v8, {W}, s{sT + j // 4} offen offset:{1024 * (j % 4)} sc1
""")
    a(f"""
    s_waitcnt vmcnt(0)
    s_branch k2_b3b
k2_fin:
""")
    stamp('mainend')
    a(f"""
    s_xor_b32 s{sFIRST}, s{sWV}, 7
    s_or_b32 s{sFIRST}, s{sFIRST}, s{sRST}
    s_cbranch_scc1 k2_ne
    buffer_load_dword v20, off, {W}, 0 sc1
k2_ne:
""")
    a(f"""
    v_lshrrev_b32 v3, 4, v{LANE}
    s_lshl_b32 s{sT}, s{sWV}, 1
    v_lshl_add_u32 v4, v3, 4, s{sT}
    s_lshr_b32 s{sT}, s{sWV}, 1
    s_add_u32 s{sT}, s{sT}, 48
    v_min_u32 v4, s{sT}, v4
    v_mul_u32_u24 v4, {ROW}, v4
    v_bfe_u32 v5, v{LANE}, 3, 1
    v_mul_u32_u24 v5, 640, v5
    v_and_b32 v6, 7, v{LANE}
    v_lshl_add_u32 v5, v6, 4, v5
    v_add_u32 v4, v4, v5
    s_bitcmp0_b32 s{sWV}, 0
    s_cselect_b32 s{sT + 1}, -1, 0xffff
    s_mov_b32 s{sT + 3}, 0xffff
""")

    def R(t, h, q, jj):
        return ACC + 64 * t + (8 * h + jj) * 4 + q
    DP = "row_mask:0xf bank_mask:0xc"
    for t in range(2):
        for jj in range(8):
            a(f"v_add_f32_dpp v{R(t, 0, 1, jj)}, v{R(t, 1, 3, jj)}, v{R(t, 0, 1, jj)} quad_perm:[0,1,2,3] {DP}")
            a(f"v_sub_f32_dpp v{R(t, 0, 2, jj)}, v{R(t, 1, 1, jj)}, v{R(t, 0, 2, jj)} row_shr:8 {DP}")
            a(f"v_subrev_f32_dpp v{R(t, 0, 3, jj)}, v{R(t, 1, 1, jj)}, v{R(t, 0, 3, jj)} quad_perm:[0,1,2,3] {DP}")
            a(f"v_add_f32_dpp v{R(t, 0, 1, jj)}, v{R(t, 1, 2, jj)}, v{R(t, 0, 1, jj)} row_shr:8 {DP}")
            a(f"v_subrev_f32_dpp v{R(t, 1, 2, jj)}, v{R(t, 1, 3, jj)}, v{R(t, 1, 2, jj)} row_shr:8 {DP}")
        regs = [(0, 0), (0, 1), (0, 2), (0, 3), (1, 0), (1, 2)]
        for u, (h, q) in enumerate(regs):
            for k in range(4):
                a(f"v_cvt_pk_bf16_f32 v{DA + 32 * t + 4 * u + k}, v{R(t, h, q, 2 * k)}, v{R(t, h, q, 2 * k + 1)}")
        if t == 0:
            stamp('dpp0')
        hi = sT + 1 + 2 * t
        a(f"s_mov_b32 exec_hi, s{hi}")
        for u in range(5):
            a(f"ds_write_b128 v4, {v(DA + 32 * t + 4 * u, 4)} offset:{t * ROW + u * 128}")
        a(f"s_mov_b32 exec_lo, 0xff00ff00")
        a(f"s_and_b32 exec_hi, s{hi}, 0xff00ff00")
        a(f"ds_write_b128 v4, {v(DA + 32 * t + 20, 4)} offset:{t * ROW + 640}")
        a("s_mov_b64 exec, -1")
        stamp(f'sw{t}')
    vRA, vO1, vO2, vS0, vS2, vS3, vS4 = 4, 5, 6, 7, 8, 9, 10
    a(f"""
    s_lshr_b32 s{sT}, s{sWV}, 2
    s_lshl_b32 s{sT}, s{sT}, 5
    v_and_b32 v11, 15, v{LANE}
    v_add_u32 v12, s{sT}, v11
    v_mul_u32_u24 v{vRA}, {ROW}, v12
    v_lshl_add_u32 v{vRA}, v3, 4, v{vRA}
    s_and_b32 s{sT}, s{sWV}, 3
    s_lshl_b32 s{sT}, s{sT}, 5
    s_lshl_b32 s{sT + 1}, s2, 9
    s_add_u32 s{sT}, s{sT}, s{sT + 1}
    v_lshl_add_u32 v{vO1}, v3, 3, s{sT}
    v_lshl_add_u32 v{vO1}, v12, 17, v{vO1}
    s_mov_b32 s{sT + 1}, 0xbfb8aa3b
    s_cmp_ge_u32 s{sWV}, 4
    s_cbranch_scc1 k2_gb
    v_add_u32 v{vO2}, {16 << 17}, v{vO1}
    s_waitcnt lgkmcnt(0)
    s_barrier
""")
    stamp('sbar')
    slot = dict(F0=0, F21=1, F22=2, F23=3, F32=4, F31=5, F1=6, F43=7, F42=8, F33=9, F41=10)
    terms = {0: [(0, 'F0'), (1, 'F1')]}
    for i in (1, 2, 3):
        terms[i] = [(2, f'F2{i}'), (3, f'F3{i}'), (4, f'F4{i}')]
    NB, AH = 24, 12
    BB = 160
    OA = 128

    def full_seq(u):
        sq = []
        for ti in range(3):
            for h in range(2):
                for o in range(4):
                    if ti < len(terms[o]):
                        t, f = terms[o][ti]
                        sq.append(dict(addr=vRA, off=u * 16 * ROW + slot[f] * 128 + h * 64, w=2 * t + h,
                                       d=OA + 16 * u + 4 * o, first=(ti == 0 and h == 0), swap=False))
        return sq

    def small_seq():
        sq = []
        c0 = [(vS0, 0, 0), (vS0, 6 * 128, 1)]
        c1 = [(vS2, 0, 2), (vS3, 0, 3), (vS4, 0, 4)]
        for ti in range(3):
            for h in range(2):
                for o, c in enumerate((c0, c1)):
                    if ti < len(c):
                        ad, off, t = c[ti]
                        sq.append(dict(addr=ad, off=off + h * 64, w=2 * t + h, d=OA + 16 + 4 * o,
                                       first=(ti == 0 and h == 0), swap=True))
        return sq

    def sigm(g, src, n):
        for i in range(n):
            a(f"v_mul_f32 v{g + i}, s{sT + 1}, v{src + i}")
        for i in range(n):
            a(f"v_exp_f32 v{g + i}, v{g + i}")
        for i in range(n):
            a(f"v_add_f32 v{g + i}, 1.0, v{g + i}")
        for i in range(n):
            a(f"v_rcp_f32 v{g + i}, v{g + i}")

    def finish(u):
        o0 = OA + 16 * u
        g = 12 + 4 * u
        vo = vO1 if u == 0 else vO2
        sigm(g, o0, 4)
        a(f"v_cvt_pk_bf16_f32 v{o0}, v{o0}, v{o0 + 1}")
        a(f"v_cvt_pk_bf16_f32 v{o0 + 1}, v{o0 + 2}, v{o0 + 3}")
        a(f"buffer_store_dwordx2 {v(o0, 2)}, v{vo}, {O}, 0 offen{OSC}")
        for o in range(1, 4):
            b = o0 + 4 * o
            for i in range(4):
                a(f"v_mul_f32 v{b + i}, v{b + i}, v{g + i}")
            a(f"v_cvt_pk_bf16_f32 v{b}, v{b}, v{b + 1}")
            a(f"v_cvt_pk_bf16_f32 v{b + 1}, v{b + 2}, v{b + 3}")
            a(f"buffer_store_dwordx2 {v(b, 2)}, v{vo}, {O}, 0 offen offset:{128 * o}{OSC}")

    def finish_small():
        o0, o1 = OA + 16, OA + 20
        for o in (o0, o1):
            a(f"v_add_f32 v{o}, v{o}, v{o + 1}")
            a(f"v_add_f32 v{o + 2}, v{o + 2}, v{o + 3}")
        for o in (o0, o1):
            a(f"v_add_f32 v{o}, v{o}, v{o + 2}")
        sigm(16, o0, 1)
        a(f"""
    v_cmp_gt_u32 vcc, 16, v{LANE}
    v_mul_f32 v{o1}, v{o1}, v16
    v_cndmask_b32 v{o1}, v{o1}, v{o0}, vcc
    v_cvt_pk_bf16_f32 v{o1}, v{o1}, v{o1}
    buffer_store_short v{o1}, v{vO2}, {O}, 0 offen{OSC}
""")

    def gemm(sq, fin_at, fin2):
        n = len(sq)

        def rd(i):
            a(f"ds_read_b128 {v(BB + 4 * (i % NB), 4)}, v{sq[i]['addr']} offset:{sq[i]['off']}")
        for i in range(AH):
            rd(i)
        for i in range(n):
            e = sq[i]
            if i + AH < n:
                rd(i + AH)
            a(f"s_waitcnt lgkmcnt({min(AH, n - 1 - i)})")
            d = v(e['d'], 4)
            x, y = v(WF + 4 * e['w'], 4), v(BB + 4 * (i % NB), 4)
            if e['swap']:
                x, y = y, x
            a(f"v_mfma_f32_16x16x32_bf16 {d}, {x}, {y}, {'0' if e['first'] else d}")
            if i == fin_at:
                finish(0)
                stamp('fin0')
        fin2()
    gemm(full_seq(0) + full_seq(1), 27, lambda: finish(1))
    a("s_branch k2_out")
    a(f"""
k2_gb:
    v_and_b32 v12, 3, v{LANE}
    v_mul_u32_u24 v{vS0}, {ROW}, v12
    v_lshl_add_u32 v{vS0}, v3, 4, v{vS0}
    v_add_u32 v{vS0}, {48 * ROW}, v{vS0}
    v_and_b32 v12, 12, v{LANE}
    v_lshl_add_u32 v{vS2}, v12, 5, v{vS0}
    s_movk_i32 s{sT + 2}, 0x9450
    v_bfe_u32 v{vS3}, s{sT + 2}, v12, 4
    s_movk_i32 s{sT + 2}, 0x78a0
    v_bfe_u32 v{vS4}, s{sT + 2}, v12, 4
    v_lshl_add_u32 v{vS3}, v{vS3}, 7, v{vS0}
    v_lshl_add_u32 v{vS4}, v{vS4}, 7, v{vS0}
    s_add_u32 s{sT}, s{sT}, {48 << 17}
    v_lshl_add_u32 v{vO2}, v3, 7, s{sT}
    v_lshl_add_u32 v{vO2}, v11, 1, v{vO2}
    s_waitcnt lgkmcnt(0)
    s_barrier
""")
    stamp('sbar')
    gemm(full_seq(0) + small_seq(), 27, finish_small)
    a(f"""
    s_cmp_lg_u32 s{sFIRST}, 0
    s_cbranch_scc1 k2_out
    s_waitcnt vmcnt(5)
    v_cmp_ne_u32 vcc, s{sTAG}, v20
    s_cbranch_vccz k2_out
    s_mov_b64 exec, 1
    v_mov_b32 v20, s{sTAG}
    buffer_store_dword v20, off, {W}, 0 sc1
    s_mov_b64 exec, -1
""")
    a("k2_out:")
    if OPT['stamps']:
        stamp('gend')
        a(f"""
    s_waitcnt vmcnt(0) lgkmcnt(0)
    s_memrealtime s[20:21]
    s_lshl_b32 s{sT}, s2, 3
    s_add_u32 s{sT}, s{sT}, s{sWV}
    s_lshl_b32 s{sT}, s{sT}, 6
    s_add_u32 s{sT}, s{sT}, {ST_OFF}
    v_mov_b32 v4, s{sT}
    s_waitcnt lgkmcnt(0)
""")
        for i in range(7):
            a(f"v_mov_b32 v{8 + 2 * i}, s{88 + 2 * i}")
            a(f"v_mov_b32 v{9 + 2 * i}, s{89 + 2 * i}")
        a(f"v_mov_b32 v22, s20")
        a(f"v_mov_b32 v23, s21")
        a("s_mov_b64 exec, 1")
        for i in range(4):
            a(f"global_store_dwordx4 v4, {v(8 + 4 * i, 4)}, s[{sW}:{sW + 1}] offset:{16 * i}")
    a("""
k2_end:
    s_endpgm
""")
    return a.lines, LDS


def main():
    out = sys.argv[1] if len(sys.argv) > 1 else f"cdna_kernels/{NAME}.s"
    ref = open(f"cdna_kernels/{NAME}.s.ref").read().split('\n')
    hdr = [l for l in ref if l.startswith(';') and '@launch' not in l and 'Override' not in l and 'grid=ceil' not in l]
    k2, lds2 = gen_k2()
    k2, n2 = pad_hazards(k2, OPT.get('verbose', 0))
    kk = f"kernel={KN} " if OPT['lst'] else ""
    txt = hdr + [
        f"; @launch {kk}grid=(256,1,1) block=(512,1,1) lds={lds2}",
        '.amdgcn_target "amdgcn-amd-amdhsa--gfx950"', '.text']
    txt += [f".globl {KN}", ".p2align 8", f".type {KN},@function"] + k2
    txt += ['.section .rodata,"a"']
    txt += [".p2align 6", f".amdhsa_kernel {KN}",
            f"  .amdhsa_next_free_vgpr 256", "  .amdhsa_next_free_sgpr 102",
            f"  .amdhsa_accum_offset 256", "  .amdhsa_group_segment_fixed_size 0",
            "  .amdhsa_kernarg_size 96", "  .amdhsa_user_sgpr_count 2",
            "  .amdhsa_user_sgpr_kernarg_segment_ptr 1", "  .amdhsa_system_sgpr_workgroup_id_x 1",
            ".end_amdhsa_kernel"]
    open(out, 'w').write('\n'.join(txt) + '\n')
    print(f"wrote {out}: pads {n2}, lines {len(txt)}")


main()
```

```python
import sys
from asmlib import Asm, v, s, pad_hazards

NAME = "gather_scatter__tensor_product_equiv_equiformer__graph"
OPT = dict(sl0=0, sl1=0, w7d=1, wb=2, dr=1, notbl=0, nodma=0, b1=2, pp=1, dbg=0, gsc=1, nst=7, stamps=0, prio=1, osc=0, lst=0, tlim=400, skip=-1, wpos=0, nt=3, ze=0, pf=1)
for a in sys.argv[2:]:
    k, val = a.split('=')
    OPT[k] = int(val, 0)

assert 0 <= OPT['b1'] <= 9
N = 12500
NCH = 250
CH = 3200
GR_OFF = 0x1000
TBL_OFF = 0xD00000
ALT = 0x1000000
WS_SIZE = ALT + 0xD80000
ST_OFF = 0xE00000
SDWA = "dst_sel:DWORD dst_unused:UNUSED_PAD"
KN = NAME + "_kernel"


def wave_scan(a, r):
    for m in ("row_shr:1", "row_shr:2", "row_shr:4", "row_shr:8"):
        a(f"v_add_u32_dpp {v(r)}, {v(r)}, {v(r)} {m} row_mask:0xf bank_mask:0xf")
    a(f"v_add_u32_dpp {v(r)}, {v(r)}, {v(r)} row_bcast:15 row_mask:0xa bank_mask:0xf")
    a(f"v_add_u32_dpp {v(r)}, {v(r)}, {v(r)} row_bcast:31 row_mask:0xc bank_mask:0xf")


def gen_k2():
    a = Asm()
    LDS = 163840
    HIST, PH, BTAB, FLAG = 0, 1024, 2048, 3072
    RAWW = 3136
    WRAD = RAWW + 40960
    STG = WRAD + 1280
    CB = 131040
    TENT = STG + CH * 16
    ZI = 4096
    ROW = 1440
    vL16, vP2, TM, A, BT, M, WF, DA, DB, ACC = 0, 1, 2, 4, 8, 16, 24, 64, 96, 128
    LANE, TID = 2, 3
    G, ADDR, BIN, META, RANK = 64, 96, 104, 112, 120
    DST, SRC, EA, RH, BOFF, RNK, SCN, UP, PG = 128, 136, 144, 148, 160, 168, 176, 184, 192
    sC = 3
    sX, sW, sO = 4, 8, 12
    sWV, sRND, sMORE, sTOT = 16, 17, 18, 19
    sP0, sE0, sP1, sE1, sNX, sNT = 20, 21, 22, 23, 24, 25
    sLO, sHI, s512, sZI, sCB, sMSK = 26, 27, 28, 29, 30, 31
    sT = 32
    sRST, sFIRST = 36, 37
    sDBG = 38
    sM = 40
    pR, pE, pS, pD, pWR, pW0, pW1 = 72, 74, 76, 78, 80, 82, 84
    sEP, sTAG = 86, 87
    sAM, sTM, sCNT, sK = 20, 22, 24, 25
    X = f"s[{sX}:{sX + 3}]"
    W = f"s[{sW}:{sW + 3}]"
    O = f"s[{sO}:{sO + 3}]"
    OSC = {0: "", 1: " sc1", 2: " sc0 sc1", 3: " nt"}[OPT['osc']]
    NT = " nt" if OPT['nt'] & 1 else ""
    NT2 = " nt" if OPT['nt'] & 2 else ""

    SMAP = {1: dict(start=0, tbl=1, lastmeta=2, sorted=3, mainend=4, sbar=5, gend=6),
            2: dict(start=0, drained=1, bar2p=2, rest=3, bar3=4, stored=5, tbl=6),
            7: dict(start=0, bar2p=1, n7b=2, g0=3, e0=4, e3=5, rest=6),
            9: dict(start=0, issued=1, dst=2, bar2p=3, g0=4, rest=5, bar3=6),
            6: dict(start=0, issued=1, pre1=2, dst=3, bar2p=4, rest=5, bar3=6),
            3: dict(start=0, drained=1, dissued=2, wdone=3, lastmeta=4, bar2=5, sorted=6),
            8: dict(start=0, tbl=1, expd=2, drained=3, dissued=4, lastmeta=5, sorted=6),
            4: dict(start=0, mainend=1, dpp0=2, sw1=3, sbar=4, fin0=5, gend=6),
            5: dict(start=0, bar2=1, scan=2, p2=3, sorted=4, first=5, it1=6)}.get(OPT['stamps'], {})

    def stamp(nm):
        if nm in SMAP:
            i = SMAP[nm]
            a(f"s_memrealtime s[{88 + 2 * i}:{89 + 2 * i}]")

    def m1(i):
        return f"s[{sM + 4 * i}:{sM + 4 * i + 1}]"

    def m2(i):
        return f"s[{sM + 4 * i + 2}:{sM + 4 * i + 3}]"

    def sp(i):
        return f"s[{i}:{i + 1}]"

    a(f"""
{KN}:
    s_cmp_ge_u32 s2, 256
    s_cbranch_scc1 k2_end
""")
    stamp('start')
    a(f"""
    s_load_dwordx16 s[72:87], s[0:1], 8
    s_load_dwordx2 s[{sW}:{sW + 1}], s[0:1], 88
    s_load_dwordx2 s[{sX}:{sX + 1}], s[0:1], 0
    s_load_dwordx2 s[{sO}:{sO + 1}], s[0:1], 72
    v_lshrrev_b32 v3, 6, v0
    s_mov_b32 s{sC}, s2
    v_readfirstlane_b32 s{sWV}, v3
    s_and_b32 s{sT}, s2, 7
    s_lshr_b32 s2, s2, 3
    s_lshl_b32 s{sT}, s{sT}, 5
    s_or_b32 s2, s2, s{sT}
    s_mov_b32 s{sX + 2}, {N * 512}
    s_mov_b32 s{sX + 3}, 0x00020000
    s_mov_b32 s{sW + 2}, {WS_SIZE}
    s_mov_b32 s{sW + 3}, 0x00020000
    s_mov_b32 s{sO + 2}, {N * 512}
    s_mov_b32 s{sO + 3}, 0x00020000
    s_mov_b32 s{sRND}, 0
    s_mov_b32 s{sRST}, 0
""")
    if OPT['skip'] >= 0:
        a(f"""
    s_cmp_eq_u32 s{sC}, {OPT['skip']}
    s_cselect_b32 s{sC}, 255, s{sC}
""")
    def wdma():
        a(f"""
    s_lshl_b32 s{sT + 2}, s{sWV}, 11
    s_add_u32 m0, s{sT + 2}, {RAWW}
    v_add_u32 v4, s{sT + 2}, v9
    s_mul_i32 s{sT + 2}, s{sWV}, 3072
    global_load_lds_dwordx4 v4, {sp(pW0)}
    global_load_lds_dwordx4 v4, {sp(pW0)} offset:1024
    s_add_u32 m0, s{sT + 2}, {RAWW + 16384}
    v_add_u32 v5, s{sT + 2}, v9
    global_load_lds_dwordx4 v5, {sp(pW1)}
    global_load_lds_dwordx4 v5, {sp(pW1)} offset:1024
    global_load_lds_dwordx4 v5, {sp(pW1)} offset:2048
""")
    el = [f"global_load_dwordx4 {v(DST, 4)}, v4, {sp(pD)}{NT}",
          f"global_load_dwordx4 {v(DST + 4, 4)}, v7, {sp(pD)}{NT}",
          f"global_load_dwordx4 {v(SRC, 4)}, v4, {sp(pS)}{NT}",
          f"global_load_dwordx2 {v(EA, 2)}, v5, {sp(pE)}{NT}",
          f"global_load_dwordx4 {v(RH, 4)}, v6, {sp(pR)}{NT2}",
          f"global_load_dwordx2 {v(RH + 4, 2)}, v6, {sp(pR)} offset:16{NT2}",
          f"global_load_dwordx4 {v(SRC + 4, 4)}, v7, {sp(pS)}{NT}",
          f"global_load_dwordx2 {v(EA + 2, 2)}, v5, {sp(pE)} offset:{CH}{NT}",
          f"global_load_dwordx4 {v(RH + 6, 4)}, v8, {sp(pR)}{NT2}",
          f"global_load_dwordx2 {v(RH + 10, 2)}, v8, {sp(pR)} offset:16{NT2}"]
    a(f"""
k2_round:
    v_mbcnt_lo_u32_b32 v{LANE}, -1, 0
    v_mbcnt_hi_u32_b32 v{LANE}, -1, v{LANE}
    s_lshl_b32 s{sT}, s{sWV}, 6
    v_add_u32 v{TID}, s{sT}, v{LANE}
    v_mov_b32 v12, 0
    v_lshlrev_b32 v14, 2, v{TID}
    ds_write_b32 v14, v12 offset:{HIST}
    s_mul_i32 s{sT}, s{sC}, {CH * 4}
    s_mul_i32 s{sT + 1}, s{sC}, {CH * 2}
    s_mul_i32 s{sT + 2}, s{sC}, {CH * 6}
    v_lshl_add_u32 v4, v{TID}, 4, s{sT}
    v_lshl_add_u32 v5, v{TID}, 3, s{sT + 1}
    v_mul_u32_u24 v6, 24, v{TID}
    v_add_u32 v6, s{sT + 2}, v6
    v_add_u32 v7, {CH * 2}, v4
    v_add_u32 v8, {CH * 3}, v6
    v_cmp_gt_u32 vcc, {CH // 8}, v{TID}
    v_lshlrev_b32 v9, 4, v{LANE}
    s_mov_b64 {sp(sAM)}, vcc
    s_or_b32 s{sFIRST}, s{sRST}, s{sRND}
    s_cmp_ge_u32 s{sC}, {NCH}
    s_cselect_b64 vcc, 0, vcc
    s_waitcnt lgkmcnt(0)
    s_cbranch_vccz k2_noedge
    s_mov_b64 exec, vcc
""")
    for i in range(10):
        if i == OPT['b1']:
            a("s_barrier")
        a(el[i])
    a(f"""
    s_mov_b64 exec, -1
    s_branch k2_init
k2_noedge:
    s_cmp_lg_u32 s{sWV}, 7
    s_cbranch_scc1 k2_nb1
    s_cmp_lg_u32 s{sFIRST}, 0
    s_cbranch_scc1 k2_noep
    s_load_dword s{sEP}, s[{sW}:{sW + 1}], 0
k2_noep:
    v_min_u32 v99, {39 * 16}, v9
    s_and_b32 s{sT}, s2, 31
    s_mul_i32 s{sT + 1}, s{sT}, 768
    s_lshl_b32 s{sT}, s{sT}, 9
    v_min_u32 v100, 3, v{LANE}
    v_min_u32 v101, 5, v{LANE}
    v_lshl_add_u32 v100, v100, 7, s{sT}
    v_lshl_add_u32 v101, v101, 7, s{sT + 1}
    global_load_dwordx4 v[64:67], v99, {sp(pWR)}
    global_load_dword v100, v100, {sp(pW0)}
    global_load_dword v101, v101, {sp(pW1)}
k2_nb1:
    s_barrier
k2_init:
""")
    stamp('issued')
    if OPT['dbg'] == 3:
        for k, n in enumerate((8, 7, 6, 4, 3, 0)):
            a(f"s_waitcnt vmcnt({n})")
            a(f"s_memrealtime s[{90 + 2 * k}:{91 + 2 * k}]")
        a("s_branch k2_out")
    a(f"""
    v_mov_b32 v4, -1
    v_mov_b32 v5, -1
    v_mov_b32 v6, -1
    v_mov_b32 v7, -1
    v_mov_b32 v13, 0
    v_lshlrev_b32 v8, 2, v14
    v_add_u32 v8, {CB - 24576}, v8
    ds_write_b128 v8, v[4:7]
    ds_write_b128 v8, v[4:7] offset:8192
    ds_write_b128 v8, v[4:7] offset:16384
    s_lshl_b32 s{sT}, s{sWV}, 12
    s_add_u32 s{sT}, s{sT}, {CB}
    v_mov_b32 v16, 16
    v_mov_b32 v17, 16
    v_mov_b32 v18, 16
    v_mov_b32 v19, 16
    v_add_u32 v8, s{sT}, v9
    ds_write_b128 v8, v[16:19]
    ds_write_b128 v8, v[16:19] offset:1024
    v_mov_b32 v8, {CB + ZI * 8}
    s_mov_b64 exec, 1
    ds_write_b64 v12, v[12:13] offset:{FLAG}
    ds_write_b64 v8, v[12:13]
    ds_write_b32 v8, v12 offset:8
    s_mov_b64 exec, -1
    v_lshl_add_u32 v17, v{LANE}, 5, s{sT}
    v_lshl_add_u32 v18, v{LANE}, 2, s{sT}
    v_lshl_add_u32 v19, v{LANE}, 3, s{sT}
    s_lshl_b32 s{sT}, s{sWV}, 9
    v_add_u32 v{META}, s{sT}, v{LANE}
    s_lshl_b32 s{sT}, s{sWV}, 5
    v_add_u32 v16, s{sT}, v{LANE}
    s_mov_b32 s{sTM}, -1
    s_mov_b32 s{sTM + 1}, 0
    s_mov_b32 s{sT}, {TENT}
    v_lshl_add_u32 v10, v16, 2, s{sT}
    v_mul_u32_u24 v16, {CH * 16}, v16
    v_add_u32 v16, s{sRND}, v16
    s_cmp_lg_u32 s{sRST}, 0
    s_cselect_b32 s{sMORE}, {ALT}, 0
    s_cselect_b32 s{sCNT}, {OPT['tlim'] - 16}, 0
    v_mov_b32 v20, 0
    v_and_b32 v{vL16}, 15, v{LANE}
    v_lshlrev_b32 v{vL16}, 4, v{vL16}
    v_lshrrev_b32 v{vP2}, 2, v{LANE}
    v_lshlrev_b32 v{vP2}, 3, v{vP2}
    v_lshl_or_b32 v{vP2}, v{LANE}, 30, v{vP2}
    v_and_b32 v15, 3, v{LANE}
    v_lshlrev_b32 v11, 3, v15
    v_lshlrev_b32 v5, 11, v15
    v_or_b32 v5, 0x2000, v5
    v_cmp_eq_u32 vcc, 3, v15
    v_mov_b32 v15, 0x7f
    s_mov_b32 s{sLO}, 0x05040100
    v_cndmask_b32 v15, 0, v15, vcc
    s_mov_b32 s{sHI}, 0x07060302
    s_movk_i32 s{s512}, 512
    s_movk_i32 s{sZI}, {ZI}
    s_mov_b32 s{sCB}, {CB}
    s_mov_b32 s{sMSK}, 0xffffc000
    s_lshr_b32 s{sK}, s2, 2
    s_lshl_b32 s{sK}, s{sK}, 12
    s_add_u32 s{sK}, s{sK}, {TBL_OFF}
    v_bfe_u32 v8, v{LANE}, 2, 2
    v_lshl_add_u32 v11, v8, 7, v11
    v_lshrrev_b32 v8, 4, v{LANE}
    v_lshl_add_u32 v11, v8, 10, v11
    v_lshlrev_b32 v13, 5, v8
    s_and_b32 s{sT}, s{sWV}, 3
    s_lshl_b32 s{sT}, s{sT}, 5
    v_add_u32 v11, s{sT}, v11
    v_mov_b32 v14, 4
    v_mov_b32 v4, 16
""")
    for j in range(1, 8):
        a(f"v_add_u32 v{META + j}, {64 * j}, v{META}")
    stamp('pre1')
    a(f"""
    s_cmp_eq_u32 s{sWV}, 7
    s_cbranch_scc1 k2_w7a
    s_cmp_ge_u32 s{sC}, {NCH}
    s_cbranch_scc1 k2_b3
    s_mov_b64 exec, {sp(sAM)}
    s_movk_i32 s{sT}, 12288
""")
    for i in range(8):
        if i % 4 == 0:
            a(f"s_waitcnt vmcnt({9 - i // 4})")
            if i == 0:
                stamp('dst')
        a(f"v_lshlrev_b32_sdwa v{BOFF + i}, 2, v{DST + i} {SDWA} src0_sel:DWORD src1_sel:BYTE_0")
        a(f"ds_add_rtn_u32 v{RNK + i}, v{BOFF + i}, v4 offset:{PH}")
    for i in range(8):
        a(f"v_cmp_le_u32 {m1(i)}, s{sT}, v{DST + i}")
        a(f"v_and_b32 v{DST + i}, 0x3f00, v{DST + i}")
    for i in range(8):
        a(f"v_cndmask_b32 v6, 0, v5, {m1(i)}")
        a(f"v_lshl_or_b32 v{DST + i}, v{DST + i}, 2, v6")
    a(f"""
    s_mov_b64 exec, -1
    s_branch k2_b2
k2_w7a:
    s_waitcnt lgkmcnt(0)
    s_mul_i32 s{sTAG}, s{sEP}, 0x9E3779B1
    s_add_u32 s{sTAG}, s{sTAG}, 0x7F4A7C15
    v_mov_b32 v76, 0
    v_mov_b32 v77, 0
    v_mov_b32 v78, 0
    v_mov_b32 v79, s{sTAG}
    s_mov_b32 s{sT}, 0xffff0000
    ds_write_b32 v12, v79 offset:{FLAG + 16}
    s_waitcnt vmcnt(2)
""")
    for k in range(4):
        a(f"v_lshlrev_b32 v{68 + 2 * k}, 16, v{64 + k}")
        a(f"v_and_b32 v{69 + 2 * k}, s{sT}, v{64 + k}")
    a(f"""
    v_lshlrev_b32 v99, 1, v99
    ds_write_b128 v99, v[68:71] offset:{WRAD}
    ds_write_b128 v99, v[72:75] offset:{WRAD + 16}
    v_lshlrev_b32 v4, 12, v{LANE}
    s_lshl_b32 s{sT}, s{sC}, 4
    s_add_u32 s{sT}, s{sT}, {TBL_OFF}
    s_cmp_ge_u32 s{sC}, {NCH}
    s_cbranch_scc1 k2_pub
k2_b2:
    s_waitcnt lgkmcnt(0)
    s_barrier
""")
    stamp('bar2p')
    H, B = SCN, SCN + 4
    a(f"""
    ds_read_b128 {v(H, 4)}, v9 offset:{PH}
    ds_read_b32 v8, v12 offset:{FLAG + 16}
    s_waitcnt lgkmcnt(1)
    v_add_u32 v{B + 1}, v{H}, v{H + 1}
    v_add_u32 v{B + 2}, v{B + 1}, v{H + 2}
    v_add_u32 v6, v{B + 2}, v{H + 3}
    v_mov_b32 v{B + 3}, v6
""")
    wave_scan(a, 6)
    a(f"""
    v_sub_u32 v{B}, v6, v{B + 3}
    v_add_u32 v{B + 3}, v{B}, v{B + 2}
    v_add_u32 v{B + 2}, v{B}, v{B + 1}
    v_add_u32 v{B + 1}, v{B}, v{H}
    ds_write_b128 v9, {v(B, 4)} offset:{BTAB}
    s_cmp_lg_u32 s{sWV}, 7
    s_cbranch_scc1 k2_n7b
""")
    a(f"""
    v_lshl_or_b32 v76, v{B + 1}, 16, v{B}
    v_lshl_or_b32 v77, v{B + 3}, 16, v{B + 2}
    v_mov_b32 v78, v6
    s_waitcnt lgkmcnt(1)
k2_pub:
    s_cmp_lg_u32 s{sFIRST}, 0
    s_cbranch_scc1 k2_hpub
    buffer_store_dwordx4 v[76:79], v4, {W}, s{sT} offen sc1
    v_mov_b32 v80, 0
    v_mov_b32 v81, 0
    v_mov_b32 v82, 0
    v_mov_b32 v83, 0
k2_w7p:
""")
    if OPT['w7d']:
        a(f"v_mov_b32 v96, v9")
        for g in range(10):
            if g == 4:
                a(f"v_mov_b32 v96, v9")
            a(f"s_mov_b32 m0, {RAWW + 4096 * g}")
            a("s_nop 0")
            for k in range(4):
                a(f"global_load_lds_dwordx4 v96, {sp(pW0 if g < 4 else pW1)}" + (f" offset:{1024 * k}" if k else ""))
            if g not in (3, 9):
                a(f"v_add_u32 v96, 4096, v96")
    a(f"""
    s_bitcmp1_b32 s2, 1
    s_cselect_b64 s[0:1], -1, 0
    s_lshl_b32 s{sT + 1}, s2, 4
    s_mov_b32 s{sT}, 0x000f000f
    v_add_u32 v7, {TENT - CB - 7 * 4096}, v18
    s_waitcnt lgkmcnt(0)
    s_barrier
""")
    for k in range(4):
        a(f"v_and_b32 v4, 2, v{80 + k}")
        a(f"v_cmp_eq_u32 {m1(k)}, 0, v4")
    if OPT['sl0']:
        a(f"s_sleep {OPT['sl0']}")
    if OPT['sl1']:
        a("s_branch k2_tp1")
    a("k2_tpoll:")
    if OPT['sl1']:
        a(f"s_sleep {OPT['sl1']}")
        a("k2_tp1:")
    for k in range(4):
        a(f"buffer_load_dwordx4 {v(64 + 4 * k, 4)}, v9, {W}, s{sK} offen offset:{1024 * k} sc1")
    for k in range(4):
        g = 64 + 4 * k
        a(f"""
    s_waitcnt vmcnt({3 - k})
    v_or3_b32 v4, v{g}, v{g + 1}, v{g + 2}
    v_xor_b32 v5, s{sTAG}, v{g + 3}
    v_and_or_b32 v4, v4, s{sT}, v5
    v_cndmask_b32 v{g}, v{g}, v{g + 1}, s[0:1]
    v_cmp_eq_u32 vcc, 0, v4
    v_cndmask_b32 v{g + 1}, v{g + 1}, v{g + 2}, s[0:1]
    s_and_b64 vcc, vcc, {m1(k)}
    v_alignbit_b32 v{g}, v{g + 1}, v{g}, s{sT + 1}
    s_andn2_b64 {m1(k)}, {m1(k)}, vcc
    v_or_b32 v{g}, 2, v{g}
    v_cndmask_b32 v{80 + k}, v{80 + k}, v{g}, vcc
""")
    a(f"""
    s_or_b64 {m2(0)}, {m1(0)}, {m1(1)}
    s_or_b64 {m2(1)}, {m1(2)}, {m1(3)}
    s_or_b64 vcc, {m2(0)}, {m2(1)}
    s_cbranch_scc0 k2_tok
    s_add_u32 s{sCNT}, s{sCNT}, 1
    s_cmp_lt_u32 s{sCNT}, {OPT['tlim']}
    s_cbranch_scc1 k2_tpoll
""")
    for k in range(4):
        a(f"""
    s_ff1_i32_b64 s{sT + 1}, {m1(k)}
    s_add_u32 s{sT + 2}, s{sT + 1}, {64 * k + 1}
    s_cmp_lt_i32 s{sT + 1}, 0
    s_cselect_b32 s{sT}, s{sT}, s{sT + 2}
""")
    a(f"""
    v_mov_b32 v4, s{sT}
    ds_write_b32 v12, v4 offset:{FLAG + 4}
k2_tok:
    ds_write2st64_b32 v7, v80, v81 offset0:0 offset1:1
    ds_write2st64_b32 v7, v82, v83 offset0:2 offset1:3
""")
    if OPT['pf'] == 5:
        a(f"""
    s_mov_b32 exec_hi, 0x3ffff
    s_mul_i32 s{sT + 2}, s{sC}, 25600
    v_lshlrev_b32 v4, 3, v9
""")
        for k in range(4):
            a(f"buffer_load_dword v{RANK + k}, v4, {X}, s{sT + 2} offen")
            if k < 3:
                a(f"s_add_u32 s{sT + 2}, s{sT + 2}, 6400")
        a("s_mov_b64 exec, -1")
    a(f"""
    s_branch k2_b3b
k2_n7b:
    s_mov_b64 exec, {sp(sAM)}
""")
    stamp('n7b')
    for i in range(8):
        a(f"ds_read_b32 v{BOFF + i}, v{BOFF + i} offset:{BTAB}")
    a(f"s_mov_b32 s{sT}, 0xffff0000")
    a(f"s_mov_b32 s{sT + 1}, 5497558")
    a(f"s_waitcnt lgkmcnt(9)")
    a(f"v_readfirstlane_b32 s{sTAG}, v8")
    for i in range(8):
        a(f"v_mov_b32 v{PG + 4 * i + 3}, v8")

    def unpack(dst, reg, hi):
        if hi:
            a(f"v_and_b32 v{dst}, s{sT}, v{reg}")
        else:
            a(f"v_lshlrev_b32 v{dst}, 16, v{reg}")
    for i in range(8):
        if i == 0:
            a(f"s_waitcnt vmcnt(4)")
            stamp('g0')
        if i == 4:
            a(f"s_waitcnt vmcnt(0)")
            stamp('rest')
        unpack(UP, EA + i // 2, i & 1)
        for j in range(3):
            hw = 3 * i + j
            unpack(UP + 1 + j, RH + hw // 2, hw & 1)
        for j in range(3):
            a(f"v_mul_f32 v{UP + 1 + j}, v{UP}, v{UP + 1 + j}")
        a(f"v_cvt_pk_bf16_f32 v{PG + 4 * i}, v{UP}, v{UP + 1}")
        a(f"v_cvt_pk_bf16_f32 v{PG + 4 * i + 1}, v{UP + 2}, v{UP + 3}")
        a(f"v_mul_hi_u32_u24 v6, s{sT + 1}, v{SRC + i}")
        a(f"v_lshl_or_b32 v6, v6, 6, v{DST + i}")
        a(f"v_lshl_or_b32 v{PG + 4 * i + 2}, v{SRC + i}, 16, v6")
        if i == 0:
            a("s_waitcnt lgkmcnt(0)")
        a(f"v_add_u32 v{BOFF + i}, v{BOFF + i}, v{RNK + i}")
        a(f"ds_write_b128 v{BOFF + i}, {v(PG + 4 * i, 4)} offset:{STG}")
        stamp(f'e{i}')
    def wbuild():
        T, U = ACC, ACC + 80
        a(f"s_mov_b32 s{sT}, 0xffff0000")

        def rd(f):
            a(f"ds_read_b64_tr_b16 {v(WF + 4 * f, 2)}, v11 offset:{RAWW + f * 4096}")
            a(f"ds_read_b64_tr_b16 {v(WF + 4 * f + 2, 2)}, v11 offset:{RAWW + f * 4096 + 512}")
            a(f"ds_read_b128 {v(T + 8 * f, 4)}, v13 offset:{WRAD + f * 128}")
            a(f"ds_read_b128 {v(T + 8 * f + 4, 4)}, v13 offset:{WRAD + f * 128 + 16}")
        for f in range(3):
            rd(f)
        for f in range(10):
            a(f"s_waitcnt lgkmcnt({4 * min(2, 9 - f)})")
            if f + 3 < 10:
                rd(f + 3)
            for k in range(4):
                a(f"v_lshlrev_b32 v{U + 2 * k}, 16, v{WF + 4 * f + k}")
                a(f"v_and_b32 v{U + 2 * k + 1}, s{sT}, v{WF + 4 * f + k}")
            for k in range(4):
                a(f"v_pk_mul_f32 {v(U + 2 * k, 2)}, {v(U + 2 * k, 2)}, {v(T + 8 * f + 2 * k, 2)}")
            for k in range(4):
                a(f"v_cvt_pk_bf16_f32 v{WF + 4 * f + k}, v{U + 2 * k}, v{U + 2 * k + 1}")
    def xpf(d):
        a(f"""
    s_mov_b64 exec, 0x1ffffff
    s_lshl_b32 s{sT + 3}, s{sC}, 3
    s_add_u32 s{sT + 3}, s{sT + 3}, s{sWV}
    s_mul_i32 s{sT + 3}, s{sT + 3}, 3200
    v_lshlrev_b32 v{d}, 3, v9
    buffer_load_dword v{d}, v{d}, {X}, s{sT + 3} offen
    s_mov_b64 exec, -1
""")
    GSC = {0: "", 1: " sc1", 2: " sc0 sc1", 3: " nt"}[OPT['gsc']]
    a(f"""
k2_b3:
    s_mul_i32 s{sT}, s{sWV}, 7168
    s_mov_b64 exec, -1
    v_add_u32 v8, s{sT}, v9
    s_mul_i32 s{sT}, s{sC}, {CH * 16}
    s_add_u32 s{sT}, s{sT}, {GR_OFF}
    s_add_u32 s{sT}, s{sT}, s{sMORE}
    s_add_u32 s{sT + 1}, s{sT}, 4096
    s_cmp_ge_u32 s{sC}, {NCH}
    s_waitcnt lgkmcnt(0)
    s_barrier
""")
    stamp('bar3')
    a("s_cbranch_scc1 k2_np")
    for j in range(8):
        a(f"ds_read_b128 {v(PG + 4 * j, 4)}, v8 offset:{STG + 1024 * j}")
    a(f"s_cmp_lg_u32 s{sRST}, 0")
    a(f"s_cbranch_scc1 k2_hst")
    a(f"s_cmp_lg_u32 s{sWV}, 6")
    for j in range(8):
        if j == 7:
            a("s_cbranch_scc1 k2_b3b")
        a(f"s_waitcnt lgkmcnt({7 - j})")
        a(f"buffer_store_dwordx4 {v(PG + 4 * j, 4)}, v8, {W}, s{sT + j // 4} offen offset:{1024 * (j % 4)}{GSC}")
    a("k2_b3b:")
    stamp('stored')
    if OPT['pf'] == 3:
        xpf(RANK)
    a(f"""
    s_waitcnt lgkmcnt(0)
    s_barrier
    s_mov_b64 exec, {sp(sTM)}
    ds_read_b32 v20, v10
    s_mov_b64 exec, -1
    ds_read_b32 v21, v12 offset:{FLAG + 4}
""")
    stamp('tbl')
    if OPT['pf'] == 2:
        xpf(RANK)
    if not OPT['w7d']:
        wdma()
    if OPT['wb'] == 2:
        a(f"""
    s_cmp_lg_u32 s{sRND}, 0
    s_cbranch_scc1 k2_now
""")
        wbuild()
        a("k2_now:")
    Q = G
    a(f"""
    s_waitcnt lgkmcnt(0)
    v_cmp_ne_u32 vcc, 0, v21
    v_and_b32 v4, 1, v20
    v_and_b32 v20, -4, v20
    s_cbranch_vccnz k2_p1h
    v_lshl_add_u32 v16, v4, 24, v16
    v_sub_u32_sdwa v4, v20, v20 {SDWA} src0_sel:WORD_1 src1_sel:WORD_0
    v_mov_b32 v5, v4
    v_add_u32_sdwa v6, v16, v20 {SDWA} src0_sel:DWORD src1_sel:WORD_0
    s_movk_i32 s{sT + 1}, 8192
""")
    for m in ("row_shr:1", "row_shr:2", "row_shr:4", "row_shr:8"):
        a(f"v_add_u32_dpp v5, v5, v5 {m} row_mask:0xf bank_mask:0xf")
    a(f"""
    v_add_u32_dpp v5, v5, v5 row_bcast:15 row_mask:0xa bank_mask:0xf
    s_lshl_b32 s{sT}, s{sWV}, 12
    s_add_u32 s{sT}, s{sT}, {CB}
    v_sub_u32 v4, v5, v4
    v_readlane_b32 s{sTOT}, v5, 31
    v_sub_u32 v6, v6, v4
    v_subrev_u32 v4, s{sRND}, v4
    v_subrev_u32 v5, s{sRND}, v5
    v_med3_i32 v4, v4, 0, s{sT + 1}
    v_med3_i32 v5, v5, 0, s{sT + 1}
    v_lshrrev_b32 v4, 2, v4
    v_lshrrev_b32 v5, 2, v5
    v_add_u32 v4, s{sT}, v4
    v_add_u32 v5, s{sT}, v5
    s_mov_b64 exec, {sp(sTM)}
    ds_add_u32 v4, v6
    ds_sub_u32 v5, v6
    s_mov_b64 exec, -1
    ds_read_b128 {v(Q, 4)}, v17
    ds_read_b128 {v(Q + 4, 4)}, v17 offset:16
    s_sub_u32 s{sTOT}, s{sTOT}, s{sRND}
    s_cmp_le_i32 s{sTOT}, 8192
    s_cbranch_scc1 k2_nomore
    ds_write_b32 v12, v14 offset:{FLAG}
k2_nomore:
""")
    for i in range(8):
        a(f"v_cmp_gt_i32 {m1(i)}, s{sTOT}, v9")
        if i < 7:
            a(f"s_sub_u32 s{sTOT}, s{sTOT}, 1024")
    a("s_waitcnt lgkmcnt(0)")
    for j in range(1, 8):
        a(f"v_add_u32 v{Q + j}, v{Q + j}, v{Q + j - 1}")
    a(f"v_mov_b32 v4, v{Q + 7}")
    wave_scan(a, Q + 7)
    a(f"v_sub_u32 v4, v{Q + 7}, v4")
    for j in range(7):
        a(f"v_add_u32 v{Q + j}, v{Q + j}, v4")
    a(f"""
    ds_write_b128 v17, {v(Q, 4)}
    ds_write_b128 v17, {v(Q + 4, 4)} offset:16
""")
    for j in range(4):
        a(f"ds_read2st64_b32 {v(ADDR + 2 * j, 2)}, v18 offset0:{2 * j} offset1:{2 * j + 1}")
    for i in range(8):
        a(f"s_mov_b64 {m2(i)}, {m1(i)}")
    a(f"""
    s_movk_i32 s{sK}, {GR_OFF - 16}
    s_mov_b32 s{sT + 3}, 0xc000003f
    s_mov_b32 s{sCNT}, 0
""")
    if OPT['pf'] == 9:
        a(f"""
    s_mov_b64 s[0:1], 0x1ffffff
    s_lshl_b32 s{sT + 2}, s{sC}, 3
    s_add_u32 s{sT + 2}, s{sT + 2}, s{sWV}
    s_mul_i32 s{sT + 2}, s{sT + 2}, 3200
    v_lshlrev_b32 v23, 3, v9
""")

    def dload(i):
        a(f"s_mov_b64 exec, {m2(i)}")
        a(f"buffer_load_dwordx4 {v(G + 4 * i, 4)}, v{ADDR + i}, {W}, s{sK} offen sc1")
    stamp('expd')
    if OPT['dr'] or (OPT['wb'] == 0 and not OPT['w7d']):
        a("s_waitcnt vmcnt(0)")
    if (OPT['wb'] == 0 and not OPT['w7d']) or OPT['dr'] == 2:
        a("s_barrier")
    stamp('drained')
    for i in range(8):
        if i % 2 == 0:
            a(f"s_waitcnt lgkmcnt({3 - i // 2})")
        dload(i)
    stamp('dissued')

    if OPT['wb'] == 0:
        a(f"""
    s_cmp_lg_u32 s{sRND}, 0
    s_cbranch_scc1 k2_dchk
    s_mov_b64 exec, -1
""")
        wbuild()
    stamp('wdone')
    a("s_branch k2_dchk")
    a("k2_dpoll:")
    for i in range(8):
        dload(i)
    a("k2_dchk:")
    PFX = 0
    if OPT['pf'] == 9:
        PFX = 1
        a(f"""
    s_mov_b64 exec, s[0:1]
    buffer_load_dword v22, v23, {X}, s{sT + 2} offen
    s_mov_b64 s[0:1], 0
""")
    for i in range(8):
        g = G + 4 * i
        a(f"""
    s_mov_b64 exec, {m2(i)}
    s_waitcnt vmcnt({7 - i + PFX})
    v_xor_b32 v4, s{sTAG}, v{g + 3}
    v_and_or_b32 v4, v{g + 2}, s{sT + 3}, v4
    v_cmpx_eq_u32 vcc, 0, v4
    v_bfe_u32 v{BIN + i}, v{g + 2}, 4, 10
    s_andn2_b64 {m2(i)}, {m2(i)}, vcc
    ds_add_rtn_u32 v{RANK + i}, v{BIN + i}, v14 offset:{HIST}
    v_and_or_b32 v{META + i}, v{g + 2}, s{sMSK}, v{META + i}
    ds_write_b64 v19, {v(g, 2)} offset:{512 * i}
""")
        if i == 1:
            a(f"s_or_b64 {sp(sAM)}, {m2(0)}, {m2(1)}")
        if i > 1:
            a(f"s_or_b64 {sp(sAM)}, {sp(sAM)}, {m2(i)}")
    a(f"""
    s_cbranch_scc0 k2_p1e
    s_add_u32 s{sCNT}, s{sCNT}, 1
    s_cmp_lt_u32 s{sCNT}, 0x20000
    s_cbranch_scc1 k2_dpoll
k2_p1e:
""")
    stamp('lastmeta')
    if OPT['pf'] == 1:
        xpf(ADDR)
    a(f"""
    s_mov_b64 exec, -1
    s_lshl_b32 s{sT}, s{sWV}, 3
    s_add_u32 s{sT + 1}, s{sT}, 4
    s_add_u32 s{sT + 2}, s{sT}, 7
    s_waitcnt lgkmcnt(0)
    s_barrier
""")
    stamp('bar2')
    a(f"""
    ds_read_b128 v[4:7], v9 offset:{HIST}
    ds_read_b32 v20, v12 offset:{FLAG}
""")
    if OPT['pf'] == 6:
        xpf(ADDR)
    a(f"""
    s_waitcnt lgkmcnt(1)
    v_add_u32 v5, v4, v5
    v_add_u32 v6, v5, v6
    v_add_u32 v7, v6, v7
    v_add_u32_dpp v10, v7, v7 quad_perm:[1,0,3,2] row_mask:0xf bank_mask:0xf
    v_add_u32_dpp v10, v10, v10 quad_perm:[2,3,0,1] row_mask:0xf bank_mask:0xf
    v_sub_u32 v10, 0, v10
    v_and_b32 v10, v15, v10
    v_add_u32 v7, v7, v10
    v_mov_b32 v10, v7
""")
    wave_scan(a, 10)
    a(f"""
    v_readlane_b32 s{sTOT}, v10, 63
    v_readlane_b32 s{sE1}, v10, s{sT + 2}
    v_sub_u32 v10, v10, v7
    s_sub_u32 s{sTOT}, {CB}, s{sTOT}
    v_add_u32 v10, s{sTOT}, v10
    v_add_u32 v7, v10, v6
    v_add_u32 v6, v10, v5
    v_add_u32 v5, v10, v4
    v_mov_b32 v4, v10
    ds_write_b128 v9, v[4:7] offset:{BTAB}
    s_add_u32 s{sE1}, s{sE1}, s{sTOT}
    v_readlane_b32 s{sP0}, v10, s{sT}
    v_readlane_b32 s{sP1}, v10, s{sT + 1}
    s_waitcnt lgkmcnt(1)
    v_readfirstlane_b32 s{sMORE}, v20
""")
    stamp('scan')
    for i in range(8):
        a(f"ds_read_b32 v{BIN + i}, v{BIN + i} offset:{BTAB}")
    a(f"""
    s_mov_b32 s{sE0}, s{sP1}
""")
    for i in range(8):
        a(f"s_mov_b64 exec, {m1(i)}")
        a(f"s_waitcnt lgkmcnt(7)")
        a(f"v_add_u32 v{BIN + i}, v{BIN + i}, v{RANK + i}")
        a(f"ds_write_b32 v{BIN + i}, v{META + i}")
    stamp('p2')
    if OPT['pf'] == 8:
        xpf(ADDR)
    a(f"""
    s_mov_b64 exec, -1
    s_cmp_lt_u32 s{sP0}, s{sE0}
    s_cselect_b32 s{sNT}, 0, 1
    s_cselect_b32 s{sNX}, s{sP0}, s{sP1}
    s_cselect_b32 s{sT}, 128, 0
    s_add_u32 s{sP0}, s{sP0}, s{sT}
    s_sub_u32 s{sT}, 128, s{sT}
    s_add_u32 s{sP1}, s{sP1}, s{sT}
    s_waitcnt {"vmcnt(0) " if OPT['pf'] == 9 else ""}lgkmcnt(0)
    s_barrier
""")
    stamp('sorted')
    ZE = 0

    def zero(lo, hi):
        for i in range(lo, hi):
            a(f"v_mov_b64 {v(ACC + 2 * i, 2)}, 0")

    def meta_reads():
        a(f"v_add_u32_sdwa v{TM}, s{sNX}, v{vP2} {SDWA} src0_sel:DWORD src1_sel:WORD_0")
        a(f"v_and_b32 v{BT}, -32, v{TM}")
        a(f"ds_read_b128 {v(M, 4)}, v{BT}")
        a(f"ds_read_b128 {v(M + 4, 4)}, v{BT} offset:16")
        a(f"ds_read_b64 {v(TM, 2)}, v{TM}")

    def loads(h):
        D = DA if h == 0 else DB
        for e in range(8):
            if h == 0:
                a(f"v_mad_u32_u16 v{M + e}, v{M + e}, s{s512}, v{vL16} op_sel:[1,0,0,0]")
            a(f"buffer_load_dwordx4 {v(D + 4 * e, 4)}, v{M + e}, {X}, 0 offen" + (" offset:256" if h else ""))

    def tr_addr():
        for i in range(2):
            a(f"v_xor_b32_sdwa v{TM + i}, v{TM + i}, v{vP2} {SDWA} src0_sel:WORD_0 src1_sel:WORD_1")
        for i in range(2):
            a(f"v_min_u32 v{TM + i}, s{sZI}, v{TM + i}")
        for i in range(2):
            a(f"v_lshl_add_u32 v{TM + i}, v{TM + i}, 3, s{sCB}")

    def tr_reads():
        a(f"ds_read_b64_tr_b16 {v(A, 2)}, v{TM}")
        a(f"ds_read_b64_tr_b16 {v(A + 2, 2)}, v{TM + 1}")

    def half(t, h, lg):
        D = DA if h == 0 else DB
        pairs = [(0, 2), (4, 6), (1, 3), (5, 7)]

        def perms(j):
            r, p = j >> 1, j & 1
            for k, (e0, e1) in enumerate(pairs):
                a(f"v_perm_b32 v{BT + 4 * (j & 1) + k}, v{D + 4 * e1 + r}, v{D + 4 * e0 + r}, s{sHI if p else sLO}")
        perms(0)
        for j in range(8):
            if j + 1 < 8:
                perms(j + 1)
            if j == 0 and lg is not None:
                a(f"s_waitcnt lgkmcnt({lg})")
            c = v(ACC + 64 * t + (8 * h + j) * 4, 4)
            a(f"v_mfma_f32_16x16x32_bf16 {c}, {v(A, 4)}, {v(BT + 4 * (j & 1), 4)}, {c}")

    if OPT['prio'] >= 1:
        a(f"""
    s_cmp_lt_u32 s{sWV}, 4
    s_cselect_b64 vcc, -1, 0
    s_cbranch_scc1 k2_lop
    s_setprio 1
k2_lop:
""")
    pcnt = [0]

    def tprio(p):
        pcnt[0] += 1
        a(f"""
    s_cbranch_vccz k2_pr{pcnt[0]}
    s_setprio {p}
k2_pr{pcnt[0]}:
""")

    a(f"""
    s_cmp_ge_u32 s{sNX}, s{sE1}
    s_cbranch_scc1 k2_wz
""")
    meta_reads()
    a("s_waitcnt lgkmcnt(1)")
    loads(0)
    loads(1)
    a("s_waitcnt lgkmcnt(0)")
    tr_addr()
    tr_reads()
    stamp('first')
    a(f"""
k2_wz:
    s_cmp_lg_u32 s{sRND}, 0
    s_cbranch_scc1 k2_noz
""")
    if OPT['wb'] == 1:
        wbuild()
    zero(ZE, 64)
    a(f"""
    s_xor_b32 s{sT}, s{sWV}, 7
    s_or_b32 s{sT}, s{sT}, s2
    s_or_b32 s{sT}, s{sT}, s{sRST}
    s_cbranch_scc1 k2_noz
    s_mov_b64 exec, 1
    v_mov_b32 v{BT}, s{sTAG}
    buffer_store_dword v{BT}, off, {W}, 0 sc1
    s_mov_b64 exec, -1
""")
    a(f"""
k2_noz:
    s_cmp_ge_u32 s{sNX}, s{sE1}
    s_cbranch_scc1 k2_done
""")
    if 'it1' in SMAP:
        a("s_waitcnt vmcnt(8)")
        stamp('it1')
    a(f"""
    s_cmp_eq_u32 s{sNT}, 0
    s_cbranch_scc0 k2_stub1
""")
    for t in range(2):
        po, eo, ps, es = (sP1, sE1, sP0, sE0) if t == 0 else (sP0, sE0, sP1, sE1)
        a(f"""
k2_stub{t}:
    s_cmp_lt_u32 s{po}, s{eo}
    s_cbranch_scc1 k2_oth{t}
    s_cmp_lt_u32 s{ps}, s{es}
    s_cbranch_scc0 k2_tail{t}
    s_mov_b32 s{sNX}, s{ps}
    s_add_u32 s{ps}, s{ps}, 128
    s_mov_b32 s{sNT}, {t}
    s_branch k2_body{t}
k2_oth{t}:
    s_mov_b32 s{sNX}, s{po}
    s_add_u32 s{po}, s{po}, 128
    s_mov_b32 s{sNT}, {1 - t}
k2_body{t}:
""")
        if OPT['prio'] == 2:
            tprio(2 - 2 * t)
        if OPT['prio'] == 3:
            tprio(2)
        meta_reads()
        a("s_waitcnt vmcnt(8)")
        half(t, 0, 3)
        a("s_waitcnt lgkmcnt(0)")
        loads(0)
        tr_addr()
        if OPT['prio'] == 3 or (OPT['prio'] == 4 and t == 1):
            tprio(0)
        if OPT['prio'] == 4 and t == 0:
            tprio(2)
        a("s_waitcnt vmcnt(8)")
        half(t, 1, None)
        loads(1)
        tr_reads()
        a(f"s_cmp_eq_u32 s{sNT}, 0")
        a(f"s_cbranch_scc1 k2_stub0")
        if t == 1:
            a("s_branch k2_stub1")
    for t in range(2):
        a(f"k2_tail{t}:")
        a("s_waitcnt vmcnt(8)")
        half(t, 0, 0)
        a("s_waitcnt vmcnt(0)")
        half(t, 1, None)
        if t == 0:
            a("s_branch k2_done")
    a(f"""
k2_done:
    {"s_setprio 0" if OPT['prio'] >= 2 else ""}
    s_waitcnt vmcnt(0)
    v_mbcnt_lo_u32_b32 v{LANE}, -1, 0
    v_mbcnt_hi_u32_b32 v{LANE}, -1, v{LANE}
    s_cmp_eq_u32 s{sMORE}, 0
    s_cbranch_scc1 k2_fin
    s_add_u32 s{sRND}, s{sRND}, 8192
    s_movk_i32 s{sC}, 255
    s_barrier
    s_branch k2_round
k2_p1h:
    v_readfirstlane_b32 s{sC}, v21
    s_sub_u32 s{sC}, s{sC}, 1
    s_add_u32 s{sRST}, s{sRST}, 1
    s_cmp_gt_u32 s{sRST}, 2000
    s_cbranch_scc1 k2_end
    s_waitcnt vmcnt(0) lgkmcnt(0)
    s_barrier
    s_branch k2_round
k2_np:
    ds_read_b32 v8, v12 offset:{FLAG + 16}
    s_waitcnt lgkmcnt(0)
    v_readfirstlane_b32 s{sTAG}, v8
    s_branch k2_b3b
k2_hpub:
    s_bitcmp1_b32 s2, 1
    s_cselect_b64 vcc, -1, 0
    s_lshl_b32 s{sT + 1}, s2, 4
    s_lshr_b32 s{sT + 2}, s2, 2
    s_lshl_b32 s{sT}, s{sC}, 2
    s_add_u32 s{sT}, s{sT}, {TENT}
    v_cndmask_b32 v76, v76, v77, vcc
    v_cndmask_b32 v77, v77, v78, vcc
    v_mov_b32 v4, s{sT}
    v_alignbit_b32 v76, v77, v76, s{sT + 1}
    v_or_b32 v76, 3, v76
    s_lshl_b64 exec, 1, s{sT + 2}
    ds_write_b32 v4, v76
    s_mov_b64 exec, -1
    v_add_u32 v7, {TENT - CB - 7 * 4096}, v18
    ds_read2st64_b32 v[80:81], v7 offset0:0 offset1:1
    ds_read2st64_b32 v[82:83], v7 offset0:2 offset1:3
    s_branch k2_w7p
k2_hst:
    v_mov_b32 v5, s2
    v_lshlrev_b32 v5, 2, v5
    ds_read_b32 v4, v5 offset:{PH}
    ds_read_b32 v6, v5 offset:{BTAB}
    s_waitcnt lgkmcnt(0)
    v_sub_u32 v6, v8, v6
""")
    for j in range(8):
        a(f"""
    s_mov_b64 exec, -1
    v_cmp_lt_u32 vcc, v6, v4
    v_add_u32 v6, 1024, v6
    s_mov_b64 exec, vcc
    buffer_store_dwordx4 {v(PG + 4 * j, 4)}, v8, {W}, s{sT + j // 4} offen offset:{1024 * (j % 4)} sc1
""")
    a(f"""
    s_waitcnt vmcnt(0)
    s_branch k2_b3b
k2_fin:
""")
    stamp('mainend')
    a(f"""
    s_xor_b32 s{sFIRST}, s{sWV}, 7
    s_or_b32 s{sFIRST}, s{sFIRST}, s{sRST}
    s_cbranch_scc1 k2_ne
    buffer_load_dword v20, off, {W}, 0 sc1
k2_ne:
""")
    OP = 528
    OUTH, OUTL = 64 * ROW, CB - 24576
    a(f"""
    s_setprio 0
    v_lshrrev_b32 v3, 4, v{LANE}
    s_lshl_b32 s{sT}, s{sWV}, 1
    s_and_b32 s{sT}, s{sT}, 7
    s_lshr_b32 s{sT + 1}, s{sWV}, 2
    s_lshl_b32 s{sT + 1}, s{sT + 1}, 5
    s_add_u32 s{sT}, s{sT}, s{sT + 1}
    v_lshl_add_u32 v4, v3, 3, s{sT}
    v_mul_u32_u24 v4, {ROW}, v4
    v_bfe_u32 v5, v{LANE}, 3, 1
    v_mul_u32_u24 v5, 640, v5
    v_and_b32 v6, 7, v{LANE}
    v_lshl_add_u32 v5, v6, 4, v5
    v_add_u32 v4, v4, v5
    s_cmp_ge_u32 s{sWV}, 4
    s_cselect_b32 s{sT + 1}, -1, 0xffff
    s_mov_b32 s{sT + 3}, 0xffff
""")

    def R(t, h, q, jj):
        return ACC + 64 * t + (8 * h + jj) * 4 + q
    DP = "row_mask:0xf bank_mask:0xc"
    for t in range(2):
        for jj in range(8):
            a(f"v_add_f32_dpp v{R(t, 0, 1, jj)}, v{R(t, 1, 3, jj)}, v{R(t, 0, 1, jj)} quad_perm:[0,1,2,3] {DP}")
            a(f"v_sub_f32_dpp v{R(t, 0, 2, jj)}, v{R(t, 1, 1, jj)}, v{R(t, 0, 2, jj)} row_shr:8 {DP}")
            a(f"v_subrev_f32_dpp v{R(t, 0, 3, jj)}, v{R(t, 1, 1, jj)}, v{R(t, 0, 3, jj)} quad_perm:[0,1,2,3] {DP}")
            a(f"v_add_f32_dpp v{R(t, 0, 1, jj)}, v{R(t, 1, 2, jj)}, v{R(t, 0, 1, jj)} row_shr:8 {DP}")
            a(f"v_subrev_f32_dpp v{R(t, 1, 2, jj)}, v{R(t, 1, 3, jj)}, v{R(t, 1, 2, jj)} row_shr:8 {DP}")
        regs = [(0, 0), (0, 1), (0, 2), (0, 3), (1, 0), (1, 2)]
        for u, (h, q) in enumerate(regs):
            for k in range(4):
                a(f"v_cvt_pk_bf16_f32 v{DA + 32 * t + 4 * u + k}, v{R(t, h, q, 2 * k)}, v{R(t, h, q, 2 * k + 1)}")
        if t == 0:
            stamp('dpp0')
        hi = sT + 1 + 2 * t
        a(f"s_mov_b32 exec_hi, s{hi}")
        for u in range(5):
            a(f"ds_write_b128 v4, {v(DA + 32 * t + 4 * u, 4)} offset:{t * ROW + u * 128}")
        a(f"s_mov_b32 exec_lo, 0xff00ff00")
        a(f"s_and_b32 exec_hi, s{hi}, 0xff00ff00")
        a(f"ds_write_b128 v4, {v(DA + 32 * t + 20, 4)} offset:{t * ROW + 640}")
        a("s_mov_b64 exec, -1")
        stamp(f'sw{t}')
    vRA, vOW, vLA, vG0, vG1, vRB, vOB = 4, 5, 6, 7, 8, 9, 10
    sPH, sMK, sEX = sNT, sP0, sT + 1
    a(f"""
    v_and_b32 v11, 15, v{LANE}
    v_mul_u32_u24 v{vRB}, {ROW}, v11
    v_lshl_add_u32 v{vRB}, v3, 4, v{vRB}
    s_and_b32 s{sT}, s{sWV}, 3
    s_lshl_b32 s{sT}, s{sT}, 5
    v_mul_u32_u24 v{vOB}, {OP}, v11
    v_lshl_add_u32 v12, v3, 3, s{sT}
    v_add_u32 v{vOB}, v{vOB}, v12
    s_mov_b32 s{sEX}, 0xbfb8aa3b
    s_mov_b64 {sp(sMK)}, -1
    s_cmp_lt_u32 s{sWV}, 4
    s_cbranch_scc1 k2_sb
    v_mov_b32 v12, {CB + ZI * 8}
    v_mov_b32 v13, 1
    v_add_u32 v{vRA}, {32 * ROW}, v{vRB}
    v_add_u32 v{vOW}, {OUTH}, v{vOB}
    s_mov_b32 s{sPH}, 0
    s_mov_b64 exec, 1
    ds_add_u32 v12, v13 offset:8
k2_hsp:
    ds_read_b32 v13, v12 offset:8
    s_waitcnt lgkmcnt(0)
    v_cmp_gt_u32 vcc, 4, v13
    s_cbranch_vccz k2_hgo
    s_sleep 2
    s_branch k2_hsp
k2_hgo:
    s_mov_b64 exec, -1
    s_branch k2_tile
k2_ph1:
    v_add_u32 v{vRA}, {48 * ROW}, v{vRB}
    v_add_u32 v{vOW}, {OUTH + 16 * OP}, v{vOB}
    s_mov_b32 s{sMK}, 0x01ff01ff
    s_mov_b32 s{sMK + 1}, 0x01ff01ff
    s_branch k2_tile
k2_ph2:
    s_mov_b64 {sp(sMK)}, -1
    s_cmp_lg_u32 s{sFIRST}, 0
    s_cbranch_scc1 k2_sb
    s_waitcnt vmcnt(0)
    v_cmp_ne_u32 vcc, s{sTAG}, v20
    s_cbranch_vccz k2_sb
    s_mov_b64 exec, 1
    v_mov_b32 v20, s{sTAG}
    buffer_store_dword v20, off, {W}, 0 sc1
    s_mov_b64 exec, -1
k2_sb:
    s_lshr_b32 s{sT}, s{sWV}, 2
    s_mul_i32 s{sT + 2}, s{sT}, {16 * OP}
    s_mul_i32 s{sT}, s{sT}, {16 * ROW}
    s_add_u32 s{sT + 2}, s{sT + 2}, {OUTL}
    v_add_u32 v{vRA}, s{sT}, v{vRB}
    v_add_u32 v{vOW}, s{sT + 2}, v{vOB}
    s_mul_i32 s{sT}, s{sWV}, 3
    v_lshrrev_b32 v12, 5, v{LANE}
    v_add_u32 v12, s{sT}, v12
    v_and_b32 v13, 31, v{LANE}
    v_lshlrev_b32 v13, 4, v13
    s_movk_i32 s{sT}, {OP}
    v_mad_u32_u24 v{vLA}, v12, s{sT}, v13
    v_add_u32 v{vLA}, {OUTH}, v{vLA}
    s_mov_b32 s{sPH}, 2
    s_waitcnt lgkmcnt(0)
    s_barrier
""")
    stamp('sbar')
    a(f"""
    ds_read_b128 v[64:67], v{vLA}
    ds_read_b128 v[68:71], v{vLA} offset:{2 * OP}
k2_tile:
""")
    slot = dict(F0=0, F21=1, F22=2, F23=3, F32=4, F31=5, F1=6, F43=7, F42=8, F33=9, F41=10)
    terms = {0: [(0, 'F0'), (1, 'F1')]}
    for i in (1, 2, 3):
        terms[i] = [(2, f'F2{i}'), (3, f'F3{i}'), (4, f'F4{i}')]
    AH = 12
    BB = 160
    OA = 128
    sq = []
    for ti in range(3):
        for h in range(2):
            for o in range(4):
                if ti < len(terms[o]):
                    tt, f = terms[o][ti]
                    sq.append(dict(off=slot[f] * 128 + h * 64, w=2 * tt + h, d=OA + 4 * o, first=(ti == 0 and h == 0)))
    n = len(sq)

    def rd(i):
        a(f"ds_read_b128 {v(BB + 4 * i, 4)}, v{vRA} offset:{sq[i]['off']}")

    def qsum(lo, hi, lab):
        a(f"s_cmp_lg_u32 s{sPH}, 1")
        a(f"s_cbranch_scc1 {lab}")
        for r in range(lo, hi):
            a(f"v_add_f32_dpp v{r}, v{r}, v{r} quad_perm:[2,3,0,1] row_mask:0xf bank_mask:0xc")
        for r in range(lo, hi):
            a(f"v_add_f32_dpp v{r}, v{r}, v{r} row_shl:4 row_mask:0xf bank_mask:0x4")
        a(f"{lab}:")
    for i in range(AH):
        rd(i)
    a(f"""
    s_cmp_lg_u32 s{sPH}, 2
    s_cbranch_scc1 k2_nhs
    s_lshl_b32 s{sT}, s2, 9
    v_add_u32 v13, s{sT}, v13
    v_add_u32 v14, 2, v12
    v_and_b32 v15, 24, v12
    v_add_u32 v12, v12, v15
    v_and_b32 v15, 24, v14
    v_add_u32 v14, v14, v15
    v_lshl_add_u32 v{vG0}, v12, 17, v13
    v_lshl_add_u32 v{vG1}, v14, 17, v13
    v_min_u32 v14, 40, v14
    s_mov_b32 s{sT}, {8 << 17}
    v_lshl_add_u32 v14, v14, 17, v13
    s_cmp_eq_u32 s{sWV}, 7
    s_waitcnt lgkmcnt({AH})
    buffer_store_dwordx4 v[64:67], v{vG0}, {O}, s{sT} offen{OSC}
    s_cselect_b32 exec_hi, -1, 0
    buffer_store_dwordx4 v[68:71], v14, {O}, s{sT} offen{OSC}
    s_mov_b32 exec_hi, -1
k2_nhs:
""")
    g = 16
    for i in range(n):
        e = sq[i]
        if i + AH < n:
            rd(i + AH)
        a(f"s_waitcnt lgkmcnt({min(AH, n - 1 - i)})")
        d = v(e['d'], 4)
        a(f"v_mfma_f32_16x16x32_bf16 {d}, {v(WF + 4 * e['w'], 4)}, {v(BB + 4 * i, 4)}, {'0' if e['first'] else d}")
        if i == 15:
            qsum(OA, OA + 4, "k2_q0")
            for k in range(4):
                a(f"v_mul_f32 v{g + k}, s{sEX}, v{OA + k}")
        if i == 16:
            for k in range(4):
                a(f"v_exp_f32 v{g + k}, v{g + k}")
        if i == 17:
            a(f"v_cvt_pk_bf16_f32 v{OA}, v{OA}, v{OA + 1}")
            a(f"v_cvt_pk_bf16_f32 v{OA + 1}, v{OA + 2}, v{OA + 3}")
            for k in range(4):
                a(f"v_add_f32 v{g + k}, 1.0, v{g + k}")
        if i == 18:
            for k in range(4):
                a(f"v_rcp_f32 v{g + k}, v{g + k}")
    qsum(OA + 4, OA + 16, "k2_q1")
    a(f"s_mov_b64 exec, {sp(sMK)}")
    a(f"ds_write_b64 v{vOW}, {v(OA, 2)}")
    for o in range(1, 4):
        b = OA + 4 * o
        for k in range(2):
            a(f"v_pk_mul_f32 {v(b + 2 * k, 2)}, {v(b + 2 * k, 2)}, {v(g + 2 * k, 2)}")
        a(f"v_cvt_pk_bf16_f32 v{b}, v{b}, v{b + 1}")
        a(f"v_cvt_pk_bf16_f32 v{b + 1}, v{b + 2}, v{b + 3}")
        a(f"ds_write_b64 v{vOW}, {v(b, 2)} offset:{128 * o}")
    a(f"""
    s_mov_b64 exec, -1
    s_add_u32 s{sPH}, s{sPH}, 1
    s_cmp_eq_u32 s{sPH}, 1
    s_cbranch_scc1 k2_ph1
    s_cmp_eq_u32 s{sPH}, 2
    s_cbranch_scc1 k2_ph2
""")
    stamp('fin0')
    a(f"""
    s_waitcnt lgkmcnt(0)
    s_barrier
    ds_read_b128 v[64:67], v{vLA} offset:{OUTL - OUTH}
    ds_read_b128 v[68:71], v{vLA} offset:{OUTL - OUTH + 2 * OP}
    s_waitcnt lgkmcnt(1)
    buffer_store_dwordx4 v[64:67], v{vG0}, {O}, 0 offen{OSC}
    s_mov_b32 exec_hi, 0
    s_waitcnt lgkmcnt(0)
    buffer_store_dwordx4 v[68:71], v{vG1}, {O}, 0 offen{OSC}
    s_mov_b32 exec_hi, -1
""")
    a("k2_out:")
    if OPT['stamps']:
        stamp('gend')
        a(f"""
    s_waitcnt vmcnt(0) lgkmcnt(0)
    s_memrealtime s[20:21]
    s_lshl_b32 s{sT}, s2, 3
    s_add_u32 s{sT}, s{sT}, s{sWV}
    s_lshl_b32 s{sT}, s{sT}, 6
    s_add_u32 s{sT}, s{sT}, {ST_OFF}
    v_mov_b32 v4, s{sT}
    s_waitcnt lgkmcnt(0)
""")
        for i in range(7):
            a(f"v_mov_b32 v{8 + 2 * i}, s{88 + 2 * i}")
            a(f"v_mov_b32 v{9 + 2 * i}, s{89 + 2 * i}")
        a(f"v_mov_b32 v22, s20")
        a(f"v_mov_b32 v23, s21")
        a("s_mov_b64 exec, 1")
        for i in range(4):
            a(f"global_store_dwordx4 v4, {v(8 + 4 * i, 4)}, s[{sW}:{sW + 1}] offset:{16 * i}")
    a("""
k2_end:
    s_endpgm
""")
    return a.lines, LDS


def main():
    out = sys.argv[1] if len(sys.argv) > 1 else f"cdna_kernels/{NAME}.s"
    ref = open(f"cdna_kernels/{NAME}.s.ref").read().split('\n')
    hdr = [l for l in ref if l.startswith(';') and '@launch' not in l and 'Override' not in l and 'grid=ceil' not in l]
    k2, lds2 = gen_k2()
    k2, n2 = pad_hazards(k2, OPT.get('verbose', 0))
    kk = f"kernel={KN} " if OPT['lst'] else ""
    txt = hdr + [
        f"; @launch {kk}grid=(256,1,1) block=(512,1,1) lds={lds2}",
        '.amdgcn_target "amdgcn-amd-amdhsa--gfx950"', '.text']
    txt += [f".globl {KN}", ".p2align 8", f".type {KN},@function"] + k2
    txt += ['.section .rodata,"a"']
    txt += [".p2align 6", f".amdhsa_kernel {KN}",
            f"  .amdhsa_next_free_vgpr 256", "  .amdhsa_next_free_sgpr 102",
            f"  .amdhsa_accum_offset 256", "  .amdhsa_group_segment_fixed_size 0",
            "  .amdhsa_kernarg_size 96", "  .amdhsa_user_sgpr_count 2",
            "  .amdhsa_user_sgpr_kernarg_segment_ptr 1", "  .amdhsa_system_sgpr_workgroup_id_x 1",
            ".end_amdhsa_kernel"]
    open(out, 'w').write('\n'.join(txt) + '\n')
    print(f"wrote {out}: pads {n2}, lines {len(txt)}")


main()
```

```python
import sys
from asmlib import Asm, v, s, pad_hazards

NAME = "gather_scatter__tensor_product_equiv_equiformer__graph"
OPT = dict(cpf=0, sl0=0, sl1=0, w7d=1, wb=2, dr=1, notbl=0, nodma=0, b1=2, pp=1, dbg=0, gsc=1, nst=7, stamps=0, prio=1, osc=0, lst=0, tlim=400, skip=-1, wpos=0, nt=3, ze=0, pf=1)
for a in sys.argv[2:]:
    k, val = a.split('=')
    OPT[k] = int(val, 0)

assert 0 <= OPT['b1'] <= 9
N = 12500
NCH = 250
CH = 3200
GR_OFF = 0x1000
TBL_OFF = 0xD00000
ALT = 0x1000000
WS_SIZE = ALT + 0xD80000
ST_OFF = 0xE00000
SDWA = "dst_sel:DWORD dst_unused:UNUSED_PAD"
KN = NAME + "_kernel"


def wave_scan(a, r):
    for m in ("row_shr:1", "row_shr:2", "row_shr:4", "row_shr:8"):
        a(f"v_add_u32_dpp {v(r)}, {v(r)}, {v(r)} {m} row_mask:0xf bank_mask:0xf")
    a(f"v_add_u32_dpp {v(r)}, {v(r)}, {v(r)} row_bcast:15 row_mask:0xa bank_mask:0xf")
    a(f"v_add_u32_dpp {v(r)}, {v(r)}, {v(r)} row_bcast:31 row_mask:0xc bank_mask:0xf")


def gen_k2():
    a = Asm()
    LDS = 163840
    HIST, PH, BTAB, FLAG = 0, 1024, 2048, 3072
    RAWW = 3136
    WRAD = RAWW + 40960
    STG = WRAD + 1280
    CB = 131040
    TENT = STG + CH * 16
    ZI = 4096
    ROW = 1440
    vL16, vP2, TM, A, BT, M, WF, DA, DB, ACC = 0, 1, 2, 4, 8, 16, 24, 64, 96, 128
    LANE, TID = 2, 3
    G, ADDR, BIN, META, RANK = 64, 96, 104, 112, 120
    DST, SRC, EA, RH, BOFF, RNK, SCN, UP, PG = 128, 136, 144, 148, 160, 168, 176, 184, 192
    sC = 3
    sX, sW, sO = 4, 8, 12
    sWV, sRND, sMORE, sTOT = 16, 17, 18, 19
    sP0, sE0, sP1, sE1, sNX, sNT = 20, 21, 22, 23, 24, 25
    sLO, sHI, s512, sZI, sCB, sMSK = 26, 27, 28, 29, 30, 31
    sT = 32
    sRST, sFIRST = 36, 37
    sDBG = 38
    sM = 40
    pR, pE, pS, pD, pWR, pW0, pW1 = 72, 74, 76, 78, 80, 82, 84
    sEP, sTAG = 86, 87
    sAM, sTM, sCNT, sK = 20, 22, 24, 25
    X = f"s[{sX}:{sX + 3}]"
    W = f"s[{sW}:{sW + 3}]"
    O = f"s[{sO}:{sO + 3}]"
    OSC = {0: "", 1: " sc1", 2: " sc0 sc1", 3: " nt"}[OPT['osc']]
    NT = " nt" if OPT['nt'] & 1 else ""
    NT2 = " nt" if OPT['nt'] & 2 else ""

    SMAP = {1: dict(start=0, tbl=1, lastmeta=2, sorted=3, mainend=4, sbar=5, gend=6),
            2: dict(start=0, drained=1, bar2p=2, rest=3, bar3=4, stored=5, tbl=6),
            7: dict(start=0, bar2p=1, n7b=2, g0=3, e0=4, e3=5, rest=6),
            9: dict(start=0, issued=1, dst=2, bar2p=3, g0=4, rest=5, bar3=6),
            6: dict(start=0, issued=1, pre1=2, dst=3, bar2p=4, rest=5, bar3=6),
            3: dict(start=0, drained=1, dissued=2, wdone=3, lastmeta=4, bar2=5, sorted=6),
            8: dict(start=0, tbl=1, expd=2, drained=3, dissued=4, lastmeta=5, sorted=6),
            4: dict(start=0, mainend=1, dpp0=2, sw1=3, sbar=4, fin0=5, gend=6),
            5: dict(start=0, bar2=1, scan=2, p2=3, sorted=4, first=5, it1=6)}.get(OPT['stamps'], {})

    def stamp(nm):
        if nm in SMAP:
            i = SMAP[nm]
            a(f"s_memrealtime s[{88 + 2 * i}:{89 + 2 * i}]")

    def m1(i):
        return f"s[{sM + 4 * i}:{sM + 4 * i + 1}]"

    def m2(i):
        return f"s[{sM + 4 * i + 2}:{sM + 4 * i + 3}]"

    def sp(i):
        return f"s[{i}:{i + 1}]"

    a(f"""
{KN}:
    s_cmp_ge_u32 s2, 256
    s_cbranch_scc1 k2_end
""")
    stamp('start')
    a(f"""
    s_load_dwordx16 s[72:87], s[0:1], 8
    s_load_dwordx2 s[{sW}:{sW + 1}], s[0:1], 88
    s_load_dwordx2 s[{sX}:{sX + 1}], s[0:1], 0
    s_load_dwordx2 s[{sO}:{sO + 1}], s[0:1], 72
    v_lshrrev_b32 v3, 6, v0
    s_mov_b32 s{sC}, s2
    v_readfirstlane_b32 s{sWV}, v3
    s_and_b32 s{sT}, s2, 7
    s_lshr_b32 s2, s2, 3
    s_lshl_b32 s{sT}, s{sT}, 5
    s_or_b32 s2, s2, s{sT}
    s_mov_b32 s{sX + 2}, {N * 512}
    s_mov_b32 s{sX + 3}, 0x00020000
    s_mov_b32 s{sW + 2}, {WS_SIZE}
    s_mov_b32 s{sW + 3}, 0x00020000
    s_mov_b32 s{sO + 2}, {N * 512}
    s_mov_b32 s{sO + 3}, 0x00020000
    s_mov_b32 s{sRND}, 0
    s_mov_b32 s{sRST}, 0
""")
    if OPT['cpf'] == 2:
        a(f"""
    s_getpc_b64 s[{sT}:{sT + 1}]
k2_pc:
    v_lshlrev_b32 v252, 5, v0
    v_min_u32 v252, k2_end-k2_pc, v252
    v_add_co_u32 v252, vcc, s{sT}, v252
    v_mov_b32 v253, s{sT + 1}
    v_addc_co_u32 v253, vcc, 0, v253, vcc
    global_load_dword v255, v[252:253], off
""")
    if OPT['skip'] >= 0:
        a(f"""
    s_cmp_eq_u32 s{sC}, {OPT['skip']}
    s_cselect_b32 s{sC}, 255, s{sC}
""")
    def wdma():
        a(f"""
    s_lshl_b32 s{sT + 2}, s{sWV}, 11
    s_add_u32 m0, s{sT + 2}, {RAWW}
    v_add_u32 v4, s{sT + 2}, v9
    s_mul_i32 s{sT + 2}, s{sWV}, 3072
    global_load_lds_dwordx4 v4, {sp(pW0)}
    global_load_lds_dwordx4 v4, {sp(pW0)} offset:1024
    s_add_u32 m0, s{sT + 2}, {RAWW + 16384}
    v_add_u32 v5, s{sT + 2}, v9
    global_load_lds_dwordx4 v5, {sp(pW1)}
    global_load_lds_dwordx4 v5, {sp(pW1)} offset:1024
    global_load_lds_dwordx4 v5, {sp(pW1)} offset:2048
""")
    el = [f"global_load_dwordx4 {v(DST, 4)}, v4, {sp(pD)}{NT}",
          f"global_load_dwordx4 {v(DST + 4, 4)}, v7, {sp(pD)}{NT}",
          f"global_load_dwordx4 {v(SRC, 4)}, v4, {sp(pS)}{NT}",
          f"global_load_dwordx2 {v(EA, 2)}, v5, {sp(pE)}{NT}",
          f"global_load_dwordx4 {v(RH, 4)}, v6, {sp(pR)}{NT2}",
          f"global_load_dwordx2 {v(RH + 4, 2)}, v6, {sp(pR)} offset:16{NT2}",
          f"global_load_dwordx4 {v(SRC + 4, 4)}, v7, {sp(pS)}{NT}",
          f"global_load_dwordx2 {v(EA + 2, 2)}, v5, {sp(pE)} offset:{CH}{NT}",
          f"global_load_dwordx4 {v(RH + 6, 4)}, v8, {sp(pR)}{NT2}",
          f"global_load_dwordx2 {v(RH + 10, 2)}, v8, {sp(pR)} offset:16{NT2}"]
    a(f"""
k2_round:
    v_mbcnt_lo_u32_b32 v{LANE}, -1, 0
    v_mbcnt_hi_u32_b32 v{LANE}, -1, v{LANE}
    s_lshl_b32 s{sT}, s{sWV}, 6
    v_add_u32 v{TID}, s{sT}, v{LANE}
    v_mov_b32 v12, 0
    v_lshlrev_b32 v14, 2, v{TID}
    ds_write_b32 v14, v12 offset:{HIST}
    s_mul_i32 s{sT}, s{sC}, {CH * 4}
    s_mul_i32 s{sT + 1}, s{sC}, {CH * 2}
    s_mul_i32 s{sT + 2}, s{sC}, {CH * 6}
    v_lshl_add_u32 v4, v{TID}, 4, s{sT}
    v_lshl_add_u32 v5, v{TID}, 3, s{sT + 1}
    v_mul_u32_u24 v6, 24, v{TID}
    v_add_u32 v6, s{sT + 2}, v6
    v_add_u32 v7, {CH * 2}, v4
    v_add_u32 v8, {CH * 3}, v6
    v_cmp_gt_u32 vcc, {CH // 8}, v{TID}
    v_lshlrev_b32 v9, 4, v{LANE}
    s_mov_b64 {sp(sAM)}, vcc
    s_or_b32 s{sFIRST}, s{sRST}, s{sRND}
    s_cmp_ge_u32 s{sC}, {NCH}
    s_cselect_b64 vcc, 0, vcc
    s_waitcnt lgkmcnt(0)
    s_cbranch_vccz k2_noedge
    s_mov_b64 exec, vcc
""")
    for i in range(10):
        if i == OPT['b1']:
            a("s_barrier")
        a(el[i])
    a(f"""
    s_mov_b64 exec, -1
    s_branch k2_init
k2_noedge:
    s_cmp_lg_u32 s{sWV}, 7
    s_cbranch_scc1 k2_nb1
    s_cmp_lg_u32 s{sFIRST}, 0
    s_cbranch_scc1 k2_noep
    s_load_dword s{sEP}, s[{sW}:{sW + 1}], 0
k2_noep:
    v_min_u32 v99, {39 * 16}, v9
    s_and_b32 s{sT}, s2, 31
    s_mul_i32 s{sT + 1}, s{sT}, 768
    s_lshl_b32 s{sT}, s{sT}, 9
    v_min_u32 v100, 3, v{LANE}
    v_min_u32 v101, 5, v{LANE}
    v_lshl_add_u32 v100, v100, 7, s{sT}
    v_lshl_add_u32 v101, v101, 7, s{sT + 1}
    global_load_dwordx4 v[64:67], v99, {sp(pWR)}
    global_load_dword v100, v100, {sp(pW0)}
    global_load_dword v101, v101, {sp(pW1)}
""")
    if OPT['cpf'] == 1:
        a(f"""
    s_getpc_b64 s[{sT}:{sT + 1}]
k2_pc:
    v_lshlrev_b32 v132, 2, v9
    v_mov_b32 v133, s{sT + 1}
""")
        for k in range(4):
            a(f"""
    v_min_u32 v134, k2_end-k2_pc, v132
    v_add_co_u32 v134, vcc, s{sT}, v134
    v_addc_co_u32 v135, vcc, 0, v133, vcc
    v_add_u32 v132, 4096, v132
    global_load_dword v{128 + k}, v[134:135], off
""")
    a(f"""
k2_nb1:
    s_barrier
k2_init:
""")
    stamp('issued')
    if OPT['dbg'] == 3:
        for k, n in enumerate((8, 7, 6, 4, 3, 0)):
            a(f"s_waitcnt vmcnt({n})")
            a(f"s_memrealtime s[{90 + 2 * k}:{91 + 2 * k}]")
        a("s_branch k2_out")
    a(f"""
    v_mov_b32 v4, -1
    v_mov_b32 v5, -1
    v_mov_b32 v6, -1
    v_mov_b32 v7, -1
    v_mov_b32 v13, 0
    v_lshlrev_b32 v8, 2, v14
    v_add_u32 v8, {CB - 24576}, v8
    ds_write_b128 v8, v[4:7]
    ds_write_b128 v8, v[4:7] offset:8192
    ds_write_b128 v8, v[4:7] offset:16384
    s_lshl_b32 s{sT}, s{sWV}, 12
    s_add_u32 s{sT}, s{sT}, {CB}
    v_mov_b32 v16, 16
    v_mov_b32 v17, 16
    v_mov_b32 v18, 16
    v_mov_b32 v19, 16
    v_add_u32 v8, s{sT}, v9
    ds_write_b128 v8, v[16:19]
    ds_write_b128 v8, v[16:19] offset:1024
    v_mov_b32 v8, {CB + ZI * 8}
    s_mov_b64 exec, 1
    ds_write_b64 v12, v[12:13] offset:{FLAG}
    ds_write_b64 v8, v[12:13]
    ds_write_b32 v8, v12 offset:8
    s_mov_b64 exec, -1
    v_lshl_add_u32 v17, v{LANE}, 5, s{sT}
    v_lshl_add_u32 v18, v{LANE}, 2, s{sT}
    v_lshl_add_u32 v19, v{LANE}, 3, s{sT}
    s_lshl_b32 s{sT}, s{sWV}, 9
    v_add_u32 v{META}, s{sT}, v{LANE}
    s_lshl_b32 s{sT}, s{sWV}, 5
    v_add_u32 v16, s{sT}, v{LANE}
    s_mov_b32 s{sTM}, -1
    s_mov_b32 s{sTM + 1}, 0
    s_mov_b32 s{sT}, {TENT}
    v_lshl_add_u32 v10, v16, 2, s{sT}
    v_mul_u32_u24 v16, {CH * 16}, v16
    v_add_u32 v16, s{sRND}, v16
    s_cmp_lg_u32 s{sRST}, 0
    s_cselect_b32 s{sMORE}, {ALT}, 0
    s_cselect_b32 s{sCNT}, {OPT['tlim'] - 16}, 0
    v_mov_b32 v20, 0
    v_and_b32 v{vL16}, 15, v{LANE}
    v_lshlrev_b32 v{vL16}, 4, v{vL16}
    v_lshrrev_b32 v{vP2}, 2, v{LANE}
    v_lshlrev_b32 v{vP2}, 3, v{vP2}
    v_lshl_or_b32 v{vP2}, v{LANE}, 30, v{vP2}
    v_and_b32 v15, 3, v{LANE}
    v_lshlrev_b32 v11, 3, v15
    v_lshlrev_b32 v5, 11, v15
    v_or_b32 v5, 0x2000, v5
    v_cmp_eq_u32 vcc, 3, v15
    v_mov_b32 v15, 0x7f
    s_mov_b32 s{sLO}, 0x05040100
    v_cndmask_b32 v15, 0, v15, vcc
    s_mov_b32 s{sHI}, 0x07060302
    s_movk_i32 s{s512}, 512
    s_movk_i32 s{sZI}, {ZI}
    s_mov_b32 s{sCB}, {CB}
    s_mov_b32 s{sMSK}, 0xffffc000
    s_lshr_b32 s{sK}, s2, 2
    s_lshl_b32 s{sK}, s{sK}, 12
    s_add_u32 s{sK}, s{sK}, {TBL_OFF}
    v_bfe_u32 v8, v{LANE}, 2, 2
    v_lshl_add_u32 v11, v8, 7, v11
    v_lshrrev_b32 v8, 4, v{LANE}
    v_lshl_add_u32 v11, v8, 10, v11
    v_lshlrev_b32 v13, 5, v8
    s_and_b32 s{sT}, s{sWV}, 3
    s_lshl_b32 s{sT}, s{sT}, 5
    v_add_u32 v11, s{sT}, v11
    v_mov_b32 v14, 4
    v_mov_b32 v4, 16
""")
    for j in range(1, 8):
        a(f"v_add_u32 v{META + j}, {64 * j}, v{META}")
    stamp('pre1')
    a(f"""
    s_cmp_eq_u32 s{sWV}, 7
    s_cbranch_scc1 k2_w7a
    s_cmp_ge_u32 s{sC}, {NCH}
    s_cbranch_scc1 k2_b3
    s_mov_b64 exec, {sp(sAM)}
    s_movk_i32 s{sT}, 12288
""")
    for i in range(8):
        if i % 4 == 0:
            a(f"s_waitcnt vmcnt({9 - i // 4})")
            if i == 0:
                stamp('dst')
        a(f"v_lshlrev_b32_sdwa v{BOFF + i}, 2, v{DST + i} {SDWA} src0_sel:DWORD src1_sel:BYTE_0")
        a(f"ds_add_rtn_u32 v{RNK + i}, v{BOFF + i}, v4 offset:{PH}")
    for i in range(8):
        a(f"v_cmp_le_u32 {m1(i)}, s{sT}, v{DST + i}")
        a(f"v_and_b32 v{DST + i}, 0x3f00, v{DST + i}")
    for i in range(8):
        a(f"v_cndmask_b32 v6, 0, v5, {m1(i)}")
        a(f"v_lshl_or_b32 v{DST + i}, v{DST + i}, 2, v6")
    a(f"""
    s_mov_b64 exec, -1
    s_branch k2_b2
k2_w7a:
    s_waitcnt lgkmcnt(0)
    s_mul_i32 s{sTAG}, s{sEP}, 0x9E3779B1
    s_add_u32 s{sTAG}, s{sTAG}, 0x7F4A7C15
    v_mov_b32 v76, 0
    v_mov_b32 v77, 0
    v_mov_b32 v78, 0
    v_mov_b32 v79, s{sTAG}
    s_mov_b32 s{sT}, 0xffff0000
    ds_write_b32 v12, v79 offset:{FLAG + 16}
    s_waitcnt vmcnt({6 if OPT['cpf'] == 1 else 2})
""")
    for k in range(4):
        a(f"v_lshlrev_b32 v{68 + 2 * k}, 16, v{64 + k}")
        a(f"v_and_b32 v{69 + 2 * k}, s{sT}, v{64 + k}")
    a(f"""
    v_lshlrev_b32 v99, 1, v99
    ds_write_b128 v99, v[68:71] offset:{WRAD}
    ds_write_b128 v99, v[72:75] offset:{WRAD + 16}
    v_lshlrev_b32 v4, 12, v{LANE}
    s_lshl_b32 s{sT}, s{sC}, 4
    s_add_u32 s{sT}, s{sT}, {TBL_OFF}
    s_cmp_ge_u32 s{sC}, {NCH}
    s_cbranch_scc1 k2_pub
k2_b2:
    s_waitcnt lgkmcnt(0)
    s_barrier
""")
    stamp('bar2p')
    H, B = SCN, SCN + 4
    a(f"""
    ds_read_b128 {v(H, 4)}, v9 offset:{PH}
    ds_read_b32 v8, v12 offset:{FLAG + 16}
    s_waitcnt lgkmcnt(1)
    v_add_u32 v{B + 1}, v{H}, v{H + 1}
    v_add_u32 v{B + 2}, v{B + 1}, v{H + 2}
    v_add_u32 v6, v{B + 2}, v{H + 3}
    v_mov_b32 v{B + 3}, v6
""")
    wave_scan(a, 6)
    a(f"""
    v_sub_u32 v{B}, v6, v{B + 3}
    v_add_u32 v{B + 3}, v{B}, v{B + 2}
    v_add_u32 v{B + 2}, v{B}, v{B + 1}
    v_add_u32 v{B + 1}, v{B}, v{H}
    ds_write_b128 v9, {v(B, 4)} offset:{BTAB}
    s_cmp_lg_u32 s{sWV}, 7
    s_cbranch_scc1 k2_n7b
""")
    a(f"""
    v_lshl_or_b32 v76, v{B + 1}, 16, v{B}
    v_lshl_or_b32 v77, v{B + 3}, 16, v{B + 2}
    v_mov_b32 v78, v6
    s_waitcnt lgkmcnt(1)
k2_pub:
    s_cmp_lg_u32 s{sFIRST}, 0
    s_cbranch_scc1 k2_hpub
    buffer_store_dwordx4 v[76:79], v4, {W}, s{sT} offen sc1
    v_mov_b32 v80, 0
    v_mov_b32 v81, 0
    v_mov_b32 v82, 0
    v_mov_b32 v83, 0
k2_w7p:
""")
    if OPT['w7d']:
        a(f"v_mov_b32 v96, v9")
        for g in range(10):
            if g == 4:
                a(f"v_mov_b32 v96, v9")
            a(f"s_mov_b32 m0, {RAWW + 4096 * g}")
            a("s_nop 0")
            for k in range(4):
                a(f"global_load_lds_dwordx4 v96, {sp(pW0 if g < 4 else pW1)}" + (f" offset:{1024 * k}" if k else ""))
            if g not in (3, 9):
                a(f"v_add_u32 v96, 4096, v96")
    a(f"""
    s_bitcmp1_b32 s2, 1
    s_cselect_b64 s[0:1], -1, 0
    s_lshl_b32 s{sT + 1}, s2, 4
    s_mov_b32 s{sT}, 0x000f000f
    v_add_u32 v7, {TENT - CB - 7 * 4096}, v18
    s_waitcnt lgkmcnt(0)
    s_barrier
""")
    for k in range(4):
        a(f"v_and_b32 v4, 2, v{80 + k}")
        a(f"v_cmp_eq_u32 {m1(k)}, 0, v4")
    if OPT['sl0']:
        a(f"s_sleep {OPT['sl0']}")
    if OPT['sl1']:
        a("s_branch k2_tp1")
    a("k2_tpoll:")
    if OPT['sl1']:
        a(f"s_sleep {OPT['sl1']}")
        a("k2_tp1:")
    for k in range(4):
        a(f"buffer_load_dwordx4 {v(64 + 4 * k, 4)}, v9, {W}, s{sK} offen offset:{1024 * k} sc1")
    for k in range(4):
        g = 64 + 4 * k
        a(f"""
    s_waitcnt vmcnt({3 - k})
    v_or3_b32 v4, v{g}, v{g + 1}, v{g + 2}
    v_xor_b32 v5, s{sTAG}, v{g + 3}
    v_and_or_b32 v4, v4, s{sT}, v5
    v_cndmask_b32 v{g}, v{g}, v{g + 1}, s[0:1]
    v_cmp_eq_u32 vcc, 0, v4
    v_cndmask_b32 v{g + 1}, v{g + 1}, v{g + 2}, s[0:1]
    s_and_b64 vcc, vcc, {m1(k)}
    v_alignbit_b32 v{g}, v{g + 1}, v{g}, s{sT + 1}
    s_andn2_b64 {m1(k)}, {m1(k)}, vcc
    v_or_b32 v{g}, 2, v{g}
    v_cndmask_b32 v{80 + k}, v{80 + k}, v{g}, vcc
""")
    a(f"""
    s_or_b64 {m2(0)}, {m1(0)}, {m1(1)}
    s_or_b64 {m2(1)}, {m1(2)}, {m1(3)}
    s_or_b64 vcc, {m2(0)}, {m2(1)}
    s_cbranch_scc0 k2_tok
    s_add_u32 s{sCNT}, s{sCNT}, 1
    s_cmp_lt_u32 s{sCNT}, {OPT['tlim']}
    s_cbranch_scc1 k2_tpoll
""")
    for k in range(4):
        a(f"""
    s_ff1_i32_b64 s{sT + 1}, {m1(k)}
    s_add_u32 s{sT + 2}, s{sT + 1}, {64 * k + 1}
    s_cmp_lt_i32 s{sT + 1}, 0
    s_cselect_b32 s{sT}, s{sT}, s{sT + 2}
""")
    a(f"""
    v_mov_b32 v4, s{sT}
    ds_write_b32 v12, v4 offset:{FLAG + 4}
k2_tok:
    ds_write2st64_b32 v7, v80, v81 offset0:0 offset1:1
    ds_write2st64_b32 v7, v82, v83 offset0:2 offset1:3
""")
    if OPT['pf'] == 5:
        a(f"""
    s_mov_b32 exec_hi, 0x3ffff
    s_mul_i32 s{sT + 2}, s{sC}, 25600
    v_lshlrev_b32 v4, 3, v9
""")
        for k in range(4):
            a(f"buffer_load_dword v{RANK + k}, v4, {X}, s{sT + 2} offen")
            if k < 3:
                a(f"s_add_u32 s{sT + 2}, s{sT + 2}, 6400")
        a("s_mov_b64 exec, -1")
    a(f"""
    s_branch k2_b3b
k2_n7b:
    s_mov_b64 exec, {sp(sAM)}
""")
    stamp('n7b')
    for i in range(8):
        a(f"ds_read_b32 v{BOFF + i}, v{BOFF + i} offset:{BTAB}")
    a(f"s_mov_b32 s{sT}, 0xffff0000")
    a(f"s_mov_b32 s{sT + 1}, 5497558")
    a(f"s_waitcnt lgkmcnt(9)")
    a(f"v_readfirstlane_b32 s{sTAG}, v8")
    for i in range(8):
        a(f"v_mov_b32 v{PG + 4 * i + 3}, v8")

    def unpack(dst, reg, hi):
        if hi:
            a(f"v_and_b32 v{dst}, s{sT}, v{reg}")
        else:
            a(f"v_lshlrev_b32 v{dst}, 16, v{reg}")
    for i in range(8):
        if i == 0:
            a(f"s_waitcnt vmcnt(4)")
            stamp('g0')
        if i == 4:
            a(f"s_waitcnt vmcnt(0)")
            stamp('rest')
        unpack(UP, EA + i // 2, i & 1)
        for j in range(3):
            hw = 3 * i + j
            unpack(UP + 1 + j, RH + hw // 2, hw & 1)
        for j in range(3):
            a(f"v_mul_f32 v{UP + 1 + j}, v{UP}, v{UP + 1 + j}")
        a(f"v_cvt_pk_bf16_f32 v{PG + 4 * i}, v{UP}, v{UP + 1}")
        a(f"v_cvt_pk_bf16_f32 v{PG + 4 * i + 1}, v{UP + 2}, v{UP + 3}")
        a(f"v_mul_hi_u32_u24 v6, s{sT + 1}, v{SRC + i}")
        a(f"v_lshl_or_b32 v6, v6, 6, v{DST + i}")
        a(f"v_lshl_or_b32 v{PG + 4 * i + 2}, v{SRC + i}, 16, v6")
        if i == 0:
            a("s_waitcnt lgkmcnt(0)")
        a(f"v_add_u32 v{BOFF + i}, v{BOFF + i}, v{RNK + i}")
        a(f"ds_write_b128 v{BOFF + i}, {v(PG + 4 * i, 4)} offset:{STG}")
        stamp(f'e{i}')
    def wbuild():
        T, U = ACC, ACC + 80
        a(f"s_mov_b32 s{sT}, 0xffff0000")

        def rd(f):
            a(f"ds_read_b64_tr_b16 {v(WF + 4 * f, 2)}, v11 offset:{RAWW + f * 4096}")
            a(f"ds_read_b64_tr_b16 {v(WF + 4 * f + 2, 2)}, v11 offset:{RAWW + f * 4096 + 512}")
            a(f"ds_read_b128 {v(T + 8 * f, 4)}, v13 offset:{WRAD + f * 128}")
            a(f"ds_read_b128 {v(T + 8 * f + 4, 4)}, v13 offset:{WRAD + f * 128 + 16}")
        for f in range(3):
            rd(f)
        for f in range(10):
            a(f"s_waitcnt lgkmcnt({4 * min(2, 9 - f)})")
            if f + 3 < 10:
                rd(f + 3)
            for k in range(4):
                a(f"v_lshlrev_b32 v{U + 2 * k}, 16, v{WF + 4 * f + k}")
                a(f"v_and_b32 v{U + 2 * k + 1}, s{sT}, v{WF + 4 * f + k}")
            for k in range(4):
                a(f"v_pk_mul_f32 {v(U + 2 * k, 2)}, {v(U + 2 * k, 2)}, {v(T + 8 * f + 2 * k, 2)}")
            for k in range(4):
                a(f"v_cvt_pk_bf16_f32 v{WF + 4 * f + k}, v{U + 2 * k}, v{U + 2 * k + 1}")
    def xpf(d):
        a(f"""
    s_mov_b64 exec, 0x1ffffff
    s_lshl_b32 s{sT + 3}, s{sC}, 3
    s_add_u32 s{sT + 3}, s{sT + 3}, s{sWV}
    s_mul_i32 s{sT + 3}, s{sT + 3}, 3200
    v_lshlrev_b32 v{d}, 3, v9
    buffer_load_dword v{d}, v{d}, {X}, s{sT + 3} offen
    s_mov_b64 exec, -1
""")
    GSC = {0: "", 1: " sc1", 2: " sc0 sc1", 3: " nt"}[OPT['gsc']]
    a(f"""
k2_b3:
    s_mul_i32 s{sT}, s{sWV}, 7168
    s_mov_b64 exec, -1
    v_add_u32 v8, s{sT}, v9
    s_mul_i32 s{sT}, s{sC}, {CH * 16}
    s_add_u32 s{sT}, s{sT}, {GR_OFF}
    s_add_u32 s{sT}, s{sT}, s{sMORE}
    s_add_u32 s{sT + 1}, s{sT}, 4096
    s_cmp_ge_u32 s{sC}, {NCH}
    s_waitcnt lgkmcnt(0)
    s_barrier
""")
    stamp('bar3')
    a("s_cbranch_scc1 k2_np")
    for j in range(8):
        a(f"ds_read_b128 {v(PG + 4 * j, 4)}, v8 offset:{STG + 1024 * j}")
    a(f"s_cmp_lg_u32 s{sRST}, 0")
    a(f"s_cbranch_scc1 k2_hst")
    a(f"s_cmp_lg_u32 s{sWV}, 6")
    for j in range(8):
        if j == 7:
            a("s_cbranch_scc1 k2_b3b")
        a(f"s_waitcnt lgkmcnt({7 - j})")
        a(f"buffer_store_dwordx4 {v(PG + 4 * j, 4)}, v8, {W}, s{sT + j // 4} offen offset:{1024 * (j % 4)}{GSC}")
    a("k2_b3b:")
    stamp('stored')
    if OPT['pf'] == 3:
        xpf(RANK)
    a(f"""
    s_waitcnt lgkmcnt(0)
    s_barrier
    s_mov_b64 exec, {sp(sTM)}
    ds_read_b32 v20, v10
    s_mov_b64 exec, -1
    ds_read_b32 v21, v12 offset:{FLAG + 4}
""")
    stamp('tbl')
    if OPT['pf'] == 2:
        xpf(RANK)
    if not OPT['w7d']:
        wdma()
    if OPT['wb'] == 2:
        a(f"""
    s_cmp_lg_u32 s{sRND}, 0
    s_cbranch_scc1 k2_now
""")
        wbuild()
        a("k2_now:")
    Q = G
    a(f"""
    s_waitcnt lgkmcnt(0)
    v_cmp_ne_u32 vcc, 0, v21
    v_and_b32 v4, 1, v20
    v_and_b32 v20, -4, v20
    s_cbranch_vccnz k2_p1h
    v_lshl_add_u32 v16, v4, 24, v16
    v_sub_u32_sdwa v4, v20, v20 {SDWA} src0_sel:WORD_1 src1_sel:WORD_0
    v_mov_b32 v5, v4
    v_add_u32_sdwa v6, v16, v20 {SDWA} src0_sel:DWORD src1_sel:WORD_0
    s_movk_i32 s{sT + 1}, 8192
""")
    for m in ("row_shr:1", "row_shr:2", "row_shr:4", "row_shr:8"):
        a(f"v_add_u32_dpp v5, v5, v5 {m} row_mask:0xf bank_mask:0xf")
    a(f"""
    v_add_u32_dpp v5, v5, v5 row_bcast:15 row_mask:0xa bank_mask:0xf
    s_lshl_b32 s{sT}, s{sWV}, 12
    s_add_u32 s{sT}, s{sT}, {CB}
    v_sub_u32 v4, v5, v4
    v_readlane_b32 s{sTOT}, v5, 31
    v_sub_u32 v6, v6, v4
    v_subrev_u32 v4, s{sRND}, v4
    v_subrev_u32 v5, s{sRND}, v5
    v_med3_i32 v4, v4, 0, s{sT + 1}
    v_med3_i32 v5, v5, 0, s{sT + 1}
    v_lshrrev_b32 v4, 2, v4
    v_lshrrev_b32 v5, 2, v5
    v_add_u32 v4, s{sT}, v4
    v_add_u32 v5, s{sT}, v5
    s_mov_b64 exec, {sp(sTM)}
    ds_add_u32 v4, v6
    ds_sub_u32 v5, v6
    s_mov_b64 exec, -1
    ds_read_b128 {v(Q, 4)}, v17
    ds_read_b128 {v(Q + 4, 4)}, v17 offset:16
    s_sub_u32 s{sTOT}, s{sTOT}, s{sRND}
    s_cmp_le_i32 s{sTOT}, 8192
    s_cbranch_scc1 k2_nomore
    ds_write_b32 v12, v14 offset:{FLAG}
k2_nomore:
""")
    for i in range(8):
        a(f"v_cmp_gt_i32 {m1(i)}, s{sTOT}, v9")
        if i < 7:
            a(f"s_sub_u32 s{sTOT}, s{sTOT}, 1024")
    a("s_waitcnt lgkmcnt(0)")
    for j in range(1, 8):
        a(f"v_add_u32 v{Q + j}, v{Q + j}, v{Q + j - 1}")
    a(f"v_mov_b32 v4, v{Q + 7}")
    wave_scan(a, Q + 7)
    a(f"v_sub_u32 v4, v{Q + 7}, v4")
    for j in range(7):
        a(f"v_add_u32 v{Q + j}, v{Q + j}, v4")
    a(f"""
    ds_write_b128 v17, {v(Q, 4)}
    ds_write_b128 v17, {v(Q + 4, 4)} offset:16
""")
    for j in range(4):
        a(f"ds_read2st64_b32 {v(ADDR + 2 * j, 2)}, v18 offset0:{2 * j} offset1:{2 * j + 1}")
    for i in range(8):
        a(f"s_mov_b64 {m2(i)}, {m1(i)}")
    a(f"""
    s_movk_i32 s{sK}, {GR_OFF - 16}
    s_mov_b32 s{sT + 3}, 0xc000003f
    s_mov_b32 s{sCNT}, 0
""")
    if OPT['pf'] == 9:
        a(f"""
    s_mov_b64 s[0:1], 0x1ffffff
    s_lshl_b32 s{sT + 2}, s{sC}, 3
    s_add_u32 s{sT + 2}, s{sT + 2}, s{sWV}
    s_mul_i32 s{sT + 2}, s{sT + 2}, 3200
    v_lshlrev_b32 v23, 3, v9
""")

    def dload(i):
        a(f"s_mov_b64 exec, {m2(i)}")
        a(f"buffer_load_dwordx4 {v(G + 4 * i, 4)}, v{ADDR + i}, {W}, s{sK} offen sc1")
    stamp('expd')
    if OPT['dr'] or (OPT['wb'] == 0 and not OPT['w7d']):
        a("s_waitcnt vmcnt(0)")
    if (OPT['wb'] == 0 and not OPT['w7d']) or OPT['dr'] == 2:
        a("s_barrier")
    stamp('drained')
    for i in range(8):
        if i % 2 == 0:
            a(f"s_waitcnt lgkmcnt({3 - i // 2})")
        dload(i)
    stamp('dissued')

    if OPT['wb'] == 0:
        a(f"""
    s_cmp_lg_u32 s{sRND}, 0
    s_cbranch_scc1 k2_dchk
    s_mov_b64 exec, -1
""")
        wbuild()
    stamp('wdone')
    a("s_branch k2_dchk")
    a("k2_dpoll:")
    for i in range(8):
        dload(i)
    a("k2_dchk:")
    PFX = 0
    if OPT['pf'] == 9:
        PFX = 1
        a(f"""
    s_mov_b64 exec, s[0:1]
    buffer_load_dword v22, v23, {X}, s{sT + 2} offen
    s_mov_b64 s[0:1], 0
""")
    for i in range(8):
        g = G + 4 * i
        a(f"""
    s_mov_b64 exec, {m2(i)}
    s_waitcnt vmcnt({7 - i + PFX})
    v_xor_b32 v4, s{sTAG}, v{g + 3}
    v_and_or_b32 v4, v{g + 2}, s{sT + 3}, v4
    v_cmpx_eq_u32 vcc, 0, v4
    v_bfe_u32 v{BIN + i}, v{g + 2}, 4, 10
    s_andn2_b64 {m2(i)}, {m2(i)}, vcc
    ds_add_rtn_u32 v{RANK + i}, v{BIN + i}, v14 offset:{HIST}
    v_and_or_b32 v{META + i}, v{g + 2}, s{sMSK}, v{META + i}
    ds_write_b64 v19, {v(g, 2)} offset:{512 * i}
""")
        if i == 1:
            a(f"s_or_b64 {sp(sAM)}, {m2(0)}, {m2(1)}")
        if i > 1:
            a(f"s_or_b64 {sp(sAM)}, {sp(sAM)}, {m2(i)}")
    a(f"""
    s_cbranch_scc0 k2_p1e
    s_add_u32 s{sCNT}, s{sCNT}, 1
    s_cmp_lt_u32 s{sCNT}, 0x20000
    s_cbranch_scc1 k2_dpoll
k2_p1e:
""")
    stamp('lastmeta')
    if OPT['pf'] == 1:
        xpf(ADDR)
    a(f"""
    s_mov_b64 exec, -1
    s_lshl_b32 s{sT}, s{sWV}, 3
    s_add_u32 s{sT + 1}, s{sT}, 4
    s_add_u32 s{sT + 2}, s{sT}, 7
    s_waitcnt lgkmcnt(0)
    s_barrier
""")
    stamp('bar2')
    a(f"""
    ds_read_b128 v[4:7], v9 offset:{HIST}
    ds_read_b32 v20, v12 offset:{FLAG}
""")
    if OPT['pf'] == 6:
        xpf(ADDR)
    a(f"""
    s_waitcnt lgkmcnt(1)
    v_add_u32 v5, v4, v5
    v_add_u32 v6, v5, v6
    v_add_u32 v7, v6, v7
    v_add_u32_dpp v10, v7, v7 quad_perm:[1,0,3,2] row_mask:0xf bank_mask:0xf
    v_add_u32_dpp v10, v10, v10 quad_perm:[2,3,0,1] row_mask:0xf bank_mask:0xf
    v_sub_u32 v10, 0, v10
    v_and_b32 v10, v15, v10
    v_add_u32 v7, v7, v10
    v_mov_b32 v10, v7
""")
    wave_scan(a, 10)
    a(f"""
    v_readlane_b32 s{sTOT}, v10, 63
    v_readlane_b32 s{sE1}, v10, s{sT + 2}
    v_sub_u32 v10, v10, v7
    s_sub_u32 s{sTOT}, {CB}, s{sTOT}
    v_add_u32 v10, s{sTOT}, v10
    v_add_u32 v7, v10, v6
    v_add_u32 v6, v10, v5
    v_add_u32 v5, v10, v4
    v_mov_b32 v4, v10
    ds_write_b128 v9, v[4:7] offset:{BTAB}
    s_add_u32 s{sE1}, s{sE1}, s{sTOT}
    v_readlane_b32 s{sP0}, v10, s{sT}
    v_readlane_b32 s{sP1}, v10, s{sT + 1}
    s_waitcnt lgkmcnt(1)
    v_readfirstlane_b32 s{sMORE}, v20
""")
    stamp('scan')
    for i in range(8):
        a(f"ds_read_b32 v{BIN + i}, v{BIN + i} offset:{BTAB}")
    a(f"""
    s_mov_b32 s{sE0}, s{sP1}
""")
    for i in range(8):
        a(f"s_mov_b64 exec, {m1(i)}")
        a(f"s_waitcnt lgkmcnt(7)")
        a(f"v_add_u32 v{BIN + i}, v{BIN + i}, v{RANK + i}")
        a(f"ds_write_b32 v{BIN + i}, v{META + i}")
    stamp('p2')
    if OPT['pf'] == 8:
        xpf(ADDR)
    a(f"""
    s_mov_b64 exec, -1
    s_cmp_lt_u32 s{sP0}, s{sE0}
    s_cselect_b32 s{sNT}, 0, 1
    s_cselect_b32 s{sNX}, s{sP0}, s{sP1}
    s_cselect_b32 s{sT}, 128, 0
    s_add_u32 s{sP0}, s{sP0}, s{sT}
    s_sub_u32 s{sT}, 128, s{sT}
    s_add_u32 s{sP1}, s{sP1}, s{sT}
    s_waitcnt {"vmcnt(0) " if OPT['pf'] == 9 else ""}lgkmcnt(0)
    s_barrier
""")
    stamp('sorted')
    ZE = 0

    def zero(lo, hi):
        for i in range(lo, hi):
            a(f"v_mov_b64 {v(ACC + 2 * i, 2)}, 0")

    def meta_reads():
        a(f"v_add_u32_sdwa v{TM}, s{sNX}, v{vP2} {SDWA} src0_sel:DWORD src1_sel:WORD_0")
        a(f"v_and_b32 v{BT}, -32, v{TM}")
        a(f"ds_read_b128 {v(M, 4)}, v{BT}")
        a(f"ds_read_b128 {v(M + 4, 4)}, v{BT} offset:16")
        a(f"ds_read_b64 {v(TM, 2)}, v{TM}")

    def loads(h):
        D = DA if h == 0 else DB
        for e in range(8):
            if h == 0:
                a(f"v_mad_u32_u16 v{M + e}, v{M + e}, s{s512}, v{vL16} op_sel:[1,0,0,0]")
            a(f"buffer_load_dwordx4 {v(D + 4 * e, 4)}, v{M + e}, {X}, 0 offen" + (" offset:256" if h else ""))

    def tr_addr():
        for i in range(2):
            a(f"v_xor_b32_sdwa v{TM + i}, v{TM + i}, v{vP2} {SDWA} src0_sel:WORD_0 src1_sel:WORD_1")
        for i in range(2):
            a(f"v_min_u32 v{TM + i}, s{sZI}, v{TM + i}")
        for i in range(2):
            a(f"v_lshl_add_u32 v{TM + i}, v{TM + i}, 3, s{sCB}")

    def tr_reads():
        a(f"ds_read_b64_tr_b16 {v(A, 2)}, v{TM}")
        a(f"ds_read_b64_tr_b16 {v(A + 2, 2)}, v{TM + 1}")

    def half(t, h, lg):
        D = DA if h == 0 else DB
        pairs = [(0, 2), (4, 6), (1, 3), (5, 7)]

        def perms(j):
            r, p = j >> 1, j & 1
            for k, (e0, e1) in enumerate(pairs):
                a(f"v_perm_b32 v{BT + 4 * (j & 1) + k}, v{D + 4 * e1 + r}, v{D + 4 * e0 + r}, s{sHI if p else sLO}")
        perms(0)
        for j in range(8):
            if j + 1 < 8:
                perms(j + 1)
            if j == 0 and lg is not None:
                a(f"s_waitcnt lgkmcnt({lg})")
            c = v(ACC + 64 * t + (8 * h + j) * 4, 4)
            a(f"v_mfma_f32_16x16x32_bf16 {c}, {v(A, 4)}, {v(BT + 4 * (j & 1), 4)}, {c}")

    if OPT['prio'] >= 1:
        a(f"""
    s_cmp_lt_u32 s{sWV}, 4
    s_cselect_b64 vcc, -1, 0
    s_cbranch_scc1 k2_lop
    s_setprio 1
k2_lop:
""")
    pcnt = [0]

    def tprio(p):
        pcnt[0] += 1
        a(f"""
    s_cbranch_vccz k2_pr{pcnt[0]}
    s_setprio {p}
k2_pr{pcnt[0]}:
""")

    a(f"""
    s_cmp_ge_u32 s{sNX}, s{sE1}
    s_cbranch_scc1 k2_wz
""")
    meta_reads()
    a("s_waitcnt lgkmcnt(1)")
    loads(0)
    loads(1)
    a("s_waitcnt lgkmcnt(0)")
    tr_addr()
    tr_reads()
    stamp('first')
    a(f"""
k2_wz:
    s_cmp_lg_u32 s{sRND}, 0
    s_cbranch_scc1 k2_noz
""")
    if OPT['wb'] == 1:
        wbuild()
    zero(ZE, 64)
    a(f"""
    s_xor_b32 s{sT}, s{sWV}, 7
    s_or_b32 s{sT}, s{sT}, s2
    s_or_b32 s{sT}, s{sT}, s{sRST}
    s_cbranch_scc1 k2_noz
    s_mov_b64 exec, 1
    v_mov_b32 v{BT}, s{sTAG}
    buffer_store_dword v{BT}, off, {W}, 0 sc1
    s_mov_b64 exec, -1
""")
    a(f"""
k2_noz:
    s_cmp_ge_u32 s{sNX}, s{sE1}
    s_cbranch_scc1 k2_done
""")
    if 'it1' in SMAP:
        a("s_waitcnt vmcnt(8)")
        stamp('it1')
    a(f"""
    s_cmp_eq_u32 s{sNT}, 0
    s_cbranch_scc0 k2_stub1
""")
    for t in range(2):
        po, eo, ps, es = (sP1, sE1, sP0, sE0) if t == 0 else (sP0, sE0, sP1, sE1)
        a(f"""
k2_stub{t}:
    s_cmp_lt_u32 s{po}, s{eo}
    s_cbranch_scc1 k2_oth{t}
    s_cmp_lt_u32 s{ps}, s{es}
    s_cbranch_scc0 k2_tail{t}
    s_mov_b32 s{sNX}, s{ps}
    s_add_u32 s{ps}, s{ps}, 128
    s_mov_b32 s{sNT}, {t}
    s_branch k2_body{t}
k2_oth{t}:
    s_mov_b32 s{sNX}, s{po}
    s_add_u32 s{po}, s{po}, 128
    s_mov_b32 s{sNT}, {1 - t}
k2_body{t}:
""")
        if OPT['prio'] == 2:
            tprio(2 - 2 * t)
        if OPT['prio'] == 3:
            tprio(2)
        meta_reads()
        a("s_waitcnt vmcnt(8)")
        half(t, 0, 3)
        a("s_waitcnt lgkmcnt(0)")
        loads(0)
        tr_addr()
        if OPT['prio'] == 3 or (OPT['prio'] == 4 and t == 1):
            tprio(0)
        if OPT['prio'] == 4 and t == 0:
            tprio(2)
        a("s_waitcnt vmcnt(8)")
        half(t, 1, None)
        loads(1)
        tr_reads()
        a(f"s_cmp_eq_u32 s{sNT}, 0")
        a(f"s_cbranch_scc1 k2_stub0")
        if t == 1:
            a("s_branch k2_stub1")
    for t in range(2):
        a(f"k2_tail{t}:")
        a("s_waitcnt vmcnt(8)")
        half(t, 0, 0)
        a("s_waitcnt vmcnt(0)")
        half(t, 1, None)
        if t == 0:
            a("s_branch k2_done")
    a(f"""
k2_done:
    {"s_setprio 0" if OPT['prio'] >= 2 else ""}
    s_waitcnt vmcnt(0)
    v_mbcnt_lo_u32_b32 v{LANE}, -1, 0
    v_mbcnt_hi_u32_b32 v{LANE}, -1, v{LANE}
    s_cmp_eq_u32 s{sMORE}, 0
    s_cbranch_scc1 k2_fin
    s_add_u32 s{sRND}, s{sRND}, 8192
    s_movk_i32 s{sC}, 255
    s_barrier
    s_branch k2_round
k2_p1h:
    v_readfirstlane_b32 s{sC}, v21
    s_sub_u32 s{sC}, s{sC}, 1
    s_add_u32 s{sRST}, s{sRST}, 1
    s_cmp_gt_u32 s{sRST}, 2000
    s_cbranch_scc1 k2_end
    s_waitcnt vmcnt(0) lgkmcnt(0)
    s_barrier
    s_branch k2_round
k2_np:
    ds_read_b32 v8, v12 offset:{FLAG + 16}
    s_waitcnt lgkmcnt(0)
    v_readfirstlane_b32 s{sTAG}, v8
    s_branch k2_b3b
k2_hpub:
    s_bitcmp1_b32 s2, 1
    s_cselect_b64 vcc, -1, 0
    s_lshl_b32 s{sT + 1}, s2, 4
    s_lshr_b32 s{sT + 2}, s2, 2
    s_lshl_b32 s{sT}, s{sC}, 2
    s_add_u32 s{sT}, s{sT}, {TENT}
    v_cndmask_b32 v76, v76, v77, vcc
    v_cndmask_b32 v77, v77, v78, vcc
    v_mov_b32 v4, s{sT}
    v_alignbit_b32 v76, v77, v76, s{sT + 1}
    v_or_b32 v76, 3, v76
    s_lshl_b64 exec, 1, s{sT + 2}
    ds_write_b32 v4, v76
    s_mov_b64 exec, -1
    v_add_u32 v7, {TENT - CB - 7 * 4096}, v18
    ds_read2st64_b32 v[80:81], v7 offset0:0 offset1:1
    ds_read2st64_b32 v[82:83], v7 offset0:2 offset1:3
    s_branch k2_w7p
k2_hst:
    v_mov_b32 v5, s2
    v_lshlrev_b32 v5, 2, v5
    ds_read_b32 v4, v5 offset:{PH}
    ds_read_b32 v6, v5 offset:{BTAB}
    s_waitcnt lgkmcnt(0)
    v_sub_u32 v6, v8, v6
""")
    for j in range(8):
        a(f"""
    s_mov_b64 exec, -1
    v_cmp_lt_u32 vcc, v6, v4
    v_add_u32 v6, 1024, v6
    s_mov_b64 exec, vcc
    buffer_store_dwordx4 {v(PG + 4 * j, 4)}, v8, {W}, s{sT + j // 4} offen offset:{1024 * (j % 4)} sc1
""")
    a(f"""
    s_waitcnt vmcnt(0)
    s_branch k2_b3b
k2_fin:
""")
    stamp('mainend')
    a(f"""
    s_xor_b32 s{sFIRST}, s{sWV}, 7
    s_or_b32 s{sFIRST}, s{sFIRST}, s{sRST}
    s_cbranch_scc1 k2_ne
    buffer_load_dword v20, off, {W}, 0 sc1
k2_ne:
""")
    OP = 528
    OUTH, OUTL = 64 * ROW, CB - 24576
    a(f"""
    s_setprio 0
    v_lshrrev_b32 v3, 4, v{LANE}
    s_lshl_b32 s{sT}, s{sWV}, 1
    s_and_b32 s{sT}, s{sT}, 7
    s_lshr_b32 s{sT + 1}, s{sWV}, 2
    s_lshl_b32 s{sT + 1}, s{sT + 1}, 5
    s_add_u32 s{sT}, s{sT}, s{sT + 1}
    v_lshl_add_u32 v4, v3, 3, s{sT}
    v_mul_u32_u24 v4, {ROW}, v4
    v_bfe_u32 v5, v{LANE}, 3, 1
    v_mul_u32_u24 v5, 640, v5
    v_and_b32 v6, 7, v{LANE}
    v_lshl_add_u32 v5, v6, 4, v5
    v_add_u32 v4, v4, v5
    s_cmp_ge_u32 s{sWV}, 4
    s_cselect_b32 s{sT + 1}, -1, 0xffff
    s_mov_b32 s{sT + 3}, 0xffff
""")

    def R(t, h, q, jj):
        return ACC + 64 * t + (8 * h + jj) * 4 + q
    DP = "row_mask:0xf bank_mask:0xc"
    for t in range(2):
        for jj in range(8):
            a(f"v_add_f32_dpp v{R(t, 0, 1, jj)}, v{R(t, 1, 3, jj)}, v{R(t, 0, 1, jj)} quad_perm:[0,1,2,3] {DP}")
            a(f"v_sub_f32_dpp v{R(t, 0, 2, jj)}, v{R(t, 1, 1, jj)}, v{R(t, 0, 2, jj)} row_shr:8 {DP}")
            a(f"v_subrev_f32_dpp v{R(t, 0, 3, jj)}, v{R(t, 1, 1, jj)}, v{R(t, 0, 3, jj)} quad_perm:[0,1,2,3] {DP}")
            a(f"v_add_f32_dpp v{R(t, 0, 1, jj)}, v{R(t, 1, 2, jj)}, v{R(t, 0, 1, jj)} row_shr:8 {DP}")
            a(f"v_subrev_f32_dpp v{R(t, 1, 2, jj)}, v{R(t, 1, 3, jj)}, v{R(t, 1, 2, jj)} row_shr:8 {DP}")
        regs = [(0, 0), (0, 1), (0, 2), (0, 3), (1, 0), (1, 2)]
        for u, (h, q) in enumerate(regs):
            for k in range(4):
                a(f"v_cvt_pk_bf16_f32 v{DA + 32 * t + 4 * u + k}, v{R(t, h, q, 2 * k)}, v{R(t, h, q, 2 * k + 1)}")
        if t == 0:
            stamp('dpp0')
        hi = sT + 1 + 2 * t
        a(f"s_mov_b32 exec_hi, s{hi}")
        for u in range(5):
            a(f"ds_write_b128 v4, {v(DA + 32 * t + 4 * u, 4)} offset:{t * ROW + u * 128}")
        a(f"s_mov_b32 exec_lo, 0xff00ff00")
        a(f"s_and_b32 exec_hi, s{hi}, 0xff00ff00")
        a(f"ds_write_b128 v4, {v(DA + 32 * t + 20, 4)} offset:{t * ROW + 640}")
        a("s_mov_b64 exec, -1")
        stamp(f'sw{t}')
    vRA, vOW, vLA, vG0, vG1, vRB, vOB = 4, 5, 6, 7, 8, 9, 10
    sPH, sMK, sEX = sNT, sP0, sT + 1
    a(f"""
    v_and_b32 v11, 15, v{LANE}
    v_mul_u32_u24 v{vRB}, {ROW}, v11
    v_lshl_add_u32 v{vRB}, v3, 4, v{vRB}
    s_and_b32 s{sT}, s{sWV}, 3
    s_lshl_b32 s{sT}, s{sT}, 5
    v_mul_u32_u24 v{vOB}, {OP}, v11
    v_lshl_add_u32 v12, v3, 3, s{sT}
    v_add_u32 v{vOB}, v{vOB}, v12
    s_mov_b32 s{sEX}, 0xbfb8aa3b
    s_mov_b64 {sp(sMK)}, -1
    s_cmp_lt_u32 s{sWV}, 4
    s_cbranch_scc1 k2_sb
    v_mov_b32 v12, {CB + ZI * 8}
    v_mov_b32 v13, 1
    v_add_u32 v{vRA}, {32 * ROW}, v{vRB}
    v_add_u32 v{vOW}, {OUTH}, v{vOB}
    s_mov_b32 s{sPH}, 0
    s_mov_b64 exec, 1
    ds_add_u32 v12, v13 offset:8
k2_hsp:
    ds_read_b32 v13, v12 offset:8
    s_waitcnt lgkmcnt(0)
    v_cmp_gt_u32 vcc, 4, v13
    s_cbranch_vccz k2_hgo
    s_sleep 2
    s_branch k2_hsp
k2_hgo:
    s_mov_b64 exec, -1
    s_branch k2_tile
k2_ph1:
    v_add_u32 v{vRA}, {48 * ROW}, v{vRB}
    v_add_u32 v{vOW}, {OUTH + 16 * OP}, v{vOB}
    s_mov_b32 s{sMK}, 0x01ff01ff
    s_mov_b32 s{sMK + 1}, 0x01ff01ff
    s_branch k2_tile
k2_ph2:
    s_mov_b64 {sp(sMK)}, -1
    s_cmp_lg_u32 s{sFIRST}, 0
    s_cbranch_scc1 k2_sb
    s_waitcnt vmcnt(0)
    v_cmp_ne_u32 vcc, s{sTAG}, v20
    s_cbranch_vccz k2_sb
    s_mov_b64 exec, 1
    v_mov_b32 v20, s{sTAG}
    buffer_store_dword v20, off, {W}, 0 sc1
    s_mov_b64 exec, -1
k2_sb:
    s_lshr_b32 s{sT}, s{sWV}, 2
    s_mul_i32 s{sT + 2}, s{sT}, {16 * OP}
    s_mul_i32 s{sT}, s{sT}, {16 * ROW}
    s_add_u32 s{sT + 2}, s{sT + 2}, {OUTL}
    v_add_u32 v{vRA}, s{sT}, v{vRB}
    v_add_u32 v{vOW}, s{sT + 2}, v{vOB}
    s_mul_i32 s{sT}, s{sWV}, 3
    v_lshrrev_b32 v12, 5, v{LANE}
    v_add_u32 v12, s{sT}, v12
    v_and_b32 v13, 31, v{LANE}
    v_lshlrev_b32 v13, 4, v13
    s_movk_i32 s{sT}, {OP}
    v_mad_u32_u24 v{vLA}, v12, s{sT}, v13
    v_add_u32 v{vLA}, {OUTH}, v{vLA}
    s_mov_b32 s{sPH}, 2
    s_waitcnt lgkmcnt(0)
    s_barrier
""")
    stamp('sbar')
    a(f"""
    ds_read_b128 v[64:67], v{vLA}
    ds_read_b128 v[68:71], v{vLA} offset:{2 * OP}
k2_tile:
""")
    slot = dict(F0=0, F21=1, F22=2, F23=3, F32=4, F31=5, F1=6, F43=7, F42=8, F33=9, F41=10)
    terms = {0: [(0, 'F0'), (1, 'F1')]}
    for i in (1, 2, 3):
        terms[i] = [(2, f'F2{i}'), (3, f'F3{i}'), (4, f'F4{i}')]
    AH = 12
    BB = 160
    OA = 128
    sq = []
    for ti in range(3):
        for h in range(2):
            for o in range(4):
                if ti < len(terms[o]):
                    tt, f = terms[o][ti]
                    sq.append(dict(off=slot[f] * 128 + h * 64, w=2 * tt + h, d=OA + 4 * o, first=(ti == 0 and h == 0)))
    n = len(sq)

    def rd(i):
        a(f"ds_read_b128 {v(BB + 4 * i, 4)}, v{vRA} offset:{sq[i]['off']}")

    def qsum(lo, hi, lab):
        a(f"s_cmp_lg_u32 s{sPH}, 1")
        a(f"s_cbranch_scc1 {lab}")
        for r in range(lo, hi):
            a(f"v_add_f32_dpp v{r}, v{r}, v{r} quad_perm:[2,3,0,1] row_mask:0xf bank_mask:0xc")
        for r in range(lo, hi):
            a(f"v_add_f32_dpp v{r}, v{r}, v{r} row_shl:4 row_mask:0xf bank_mask:0x4")
        a(f"{lab}:")
    for i in range(AH):
        rd(i)
    a(f"""
    s_cmp_lg_u32 s{sPH}, 2
    s_cbranch_scc1 k2_nhs
    s_lshl_b32 s{sT}, s2, 9
    v_add_u32 v13, s{sT}, v13
    v_add_u32 v14, 2, v12
    v_and_b32 v15, 24, v12
    v_add_u32 v12, v12, v15
    v_and_b32 v15, 24, v14
    v_add_u32 v14, v14, v15
    v_lshl_add_u32 v{vG0}, v12, 17, v13
    v_lshl_add_u32 v{vG1}, v14, 17, v13
    v_min_u32 v14, 40, v14
    s_mov_b32 s{sT}, {8 << 17}
    v_lshl_add_u32 v14, v14, 17, v13
    s_cmp_eq_u32 s{sWV}, 7
    s_waitcnt lgkmcnt({AH})
    buffer_store_dwordx4 v[64:67], v{vG0}, {O}, s{sT} offen{OSC}
    s_cselect_b32 exec_hi, -1, 0
    buffer_store_dwordx4 v[68:71], v14, {O}, s{sT} offen{OSC}
    s_mov_b32 exec_hi, -1
k2_nhs:
""")
    g = 16
    for i in range(n):
        e = sq[i]
        if i + AH < n:
            rd(i + AH)
        a(f"s_waitcnt lgkmcnt({min(AH, n - 1 - i)})")
        d = v(e['d'], 4)
        a(f"v_mfma_f32_16x16x32_bf16 {d}, {v(WF + 4 * e['w'], 4)}, {v(BB + 4 * i, 4)}, {'0' if e['first'] else d}")
        if i == 15:
            qsum(OA, OA + 4, "k2_q0")
            for k in range(4):
                a(f"v_mul_f32 v{g + k}, s{sEX}, v{OA + k}")
        if i == 16:
            for k in range(4):
                a(f"v_exp_f32 v{g + k}, v{g + k}")
        if i == 17:
            a(f"v_cvt_pk_bf16_f32 v{OA}, v{OA}, v{OA + 1}")
            a(f"v_cvt_pk_bf16_f32 v{OA + 1}, v{OA + 2}, v{OA + 3}")
            for k in range(4):
                a(f"v_add_f32 v{g + k}, 1.0, v{g + k}")
        if i == 18:
            for k in range(4):
                a(f"v_rcp_f32 v{g + k}, v{g + k}")
    qsum(OA + 4, OA + 16, "k2_q1")
    a(f"s_mov_b64 exec, {sp(sMK)}")
    a(f"ds_write_b64 v{vOW}, {v(OA, 2)}")
    for o in range(1, 4):
        b = OA + 4 * o
        for k in range(2):
            a(f"v_pk_mul_f32 {v(b + 2 * k, 2)}, {v(b + 2 * k, 2)}, {v(g + 2 * k, 2)}")
        a(f"v_cvt_pk_bf16_f32 v{b}, v{b}, v{b + 1}")
        a(f"v_cvt_pk_bf16_f32 v{b + 1}, v{b + 2}, v{b + 3}")
        a(f"ds_write_b64 v{vOW}, {v(b, 2)} offset:{128 * o}")
    a(f"""
    s_mov_b64 exec, -1
    s_add_u32 s{sPH}, s{sPH}, 1
    s_cmp_eq_u32 s{sPH}, 1
    s_cbranch_scc1 k2_ph1
    s_cmp_eq_u32 s{sPH}, 2
    s_cbranch_scc1 k2_ph2
""")
    stamp('fin0')
    a(f"""
    s_waitcnt lgkmcnt(0)
    s_barrier
    ds_read_b128 v[64:67], v{vLA} offset:{OUTL - OUTH}
    ds_read_b128 v[68:71], v{vLA} offset:{OUTL - OUTH + 2 * OP}
    s_waitcnt lgkmcnt(1)
    buffer_store_dwordx4 v[64:67], v{vG0}, {O}, 0 offen{OSC}
    s_mov_b32 exec_hi, 0
    s_waitcnt lgkmcnt(0)
    buffer_store_dwordx4 v[68:71], v{vG1}, {O}, 0 offen{OSC}
    s_mov_b32 exec_hi, -1
""")
    a("k2_out:")
    if OPT['stamps']:
        stamp('gend')
        a(f"""
    s_waitcnt vmcnt(0) lgkmcnt(0)
    s_memrealtime s[20:21]
    s_lshl_b32 s{sT}, s2, 3
    s_add_u32 s{sT}, s{sT}, s{sWV}
    s_lshl_b32 s{sT}, s{sT}, 6
    s_add_u32 s{sT}, s{sT}, {ST_OFF}
    v_mov_b32 v4, s{sT}
    s_waitcnt lgkmcnt(0)
""")
        for i in range(7):
            a(f"v_mov_b32 v{8 + 2 * i}, s{88 + 2 * i}")
            a(f"v_mov_b32 v{9 + 2 * i}, s{89 + 2 * i}")
        a(f"v_mov_b32 v22, s20")
        a(f"v_mov_b32 v23, s21")
        a("s_mov_b64 exec, 1")
        for i in range(4):
            a(f"global_store_dwordx4 v4, {v(8 + 4 * i, 4)}, s[{sW}:{sW + 1}] offset:{16 * i}")
    a("""
k2_end:
    s_endpgm
""")
    return a.lines, LDS


def main():
    out = sys.argv[1] if len(sys.argv) > 1 else f"cdna_kernels/{NAME}.s"
    ref = open(f"cdna_kernels/{NAME}.s.ref").read().split('\n')
    hdr = [l for l in ref if l.startswith(';') and '@launch' not in l and 'Override' not in l and 'grid=ceil' not in l]
    k2, lds2 = gen_k2()
    k2, n2 = pad_hazards(k2, OPT.get('verbose', 0))
    kk = f"kernel={KN} " if OPT['lst'] else ""
    txt = hdr + [
        f"; @launch {kk}grid=(256,1,1) block=(512,1,1) lds={lds2}",
        '.amdgcn_target "amdgcn-amd-amdhsa--gfx950"', '.text']
    txt += [f".globl {KN}", ".p2align 8", f".type {KN},@function"] + k2
    txt += ['.section .rodata,"a"']
    txt += [".p2align 6", f".amdhsa_kernel {KN}",
            f"  .amdhsa_next_free_vgpr 256", "  .amdhsa_next_free_sgpr 102",
            f"  .amdhsa_accum_offset 256", "  .amdhsa_group_segment_fixed_size 0",
            "  .amdhsa_kernarg_size 96", "  .amdhsa_user_sgpr_count 2",
            "  .amdhsa_user_sgpr_kernarg_segment_ptr 1", "  .amdhsa_system_sgpr_workgroup_id_x 1",
            ".end_amdhsa_kernel"]
    open(out, 'w').write('\n'.join(txt) + '\n')
    print(f"wrote {out}: pads {n2}, lines {len(txt)}")


main()
```

```python
import sys
from asmlib import Asm, v, s, pad_hazards

NAME = "gather_scatter__tensor_product_equiv_equiformer__graph"
OPT = dict(cpf=2, hop=0, hmid=1, sl0=0, sl1=0, w7d=1, wb=2, dr=1, notbl=0, nodma=0, b1=2, pp=1, dbg=0, gsc=1, nst=7, stamps=0, prio=1, osc=0, lst=0, tlim=400, skip=-1, wpos=0, nt=3, ze=0, pf=1)
for a in sys.argv[2:]:
    k, val = a.split('=')
    OPT[k] = int(val, 0)

assert 0 <= OPT['b1'] <= 9
N = 12500
NCH = 250
CH = 3200
GR_OFF = 0x1000
TBL_OFF = 0xD00000
ALT = 0x1000000
WS_SIZE = ALT + 0xD80000
ST_OFF = 0xE00000
SDWA = "dst_sel:DWORD dst_unused:UNUSED_PAD"
KN = NAME + "_kernel"


def wave_scan(a, r):
    for m in ("row_shr:1", "row_shr:2", "row_shr:4", "row_shr:8"):
        a(f"v_add_u32_dpp {v(r)}, {v(r)}, {v(r)} {m} row_mask:0xf bank_mask:0xf")
    a(f"v_add_u32_dpp {v(r)}, {v(r)}, {v(r)} row_bcast:15 row_mask:0xa bank_mask:0xf")
    a(f"v_add_u32_dpp {v(r)}, {v(r)}, {v(r)} row_bcast:31 row_mask:0xc bank_mask:0xf")


def gen_k2():
    a = Asm()
    LDS = 163840
    HIST, PH, BTAB, FLAG = 0, 1024, 2048, 3072
    RAWW = 3136
    WRAD = RAWW + 40960
    STG = WRAD + 1280
    CB = 131040
    TENT = STG + CH * 16
    ZI = 4096
    ROW = 1440
    vL16, vP2, TM, A, BT, M, WF, DA, DB, ACC = 0, 1, 2, 4, 8, 16, 24, 64, 96, 128
    LANE, TID = 2, 3
    G, ADDR, BIN, META, RANK = 64, 96, 104, 112, 120
    DST, SRC, EA, RH, BOFF, RNK, SCN, UP, PG = 128, 136, 144, 148, 160, 168, 176, 184, 192
    sC = 3
    sX, sW, sO = 4, 8, 12
    sWV, sRND, sMORE, sTOT = 16, 17, 18, 19
    sP0, sE0, sP1, sE1, sNX, sNT = 20, 21, 22, 23, 24, 25
    sLO, sHI, s512, sZI, sCB, sMSK = 26, 27, 28, 29, 30, 31
    sT = 32
    sRST, sFIRST = 36, 37
    sDBG = 38
    sM = 40
    pR, pE, pS, pD, pWR, pW0, pW1 = 72, 74, 76, 78, 80, 82, 84
    sEP, sTAG = 86, 87
    sAM, sTM, sCNT, sK = 20, 22, 24, 25
    X = f"s[{sX}:{sX + 3}]"
    W = f"s[{sW}:{sW + 3}]"
    O = f"s[{sO}:{sO + 3}]"
    OSC = {0: "", 1: " sc1", 2: " sc0 sc1", 3: " nt"}[OPT['osc']]
    NT = " nt" if OPT['nt'] & 1 else ""
    NT2 = " nt" if OPT['nt'] & 2 else ""

    SMAP = {1: dict(start=0, tbl=1, lastmeta=2, sorted=3, mainend=4, sbar=5, gend=6),
            2: dict(start=0, drained=1, bar2p=2, rest=3, bar3=4, stored=5, tbl=6),
            7: dict(start=0, bar2p=1, n7b=2, g0=3, e0=4, e3=5, rest=6),
            9: dict(start=0, issued=1, dst=2, bar2p=3, g0=4, rest=5, bar3=6),
            6: dict(start=0, issued=1, pre1=2, dst=3, bar2p=4, rest=5, bar3=6),
            3: dict(start=0, drained=1, dissued=2, wdone=3, lastmeta=4, bar2=5, sorted=6),
            8: dict(start=0, tbl=1, expd=2, drained=3, dissued=4, lastmeta=5, sorted=6),
            4: dict(start=0, mainend=1, dpp0=2, sw1=3, sbar=4, fin0=5, gend=6),
            5: dict(start=0, bar2=1, scan=2, p2=3, sorted=4, first=5, it1=6)}.get(OPT['stamps'], {})

    def stamp(nm):
        if nm in SMAP:
            i = SMAP[nm]
            a(f"s_memrealtime s[{88 + 2 * i}:{89 + 2 * i}]")

    PADS = ['w1', 'now', 'dp', 'b2', 'lop', 'o0', 'm0', 'o1', 'm1', 't0', 't1', 'fin', 'sw', 'hg', 'tl']
    if not OPT['hmid']:
        PADS = [p for p in PADS if p not in ('m0', 'm1')]
    NCHAIN = max(OPT['hop'], 1)
    CHAINS = [PADS[i::NCHAIN] for i in range(NCHAIN)]
    NEXT = {}
    for c in CHAINS:
        for i, p in enumerate(c):
            NEXT[p] = f"k2_pad_{c[i + 1]}" if i + 1 < len(c) else "k2_b3b"

    def pad(nm, free=False):
        if OPT['hop'] and nm in NEXT:
            a(f"k2_pad_{nm}:")
            a(f"{'s_branch' if free else 's_cbranch_execz'} {NEXT[nm]}")

    def m1(i):
        return f"s[{sM + 4 * i}:{sM + 4 * i + 1}]"

    def m2(i):
        return f"s[{sM + 4 * i + 2}:{sM + 4 * i + 3}]"

    def sp(i):
        return f"s[{i}:{i + 1}]"

    a(f"""
{KN}:
    s_cmp_ge_u32 s2, 256
    s_cbranch_scc1 k2_end
""")
    stamp('start')
    a(f"""
    s_load_dwordx16 s[72:87], s[0:1], 8
    s_load_dwordx2 s[{sW}:{sW + 1}], s[0:1], 88
    s_load_dwordx2 s[{sX}:{sX + 1}], s[0:1], 0
    s_load_dwordx2 s[{sO}:{sO + 1}], s[0:1], 72
    v_lshrrev_b32 v3, 6, v0
    s_mov_b32 s{sC}, s2
    v_readfirstlane_b32 s{sWV}, v3
    s_and_b32 s{sT}, s2, 7
    s_lshr_b32 s2, s2, 3
    s_lshl_b32 s{sT}, s{sT}, 5
    s_or_b32 s2, s2, s{sT}
    s_mov_b32 s{sX + 2}, {N * 512}
    s_mov_b32 s{sX + 3}, 0x00020000
    s_mov_b32 s{sW + 2}, {WS_SIZE}
    s_mov_b32 s{sW + 3}, 0x00020000
    s_mov_b32 s{sO + 2}, {N * 512}
    s_mov_b32 s{sO + 3}, 0x00020000
    s_mov_b32 s{sRND}, 0
    s_mov_b32 s{sRST}, 0
""")
    if OPT['cpf'] == 2:
        a(f"""
    s_getpc_b64 s[{sT}:{sT + 1}]
k2_pc:
    v_lshlrev_b32 v252, 5, v0
    v_min_u32 v252, k2_end-k2_pc, v252
    v_add_co_u32 v252, vcc, s{sT}, v252
    v_mov_b32 v253, s{sT + 1}
    v_addc_co_u32 v253, vcc, 0, v253, vcc
    global_load_dword v255, v[252:253], off
""")
    if OPT['skip'] >= 0:
        a(f"""
    s_cmp_eq_u32 s{sC}, {OPT['skip']}
    s_cselect_b32 s{sC}, 255, s{sC}
""")
    def wdma():
        a(f"""
    s_lshl_b32 s{sT + 2}, s{sWV}, 11
    s_add_u32 m0, s{sT + 2}, {RAWW}
    v_add_u32 v4, s{sT + 2}, v9
    s_mul_i32 s{sT + 2}, s{sWV}, 3072
    global_load_lds_dwordx4 v4, {sp(pW0)}
    global_load_lds_dwordx4 v4, {sp(pW0)} offset:1024
    s_add_u32 m0, s{sT + 2}, {RAWW + 16384}
    v_add_u32 v5, s{sT + 2}, v9
    global_load_lds_dwordx4 v5, {sp(pW1)}
    global_load_lds_dwordx4 v5, {sp(pW1)} offset:1024
    global_load_lds_dwordx4 v5, {sp(pW1)} offset:2048
""")
    el = [f"global_load_dwordx4 {v(DST, 4)}, v4, {sp(pD)}{NT}",
          f"global_load_dwordx4 {v(DST + 4, 4)}, v7, {sp(pD)}{NT}",
          f"global_load_dwordx4 {v(SRC, 4)}, v4, {sp(pS)}{NT}",
          f"global_load_dwordx2 {v(EA, 2)}, v5, {sp(pE)}{NT}",
          f"global_load_dwordx4 {v(RH, 4)}, v6, {sp(pR)}{NT2}",
          f"global_load_dwordx2 {v(RH + 4, 2)}, v6, {sp(pR)} offset:16{NT2}",
          f"global_load_dwordx4 {v(SRC + 4, 4)}, v7, {sp(pS)}{NT}",
          f"global_load_dwordx2 {v(EA + 2, 2)}, v5, {sp(pE)} offset:{CH}{NT}",
          f"global_load_dwordx4 {v(RH + 6, 4)}, v8, {sp(pR)}{NT2}",
          f"global_load_dwordx2 {v(RH + 10, 2)}, v8, {sp(pR)} offset:16{NT2}"]
    a(f"""
k2_round:
    v_mbcnt_lo_u32_b32 v{LANE}, -1, 0
    v_mbcnt_hi_u32_b32 v{LANE}, -1, v{LANE}
    s_lshl_b32 s{sT}, s{sWV}, 6
    v_add_u32 v{TID}, s{sT}, v{LANE}
    v_mov_b32 v12, 0
    v_lshlrev_b32 v14, 2, v{TID}
    ds_write_b32 v14, v12 offset:{HIST}
    s_mul_i32 s{sT}, s{sC}, {CH * 4}
    s_mul_i32 s{sT + 1}, s{sC}, {CH * 2}
    s_mul_i32 s{sT + 2}, s{sC}, {CH * 6}
    v_lshl_add_u32 v4, v{TID}, 4, s{sT}
    v_lshl_add_u32 v5, v{TID}, 3, s{sT + 1}
    v_mul_u32_u24 v6, 24, v{TID}
    v_add_u32 v6, s{sT + 2}, v6
    v_add_u32 v7, {CH * 2}, v4
    v_add_u32 v8, {CH * 3}, v6
    v_cmp_gt_u32 vcc, {CH // 8}, v{TID}
    v_lshlrev_b32 v9, 4, v{LANE}
    s_mov_b64 {sp(sAM)}, vcc
    s_or_b32 s{sFIRST}, s{sRST}, s{sRND}
    s_cmp_ge_u32 s{sC}, {NCH}
    s_cselect_b64 vcc, 0, vcc
    s_waitcnt lgkmcnt(0)
    s_cbranch_vccz k2_noedge
    s_mov_b64 exec, vcc
""")
    for i in range(10):
        if i == OPT['b1']:
            a("s_barrier")
        a(el[i])
    a(f"""
    s_mov_b64 exec, -1
    s_branch k2_init
k2_noedge:
    s_cmp_lg_u32 s{sWV}, 7
    s_cbranch_scc1 k2_nb1
    s_cmp_lg_u32 s{sFIRST}, 0
    s_cbranch_scc1 k2_noep
    s_load_dword s{sEP}, s[{sW}:{sW + 1}], 0
k2_noep:
    v_min_u32 v99, {39 * 16}, v9
    s_and_b32 s{sT}, s2, 31
    s_mul_i32 s{sT + 1}, s{sT}, 768
    s_lshl_b32 s{sT}, s{sT}, 9
    v_min_u32 v100, 3, v{LANE}
    v_min_u32 v101, 5, v{LANE}
    v_lshl_add_u32 v100, v100, 7, s{sT}
    v_lshl_add_u32 v101, v101, 7, s{sT + 1}
    global_load_dwordx4 v[64:67], v99, {sp(pWR)}
    global_load_dword v100, v100, {sp(pW0)}
    global_load_dword v101, v101, {sp(pW1)}
""")
    if OPT['cpf'] == 1:
        a(f"""
    s_getpc_b64 s[{sT}:{sT + 1}]
k2_pc:
    v_lshlrev_b32 v132, 2, v9
    v_mov_b32 v133, s{sT + 1}
""")
        for k in range(4):
            a(f"""
    v_min_u32 v134, k2_end-k2_pc, v132
    v_add_co_u32 v134, vcc, s{sT}, v134
    v_addc_co_u32 v135, vcc, 0, v133, vcc
    v_add_u32 v132, 4096, v132
    global_load_dword v{128 + k}, v[134:135], off
""")
    a(f"""
k2_nb1:
    s_barrier
k2_init:
""")
    stamp('issued')
    if OPT['dbg'] == 3:
        for k, n in enumerate((8, 7, 6, 4, 3, 0)):
            a(f"s_waitcnt vmcnt({n})")
            a(f"s_memrealtime s[{90 + 2 * k}:{91 + 2 * k}]")
        a("s_branch k2_out")
    a(f"""
    v_mov_b32 v4, -1
    v_mov_b32 v5, -1
    v_mov_b32 v6, -1
    v_mov_b32 v7, -1
    v_mov_b32 v13, 0
    v_lshlrev_b32 v8, 2, v14
    v_add_u32 v8, {CB - 24576}, v8
    ds_write_b128 v8, v[4:7]
    ds_write_b128 v8, v[4:7] offset:8192
    ds_write_b128 v8, v[4:7] offset:16384
    s_lshl_b32 s{sT}, s{sWV}, 12
    s_add_u32 s{sT}, s{sT}, {CB}
    v_mov_b32 v16, 16
    v_mov_b32 v17, 16
    v_mov_b32 v18, 16
    v_mov_b32 v19, 16
    v_add_u32 v8, s{sT}, v9
    ds_write_b128 v8, v[16:19]
    ds_write_b128 v8, v[16:19] offset:1024
    v_mov_b32 v8, {CB + ZI * 8}
    s_mov_b64 exec, 1
    ds_write_b64 v12, v[12:13] offset:{FLAG}
    ds_write_b64 v8, v[12:13]
    ds_write_b32 v8, v12 offset:8
    s_mov_b64 exec, -1
    v_lshl_add_u32 v17, v{LANE}, 5, s{sT}
    v_lshl_add_u32 v18, v{LANE}, 2, s{sT}
    v_lshl_add_u32 v19, v{LANE}, 3, s{sT}
    s_lshl_b32 s{sT}, s{sWV}, 9
    v_add_u32 v{META}, s{sT}, v{LANE}
    s_lshl_b32 s{sT}, s{sWV}, 5
    v_add_u32 v16, s{sT}, v{LANE}
    s_mov_b32 s{sTM}, -1
    s_mov_b32 s{sTM + 1}, 0
    s_mov_b32 s{sT}, {TENT}
    v_lshl_add_u32 v10, v16, 2, s{sT}
    v_mul_u32_u24 v16, {CH * 16}, v16
    v_add_u32 v16, s{sRND}, v16
    s_cmp_lg_u32 s{sRST}, 0
    s_cselect_b32 s{sMORE}, {ALT}, 0
    s_cselect_b32 s{sCNT}, {OPT['tlim'] - 16}, 0
    v_mov_b32 v20, 0
    v_and_b32 v{vL16}, 15, v{LANE}
    v_lshlrev_b32 v{vL16}, 4, v{vL16}
    v_lshrrev_b32 v{vP2}, 2, v{LANE}
    v_lshlrev_b32 v{vP2}, 3, v{vP2}
    v_lshl_or_b32 v{vP2}, v{LANE}, 30, v{vP2}
    v_and_b32 v15, 3, v{LANE}
    v_lshlrev_b32 v11, 3, v15
    v_lshlrev_b32 v5, 11, v15
    v_or_b32 v5, 0x2000, v5
    v_cmp_eq_u32 vcc, 3, v15
    v_mov_b32 v15, 0x7f
    s_mov_b32 s{sLO}, 0x05040100
    v_cndmask_b32 v15, 0, v15, vcc
    s_mov_b32 s{sHI}, 0x07060302
    s_movk_i32 s{s512}, 512
    s_movk_i32 s{sZI}, {ZI}
    s_mov_b32 s{sCB}, {CB}
    s_mov_b32 s{sMSK}, 0xffffc000
    s_lshr_b32 s{sK}, s2, 2
    s_lshl_b32 s{sK}, s{sK}, 12
    s_add_u32 s{sK}, s{sK}, {TBL_OFF}
    v_bfe_u32 v8, v{LANE}, 2, 2
    v_lshl_add_u32 v11, v8, 7, v11
    v_lshrrev_b32 v8, 4, v{LANE}
    v_lshl_add_u32 v11, v8, 10, v11
    v_lshlrev_b32 v13, 5, v8
    s_and_b32 s{sT}, s{sWV}, 3
    s_lshl_b32 s{sT}, s{sT}, 5
    v_add_u32 v11, s{sT}, v11
    v_mov_b32 v14, 4
    v_mov_b32 v4, 16
""")
    for j in range(1, 8):
        a(f"v_add_u32 v{META + j}, {64 * j}, v{META}")
    stamp('pre1')
    a(f"""
    s_cmp_eq_u32 s{sWV}, 7
    s_cbranch_scc1 k2_w7a
    s_cmp_ge_u32 s{sC}, {NCH}
    s_cbranch_scc1 k2_b3
    s_mov_b64 exec, {sp(sAM)}
    s_movk_i32 s{sT}, 12288
""")
    for i in range(8):
        if i % 4 == 0:
            a(f"s_waitcnt vmcnt({9 - i // 4})")
            if i == 0:
                stamp('dst')
        a(f"v_lshlrev_b32_sdwa v{BOFF + i}, 2, v{DST + i} {SDWA} src0_sel:DWORD src1_sel:BYTE_0")
        a(f"ds_add_rtn_u32 v{RNK + i}, v{BOFF + i}, v4 offset:{PH}")
    for i in range(8):
        a(f"v_cmp_le_u32 {m1(i)}, s{sT}, v{DST + i}")
        a(f"v_and_b32 v{DST + i}, 0x3f00, v{DST + i}")
    for i in range(8):
        a(f"v_cndmask_b32 v6, 0, v5, {m1(i)}")
        a(f"v_lshl_or_b32 v{DST + i}, v{DST + i}, 2, v6")
    a(f"""
    s_mov_b64 exec, -1
    s_branch k2_b2
k2_w7a:
    s_waitcnt lgkmcnt(0)
    s_mul_i32 s{sTAG}, s{sEP}, 0x9E3779B1
    s_add_u32 s{sTAG}, s{sTAG}, 0x7F4A7C15
    v_mov_b32 v76, 0
    v_mov_b32 v77, 0
    v_mov_b32 v78, 0
    v_mov_b32 v79, s{sTAG}
    s_mov_b32 s{sT}, 0xffff0000
    ds_write_b32 v12, v79 offset:{FLAG + 16}
    s_waitcnt vmcnt({6 if OPT['cpf'] == 1 else 2})
""")
    for k in range(4):
        a(f"v_lshlrev_b32 v{68 + 2 * k}, 16, v{64 + k}")
        a(f"v_and_b32 v{69 + 2 * k}, s{sT}, v{64 + k}")
    a(f"""
    v_lshlrev_b32 v99, 1, v99
    ds_write_b128 v99, v[68:71] offset:{WRAD}
    ds_write_b128 v99, v[72:75] offset:{WRAD + 16}
    v_lshlrev_b32 v4, 12, v{LANE}
    s_lshl_b32 s{sT}, s{sC}, 4
    s_add_u32 s{sT}, s{sT}, {TBL_OFF}
    s_cmp_ge_u32 s{sC}, {NCH}
    s_cbranch_scc1 k2_pub
k2_b2:
    s_waitcnt lgkmcnt(0)
    s_barrier
""")
    stamp('bar2p')
    H, B = SCN, SCN + 4
    a(f"""
    ds_read_b128 {v(H, 4)}, v9 offset:{PH}
    ds_read_b32 v8, v12 offset:{FLAG + 16}
    s_waitcnt lgkmcnt(1)
    v_add_u32 v{B + 1}, v{H}, v{H + 1}
    v_add_u32 v{B + 2}, v{B + 1}, v{H + 2}
    v_add_u32 v6, v{B + 2}, v{H + 3}
    v_mov_b32 v{B + 3}, v6
""")
    wave_scan(a, 6)
    a(f"""
    v_sub_u32 v{B}, v6, v{B + 3}
    v_add_u32 v{B + 3}, v{B}, v{B + 2}
    v_add_u32 v{B + 2}, v{B}, v{B + 1}
    v_add_u32 v{B + 1}, v{B}, v{H}
    ds_write_b128 v9, {v(B, 4)} offset:{BTAB}
    s_cmp_lg_u32 s{sWV}, 7
    s_cbranch_scc1 k2_n7b
""")
    a(f"""
    v_lshl_or_b32 v76, v{B + 1}, 16, v{B}
    v_lshl_or_b32 v77, v{B + 3}, 16, v{B + 2}
    v_mov_b32 v78, v6
    s_waitcnt lgkmcnt(1)
k2_pub:
    s_cmp_lg_u32 s{sFIRST}, 0
    s_cbranch_scc1 k2_hpub
    buffer_store_dwordx4 v[76:79], v4, {W}, s{sT} offen sc1
    v_mov_b32 v80, 0
    v_mov_b32 v81, 0
    v_mov_b32 v82, 0
    v_mov_b32 v83, 0
k2_w7p:
""")
    if OPT['w7d']:
        a(f"v_mov_b32 v96, v9")
        for g in range(10):
            if g == 4:
                a(f"v_mov_b32 v96, v9")
            a(f"s_mov_b32 m0, {RAWW + 4096 * g}")
            a("s_nop 0")
            for k in range(4):
                a(f"global_load_lds_dwordx4 v96, {sp(pW0 if g < 4 else pW1)}" + (f" offset:{1024 * k}" if k else ""))
            if g not in (3, 9):
                a(f"v_add_u32 v96, 4096, v96")
    a(f"""
    s_bitcmp1_b32 s2, 1
    s_cselect_b64 s[0:1], -1, 0
    s_lshl_b32 s{sT + 1}, s2, 4
    s_mov_b32 s{sT}, 0x000f000f
    v_add_u32 v7, {TENT - CB - 7 * 4096}, v18
    s_waitcnt lgkmcnt(0)
    s_barrier
""")
    for k in range(4):
        a(f"v_and_b32 v4, 2, v{80 + k}")
        a(f"v_cmp_eq_u32 {m1(k)}, 0, v4")
    if OPT['sl0']:
        a(f"s_sleep {OPT['sl0']}")
    if OPT['sl1']:
        a("s_branch k2_tp1")
    a("k2_tpoll:")
    if OPT['sl1']:
        a(f"s_sleep {OPT['sl1']}")
        a("k2_tp1:")
    for k in range(4):
        a(f"buffer_load_dwordx4 {v(64 + 4 * k, 4)}, v9, {W}, s{sK} offen offset:{1024 * k} sc1")
    for k in range(4):
        g = 64 + 4 * k
        a(f"""
    s_waitcnt vmcnt({3 - k})
    v_or3_b32 v4, v{g}, v{g + 1}, v{g + 2}
    v_xor_b32 v5, s{sTAG}, v{g + 3}
    v_and_or_b32 v4, v4, s{sT}, v5
    v_cndmask_b32 v{g}, v{g}, v{g + 1}, s[0:1]
    v_cmp_eq_u32 vcc, 0, v4
    v_cndmask_b32 v{g + 1}, v{g + 1}, v{g + 2}, s[0:1]
    s_and_b64 vcc, vcc, {m1(k)}
    v_alignbit_b32 v{g}, v{g + 1}, v{g}, s{sT + 1}
    s_andn2_b64 {m1(k)}, {m1(k)}, vcc
    v_or_b32 v{g}, 2, v{g}
    v_cndmask_b32 v{80 + k}, v{80 + k}, v{g}, vcc
""")
    a(f"""
    s_or_b64 {m2(0)}, {m1(0)}, {m1(1)}
    s_or_b64 {m2(1)}, {m1(2)}, {m1(3)}
    s_or_b64 vcc, {m2(0)}, {m2(1)}
    s_cbranch_scc0 k2_tok
    s_add_u32 s{sCNT}, s{sCNT}, 1
    s_cmp_lt_u32 s{sCNT}, {OPT['tlim']}
    s_cbranch_scc1 k2_tpoll
""")
    for k in range(4):
        a(f"""
    s_ff1_i32_b64 s{sT + 1}, {m1(k)}
    s_add_u32 s{sT + 2}, s{sT + 1}, {64 * k + 1}
    s_cmp_lt_i32 s{sT + 1}, 0
    s_cselect_b32 s{sT}, s{sT}, s{sT + 2}
""")
    a(f"""
    v_mov_b32 v4, s{sT}
    ds_write_b32 v12, v4 offset:{FLAG + 4}
k2_tok:
    ds_write2st64_b32 v7, v80, v81 offset0:0 offset1:1
    ds_write2st64_b32 v7, v82, v83 offset0:2 offset1:3
""")
    if OPT['pf'] == 5:
        a(f"""
    s_mov_b32 exec_hi, 0x3ffff
    s_mul_i32 s{sT + 2}, s{sC}, 25600
    v_lshlrev_b32 v4, 3, v9
""")
        for k in range(4):
            a(f"buffer_load_dword v{RANK + k}, v4, {X}, s{sT + 2} offen")
            if k < 3:
                a(f"s_add_u32 s{sT + 2}, s{sT + 2}, 6400")
        a("s_mov_b64 exec, -1")
    a(f"""
    s_branch k2_b3b
k2_n7b:
    s_mov_b64 exec, {sp(sAM)}
""")
    stamp('n7b')
    for i in range(8):
        a(f"ds_read_b32 v{BOFF + i}, v{BOFF + i} offset:{BTAB}")
    a(f"s_mov_b32 s{sT}, 0xffff0000")
    a(f"s_mov_b32 s{sT + 1}, 5497558")
    a(f"s_waitcnt lgkmcnt(9)")
    a(f"v_readfirstlane_b32 s{sTAG}, v8")
    for i in range(8):
        a(f"v_mov_b32 v{PG + 4 * i + 3}, v8")

    def unpack(dst, reg, hi):
        if hi:
            a(f"v_and_b32 v{dst}, s{sT}, v{reg}")
        else:
            a(f"v_lshlrev_b32 v{dst}, 16, v{reg}")
    for i in range(8):
        if i == 0:
            a(f"s_waitcnt vmcnt(4)")
            stamp('g0')
        if i == 4:
            a(f"s_waitcnt vmcnt(0)")
            stamp('rest')
        unpack(UP, EA + i // 2, i & 1)
        for j in range(3):
            hw = 3 * i + j
            unpack(UP + 1 + j, RH + hw // 2, hw & 1)
        for j in range(3):
            a(f"v_mul_f32 v{UP + 1 + j}, v{UP}, v{UP + 1 + j}")
        a(f"v_cvt_pk_bf16_f32 v{PG + 4 * i}, v{UP}, v{UP + 1}")
        a(f"v_cvt_pk_bf16_f32 v{PG + 4 * i + 1}, v{UP + 2}, v{UP + 3}")
        a(f"v_mul_hi_u32_u24 v6, s{sT + 1}, v{SRC + i}")
        a(f"v_lshl_or_b32 v6, v6, 6, v{DST + i}")
        a(f"v_lshl_or_b32 v{PG + 4 * i + 2}, v{SRC + i}, 16, v6")
        if i == 0:
            a("s_waitcnt lgkmcnt(0)")
        a(f"v_add_u32 v{BOFF + i}, v{BOFF + i}, v{RNK + i}")
        a(f"ds_write_b128 v{BOFF + i}, {v(PG + 4 * i, 4)} offset:{STG}")
        stamp(f'e{i}')
    def wbuild():
        T, U = ACC, ACC + 80
        a(f"s_mov_b32 s{sT}, 0xffff0000")

        def rd(f):
            a(f"ds_read_b64_tr_b16 {v(WF + 4 * f, 2)}, v11 offset:{RAWW + f * 4096}")
            a(f"ds_read_b64_tr_b16 {v(WF + 4 * f + 2, 2)}, v11 offset:{RAWW + f * 4096 + 512}")
            a(f"ds_read_b128 {v(T + 8 * f, 4)}, v13 offset:{WRAD + f * 128}")
            a(f"ds_read_b128 {v(T + 8 * f + 4, 4)}, v13 offset:{WRAD + f * 128 + 16}")
        for f in range(3):
            rd(f)
        for f in range(10):
            a(f"s_waitcnt lgkmcnt({4 * min(2, 9 - f)})")
            if f + 3 < 10:
                rd(f + 3)
            if f == 5:
                pad('w1')
            for k in range(4):
                a(f"v_lshlrev_b32 v{U + 2 * k}, 16, v{WF + 4 * f + k}")
                a(f"v_and_b32 v{U + 2 * k + 1}, s{sT}, v{WF + 4 * f + k}")
            for k in range(4):
                a(f"v_pk_mul_f32 {v(U + 2 * k, 2)}, {v(U + 2 * k, 2)}, {v(T + 8 * f + 2 * k, 2)}")
            for k in range(4):
                a(f"v_cvt_pk_bf16_f32 v{WF + 4 * f + k}, v{U + 2 * k}, v{U + 2 * k + 1}")
    def xpf(d):
        a(f"""
    s_mov_b64 exec, 0x1ffffff
    s_lshl_b32 s{sT + 3}, s{sC}, 3
    s_add_u32 s{sT + 3}, s{sT + 3}, s{sWV}
    s_mul_i32 s{sT + 3}, s{sT + 3}, 3200
    v_lshlrev_b32 v{d}, 3, v9
    buffer_load_dword v{d}, v{d}, {X}, s{sT + 3} offen
    s_mov_b64 exec, -1
""")
    GSC = {0: "", 1: " sc1", 2: " sc0 sc1", 3: " nt"}[OPT['gsc']]
    a(f"""
k2_b3:
    s_mul_i32 s{sT}, s{sWV}, 7168
    s_mov_b64 exec, -1
    v_add_u32 v8, s{sT}, v9
    s_mul_i32 s{sT}, s{sC}, {CH * 16}
    s_add_u32 s{sT}, s{sT}, {GR_OFF}
    s_add_u32 s{sT}, s{sT}, s{sMORE}
    s_add_u32 s{sT + 1}, s{sT}, 4096
    s_cmp_ge_u32 s{sC}, {NCH}
    s_waitcnt lgkmcnt(0)
    s_barrier
""")
    stamp('bar3')
    a("s_cbranch_scc1 k2_np")
    for j in range(8):
        a(f"ds_read_b128 {v(PG + 4 * j, 4)}, v8 offset:{STG + 1024 * j}")
    a(f"s_cmp_lg_u32 s{sRST}, 0")
    a(f"s_cbranch_scc1 k2_hst")
    a(f"s_cmp_lg_u32 s{sWV}, 6")
    for j in range(8):
        if j == 7:
            a("s_cbranch_scc1 k2_hop")
        a(f"s_waitcnt lgkmcnt({7 - j})")
        a(f"buffer_store_dwordx4 {v(PG + 4 * j, 4)}, v8, {W}, s{sT + j // 4} offen offset:{1024 * (j % 4)}{GSC}")
    a("k2_hop:")
    if OPT['hop']:
        a("s_mov_b64 exec, 0")
        for i, c in enumerate(CHAINS):
            a(f"s_cmp_eq_u32 s{sWV}, {i}")
            a(f"s_cbranch_scc1 k2_pad_{c[0]}")
    a("k2_b3b:")
    stamp('stored')
    if OPT['pf'] == 3:
        xpf(RANK)
    a(f"""
    s_waitcnt lgkmcnt(0)
    s_barrier
    s_mov_b64 exec, {sp(sTM)}
    ds_read_b32 v20, v10
    s_mov_b64 exec, -1
    ds_read_b32 v21, v12 offset:{FLAG + 4}
""")
    stamp('tbl')
    if OPT['pf'] == 2:
        xpf(RANK)
    if not OPT['w7d']:
        wdma()
    if OPT['wb'] == 2:
        a(f"""
    s_cmp_lg_u32 s{sRND}, 0
    s_cbranch_scc1 k2_now
""")
        wbuild()
        a("k2_now:")
        pad('now')
    Q = G
    a(f"""
    s_waitcnt lgkmcnt(0)
    v_cmp_ne_u32 vcc, 0, v21
    v_and_b32 v4, 1, v20
    v_and_b32 v20, -4, v20
    s_cbranch_vccnz k2_p1h
    v_lshl_add_u32 v16, v4, 24, v16
    v_sub_u32_sdwa v4, v20, v20 {SDWA} src0_sel:WORD_1 src1_sel:WORD_0
    v_mov_b32 v5, v4
    v_add_u32_sdwa v6, v16, v20 {SDWA} src0_sel:DWORD src1_sel:WORD_0
    s_movk_i32 s{sT + 1}, 8192
""")
    for m in ("row_shr:1", "row_shr:2", "row_shr:4", "row_shr:8"):
        a(f"v_add_u32_dpp v5, v5, v5 {m} row_mask:0xf bank_mask:0xf")
    a(f"""
    v_add_u32_dpp v5, v5, v5 row_bcast:15 row_mask:0xa bank_mask:0xf
    s_lshl_b32 s{sT}, s{sWV}, 12
    s_add_u32 s{sT}, s{sT}, {CB}
    v_sub_u32 v4, v5, v4
    v_readlane_b32 s{sTOT}, v5, 31
    v_sub_u32 v6, v6, v4
    v_subrev_u32 v4, s{sRND}, v4
    v_subrev_u32 v5, s{sRND}, v5
    v_med3_i32 v4, v4, 0, s{sT + 1}
    v_med3_i32 v5, v5, 0, s{sT + 1}
    v_lshrrev_b32 v4, 2, v4
    v_lshrrev_b32 v5, 2, v5
    v_add_u32 v4, s{sT}, v4
    v_add_u32 v5, s{sT}, v5
    s_mov_b64 exec, {sp(sTM)}
    ds_add_u32 v4, v6
    ds_sub_u32 v5, v6
    s_mov_b64 exec, -1
    ds_read_b128 {v(Q, 4)}, v17
    ds_read_b128 {v(Q + 4, 4)}, v17 offset:16
    s_sub_u32 s{sTOT}, s{sTOT}, s{sRND}
    s_cmp_le_i32 s{sTOT}, 8192
    s_cbranch_scc1 k2_nomore
    ds_write_b32 v12, v14 offset:{FLAG}
k2_nomore:
""")
    for i in range(8):
        a(f"v_cmp_gt_i32 {m1(i)}, s{sTOT}, v9")
        if i < 7:
            a(f"s_sub_u32 s{sTOT}, s{sTOT}, 1024")
    a("s_waitcnt lgkmcnt(0)")
    for j in range(1, 8):
        a(f"v_add_u32 v{Q + j}, v{Q + j}, v{Q + j - 1}")
    a(f"v_mov_b32 v4, v{Q + 7}")
    wave_scan(a, Q + 7)
    a(f"v_sub_u32 v4, v{Q + 7}, v4")
    for j in range(7):
        a(f"v_add_u32 v{Q + j}, v{Q + j}, v4")
    a(f"""
    ds_write_b128 v17, {v(Q, 4)}
    ds_write_b128 v17, {v(Q + 4, 4)} offset:16
""")
    for j in range(4):
        a(f"ds_read2st64_b32 {v(ADDR + 2 * j, 2)}, v18 offset0:{2 * j} offset1:{2 * j + 1}")
    for i in range(8):
        a(f"s_mov_b64 {m2(i)}, {m1(i)}")
    a(f"""
    s_movk_i32 s{sK}, {GR_OFF - 16}
    s_mov_b32 s{sT + 3}, 0xc000003f
    s_mov_b32 s{sCNT}, 0
""")
    if OPT['pf'] == 9:
        a(f"""
    s_mov_b64 s[0:1], 0x1ffffff
    s_lshl_b32 s{sT + 2}, s{sC}, 3
    s_add_u32 s{sT + 2}, s{sT + 2}, s{sWV}
    s_mul_i32 s{sT + 2}, s{sT + 2}, 3200
    v_lshlrev_b32 v23, 3, v9
""")

    def dload(i):
        a(f"s_mov_b64 exec, {m2(i)}")
        a(f"buffer_load_dwordx4 {v(G + 4 * i, 4)}, v{ADDR + i}, {W}, s{sK} offen sc1")
    stamp('expd')
    if OPT['dr'] or (OPT['wb'] == 0 and not OPT['w7d']):
        a("s_waitcnt vmcnt(0)")
    if (OPT['wb'] == 0 and not OPT['w7d']) or OPT['dr'] == 2:
        a("s_barrier")
    stamp('drained')
    for i in range(8):
        if i % 2 == 0:
            a(f"s_waitcnt lgkmcnt({3 - i // 2})")
        dload(i)
    stamp('dissued')

    if OPT['wb'] == 0:
        a(f"""
    s_cmp_lg_u32 s{sRND}, 0
    s_cbranch_scc1 k2_dchk
    s_mov_b64 exec, -1
""")
        wbuild()
    stamp('wdone')
    a("s_branch k2_dchk")
    pad('dp', True)
    a("k2_dpoll:")
    for i in range(8):
        dload(i)
    a("k2_dchk:")
    PFX = 0
    if OPT['pf'] == 9:
        PFX = 1
        a(f"""
    s_mov_b64 exec, s[0:1]
    buffer_load_dword v22, v23, {X}, s{sT + 2} offen
    s_mov_b64 s[0:1], 0
""")
    for i in range(8):
        g = G + 4 * i
        a(f"""
    s_mov_b64 exec, {m2(i)}
    s_waitcnt vmcnt({7 - i + PFX})
    v_xor_b32 v4, s{sTAG}, v{g + 3}
    v_and_or_b32 v4, v{g + 2}, s{sT + 3}, v4
    v_cmpx_eq_u32 vcc, 0, v4
    v_bfe_u32 v{BIN + i}, v{g + 2}, 4, 10
    s_andn2_b64 {m2(i)}, {m2(i)}, vcc
    ds_add_rtn_u32 v{RANK + i}, v{BIN + i}, v14 offset:{HIST}
    v_and_or_b32 v{META + i}, v{g + 2}, s{sMSK}, v{META + i}
    ds_write_b64 v19, {v(g, 2)} offset:{512 * i}
""")
        if i == 1:
            a(f"s_or_b64 {sp(sAM)}, {m2(0)}, {m2(1)}")
        if i > 1:
            a(f"s_or_b64 {sp(sAM)}, {sp(sAM)}, {m2(i)}")
    a(f"""
    s_cbranch_scc0 k2_p1e
    s_add_u32 s{sCNT}, s{sCNT}, 1
    s_cmp_lt_u32 s{sCNT}, 0x20000
    s_cbranch_scc1 k2_dpoll
k2_p1e:
""")
    stamp('lastmeta')
    if OPT['pf'] == 1:
        xpf(ADDR)
    a(f"""
    s_mov_b64 exec, -1
    s_lshl_b32 s{sT}, s{sWV}, 3
    s_add_u32 s{sT + 1}, s{sT}, 4
    s_add_u32 s{sT + 2}, s{sT}, 7
    s_waitcnt lgkmcnt(0)
    s_barrier
""")
    stamp('bar2')
    pad('b2')
    a(f"""
    ds_read_b128 v[4:7], v9 offset:{HIST}
    ds_read_b32 v20, v12 offset:{FLAG}
""")
    if OPT['pf'] == 6:
        xpf(ADDR)
    a(f"""
    s_waitcnt lgkmcnt(1)
    v_add_u32 v5, v4, v5
    v_add_u32 v6, v5, v6
    v_add_u32 v7, v6, v7
    v_add_u32_dpp v10, v7, v7 quad_perm:[1,0,3,2] row_mask:0xf bank_mask:0xf
    v_add_u32_dpp v10, v10, v10 quad_perm:[2,3,0,1] row_mask:0xf bank_mask:0xf
    v_sub_u32 v10, 0, v10
    v_and_b32 v10, v15, v10
    v_add_u32 v7, v7, v10
    v_mov_b32 v10, v7
""")
    wave_scan(a, 10)
    a(f"""
    v_readlane_b32 s{sTOT}, v10, 63
    v_readlane_b32 s{sE1}, v10, s{sT + 2}
    v_sub_u32 v10, v10, v7
    s_sub_u32 s{sTOT}, {CB}, s{sTOT}
    v_add_u32 v10, s{sTOT}, v10
    v_add_u32 v7, v10, v6
    v_add_u32 v6, v10, v5
    v_add_u32 v5, v10, v4
    v_mov_b32 v4, v10
    ds_write_b128 v9, v[4:7] offset:{BTAB}
    s_add_u32 s{sE1}, s{sE1}, s{sTOT}
    v_readlane_b32 s{sP0}, v10, s{sT}
    v_readlane_b32 s{sP1}, v10, s{sT + 1}
    s_waitcnt lgkmcnt(1)
    v_readfirstlane_b32 s{sMORE}, v20
""")
    stamp('scan')
    for i in range(8):
        a(f"ds_read_b32 v{BIN + i}, v{BIN + i} offset:{BTAB}")
    a(f"""
    s_mov_b32 s{sE0}, s{sP1}
""")
    for i in range(8):
        a(f"s_mov_b64 exec, {m1(i)}")
        a(f"s_waitcnt lgkmcnt(7)")
        a(f"v_add_u32 v{BIN + i}, v{BIN + i}, v{RANK + i}")
        a(f"ds_write_b32 v{BIN + i}, v{META + i}")
    stamp('p2')
    if OPT['pf'] == 8:
        xpf(ADDR)
    a(f"""
    s_mov_b64 exec, -1
    s_cmp_lt_u32 s{sP0}, s{sE0}
    s_cselect_b32 s{sNT}, 0, 1
    s_cselect_b32 s{sNX}, s{sP0}, s{sP1}
    s_cselect_b32 s{sT}, 128, 0
    s_add_u32 s{sP0}, s{sP0}, s{sT}
    s_sub_u32 s{sT}, 128, s{sT}
    s_add_u32 s{sP1}, s{sP1}, s{sT}
    s_waitcnt {"vmcnt(0) " if OPT['pf'] == 9 else ""}lgkmcnt(0)
    s_barrier
""")
    stamp('sorted')
    ZE = 0

    def zero(lo, hi):
        for i in range(lo, hi):
            a(f"v_mov_b64 {v(ACC + 2 * i, 2)}, 0")

    def meta_reads():
        a(f"v_add_u32_sdwa v{TM}, s{sNX}, v{vP2} {SDWA} src0_sel:DWORD src1_sel:WORD_0")
        a(f"v_and_b32 v{BT}, -32, v{TM}")
        a(f"ds_read_b128 {v(M, 4)}, v{BT}")
        a(f"ds_read_b128 {v(M + 4, 4)}, v{BT} offset:16")
        a(f"ds_read_b64 {v(TM, 2)}, v{TM}")

    def loads(h):
        D = DA if h == 0 else DB
        for e in range(8):
            if h == 0:
                a(f"v_mad_u32_u16 v{M + e}, v{M + e}, s{s512}, v{vL16} op_sel:[1,0,0,0]")
            a(f"buffer_load_dwordx4 {v(D + 4 * e, 4)}, v{M + e}, {X}, 0 offen" + (" offset:256" if h else ""))

    def tr_addr():
        for i in range(2):
            a(f"v_xor_b32_sdwa v{TM + i}, v{TM + i}, v{vP2} {SDWA} src0_sel:WORD_0 src1_sel:WORD_1")
        for i in range(2):
            a(f"v_min_u32 v{TM + i}, s{sZI}, v{TM + i}")
        for i in range(2):
            a(f"v_lshl_add_u32 v{TM + i}, v{TM + i}, 3, s{sCB}")

    def tr_reads():
        a(f"ds_read_b64_tr_b16 {v(A, 2)}, v{TM}")
        a(f"ds_read_b64_tr_b16 {v(A + 2, 2)}, v{TM + 1}")

    def half(t, h, lg):
        D = DA if h == 0 else DB
        pairs = [(0, 2), (4, 6), (1, 3), (5, 7)]

        def perms(j):
            r, p = j >> 1, j & 1
            for k, (e0, e1) in enumerate(pairs):
                a(f"v_perm_b32 v{BT + 4 * (j & 1) + k}, v{D + 4 * e1 + r}, v{D + 4 * e0 + r}, s{sHI if p else sLO}")
        perms(0)
        for j in range(8):
            if j + 1 < 8:
                perms(j + 1)
            if j == 0 and lg is not None:
                a(f"s_waitcnt lgkmcnt({lg})")
            c = v(ACC + 64 * t + (8 * h + j) * 4, 4)
            a(f"v_mfma_f32_16x16x32_bf16 {c}, {v(A, 4)}, {v(BT + 4 * (j & 1), 4)}, {c}")

    if OPT['prio'] >= 1:
        a(f"""
    s_cmp_lt_u32 s{sWV}, 4
    s_cselect_b64 vcc, -1, 0
    s_cbranch_scc1 k2_lop
    s_setprio 1
k2_lop:
""")
    pad('lop')
    pcnt = [0]

    def tprio(p):
        pcnt[0] += 1
        a(f"""
    s_cbranch_vccz k2_pr{pcnt[0]}
    s_setprio {p}
k2_pr{pcnt[0]}:
""")

    a(f"""
    s_cmp_ge_u32 s{sNX}, s{sE1}
    s_cbranch_scc1 k2_wz
""")
    meta_reads()
    a("s_waitcnt lgkmcnt(1)")
    loads(0)
    loads(1)
    a("s_waitcnt lgkmcnt(0)")
    tr_addr()
    tr_reads()
    stamp('first')
    a(f"""
k2_wz:
    s_cmp_lg_u32 s{sRND}, 0
    s_cbranch_scc1 k2_noz
""")
    if OPT['wb'] == 1:
        wbuild()
    zero(ZE, 64)
    a(f"""
    s_xor_b32 s{sT}, s{sWV}, 7
    s_or_b32 s{sT}, s{sT}, s2
    s_or_b32 s{sT}, s{sT}, s{sRST}
    s_cbranch_scc1 k2_noz
    s_mov_b64 exec, 1
    v_mov_b32 v{BT}, s{sTAG}
    buffer_store_dword v{BT}, off, {W}, 0 sc1
    s_mov_b64 exec, -1
""")
    a(f"""
k2_noz:
    s_cmp_ge_u32 s{sNX}, s{sE1}
    s_cbranch_scc1 k2_done
""")
    if 'it1' in SMAP:
        a("s_waitcnt vmcnt(8)")
        stamp('it1')
    a(f"""
    s_cmp_eq_u32 s{sNT}, 0
    s_cbranch_scc0 k2_stub1
""")
    for t in range(2):
        po, eo, ps, es = (sP1, sE1, sP0, sE0) if t == 0 else (sP0, sE0, sP1, sE1)
        a(f"""
k2_stub{t}:
    s_cmp_lt_u32 s{po}, s{eo}
    s_cbranch_scc1 k2_oth{t}
    s_cmp_lt_u32 s{ps}, s{es}
    s_cbranch_scc0 k2_tail{t}
    s_mov_b32 s{sNX}, s{ps}
    s_add_u32 s{ps}, s{ps}, 128
    s_mov_b32 s{sNT}, {t}
    s_branch k2_body{t}
""")
        pad(f'o{t}', True)
        a(f"""
k2_oth{t}:
    s_mov_b32 s{sNX}, s{po}
    s_add_u32 s{po}, s{po}, 128
    s_mov_b32 s{sNT}, {1 - t}
k2_body{t}:
""")
        if OPT['prio'] == 2:
            tprio(2 - 2 * t)
        if OPT['prio'] == 3:
            tprio(2)
        meta_reads()
        a("s_waitcnt vmcnt(8)")
        half(t, 0, 3)
        a("s_waitcnt lgkmcnt(0)")
        loads(0)
        tr_addr()
        pad(f'm{t}')
        if OPT['prio'] == 3 or (OPT['prio'] == 4 and t == 1):
            tprio(0)
        if OPT['prio'] == 4 and t == 0:
            tprio(2)
        a("s_waitcnt vmcnt(8)")
        half(t, 1, None)
        loads(1)
        tr_reads()
        a(f"s_cmp_eq_u32 s{sNT}, 0")
        a(f"s_cbranch_scc1 k2_stub0")
        if t == 1:
            a("s_branch k2_stub1")
    for t in range(2):
        pad(f't{t}', True)
        a(f"k2_tail{t}:")
        a("s_waitcnt vmcnt(8)")
        half(t, 0, 0)
        a("s_waitcnt vmcnt(0)")
        half(t, 1, None)
        if t == 0:
            a("s_branch k2_done")
    a(f"""
k2_done:
    {"s_setprio 0" if OPT['prio'] >= 2 else ""}
    s_waitcnt vmcnt(0)
    v_mbcnt_lo_u32_b32 v{LANE}, -1, 0
    v_mbcnt_hi_u32_b32 v{LANE}, -1, v{LANE}
    s_cmp_eq_u32 s{sMORE}, 0
    s_cbranch_scc1 k2_fin
    s_add_u32 s{sRND}, s{sRND}, 8192
    s_movk_i32 s{sC}, 255
    s_barrier
    s_branch k2_round
k2_p1h:
    v_readfirstlane_b32 s{sC}, v21
    s_sub_u32 s{sC}, s{sC}, 1
    s_add_u32 s{sRST}, s{sRST}, 1
    s_cmp_gt_u32 s{sRST}, 2000
    s_cbranch_scc1 k2_end
    s_waitcnt vmcnt(0) lgkmcnt(0)
    s_barrier
    s_branch k2_round
k2_np:
    ds_read_b32 v8, v12 offset:{FLAG + 16}
    s_waitcnt lgkmcnt(0)
    v_readfirstlane_b32 s{sTAG}, v8
    s_branch k2_b3b
k2_hpub:
    s_bitcmp1_b32 s2, 1
    s_cselect_b64 vcc, -1, 0
    s_lshl_b32 s{sT + 1}, s2, 4
    s_lshr_b32 s{sT + 2}, s2, 2
    s_lshl_b32 s{sT}, s{sC}, 2
    s_add_u32 s{sT}, s{sT}, {TENT}
    v_cndmask_b32 v76, v76, v77, vcc
    v_cndmask_b32 v77, v77, v78, vcc
    v_mov_b32 v4, s{sT}
    v_alignbit_b32 v76, v77, v76, s{sT + 1}
    v_or_b32 v76, 3, v76
    s_lshl_b64 exec, 1, s{sT + 2}
    ds_write_b32 v4, v76
    s_mov_b64 exec, -1
    v_add_u32 v7, {TENT - CB - 7 * 4096}, v18
    ds_read2st64_b32 v[80:81], v7 offset0:0 offset1:1
    ds_read2st64_b32 v[82:83], v7 offset0:2 offset1:3
    s_branch k2_w7p
k2_hst:
    v_mov_b32 v5, s2
    v_lshlrev_b32 v5, 2, v5
    ds_read_b32 v4, v5 offset:{PH}
    ds_read_b32 v6, v5 offset:{BTAB}
    s_waitcnt lgkmcnt(0)
    v_sub_u32 v6, v8, v6
""")
    for j in range(8):
        a(f"""
    s_mov_b64 exec, -1
    v_cmp_lt_u32 vcc, v6, v4
    v_add_u32 v6, 1024, v6
    s_mov_b64 exec, vcc
    buffer_store_dwordx4 {v(PG + 4 * j, 4)}, v8, {W}, s{sT + j // 4} offen offset:{1024 * (j % 4)} sc1
""")
    a(f"""
    s_waitcnt vmcnt(0)
    s_branch k2_b3b
""")
    pad('fin', True)
    a("k2_fin:")
    stamp('mainend')
    a(f"""
    s_xor_b32 s{sFIRST}, s{sWV}, 7
    s_or_b32 s{sFIRST}, s{sFIRST}, s{sRST}
    s_cbranch_scc1 k2_ne
    buffer_load_dword v20, off, {W}, 0 sc1
k2_ne:
""")
    OP = 528
    OUTH, OUTL = 64 * ROW, CB - 24576
    a(f"""
    s_setprio 0
    v_lshrrev_b32 v3, 4, v{LANE}
    s_lshl_b32 s{sT}, s{sWV}, 1
    s_and_b32 s{sT}, s{sT}, 7
    s_lshr_b32 s{sT + 1}, s{sWV}, 2
    s_lshl_b32 s{sT + 1}, s{sT + 1}, 5
    s_add_u32 s{sT}, s{sT}, s{sT + 1}
    v_lshl_add_u32 v4, v3, 3, s{sT}
    v_mul_u32_u24 v4, {ROW}, v4
    v_bfe_u32 v5, v{LANE}, 3, 1
    v_mul_u32_u24 v5, 640, v5
    v_and_b32 v6, 7, v{LANE}
    v_lshl_add_u32 v5, v6, 4, v5
    v_add_u32 v4, v4, v5
    s_cmp_ge_u32 s{sWV}, 4
    s_cselect_b32 s{sT + 1}, -1, 0xffff
    s_mov_b32 s{sT + 3}, 0xffff
""")

    def R(t, h, q, jj):
        return ACC + 64 * t + (8 * h + jj) * 4 + q
    DP = "row_mask:0xf bank_mask:0xc"
    for t in range(2):
        for jj in range(8):
            a(f"v_add_f32_dpp v{R(t, 0, 1, jj)}, v{R(t, 1, 3, jj)}, v{R(t, 0, 1, jj)} quad_perm:[0,1,2,3] {DP}")
            a(f"v_sub_f32_dpp v{R(t, 0, 2, jj)}, v{R(t, 1, 1, jj)}, v{R(t, 0, 2, jj)} row_shr:8 {DP}")
            a(f"v_subrev_f32_dpp v{R(t, 0, 3, jj)}, v{R(t, 1, 1, jj)}, v{R(t, 0, 3, jj)} quad_perm:[0,1,2,3] {DP}")
            a(f"v_add_f32_dpp v{R(t, 0, 1, jj)}, v{R(t, 1, 2, jj)}, v{R(t, 0, 1, jj)} row_shr:8 {DP}")
            a(f"v_subrev_f32_dpp v{R(t, 1, 2, jj)}, v{R(t, 1, 3, jj)}, v{R(t, 1, 2, jj)} row_shr:8 {DP}")
        regs = [(0, 0), (0, 1), (0, 2), (0, 3), (1, 0), (1, 2)]
        for u, (h, q) in enumerate(regs):
            for k in range(4):
                a(f"v_cvt_pk_bf16_f32 v{DA + 32 * t + 4 * u + k}, v{R(t, h, q, 2 * k)}, v{R(t, h, q, 2 * k + 1)}")
        if t == 0:
            stamp('dpp0')
        hi = sT + 1 + 2 * t
        a(f"s_mov_b32 exec_hi, s{hi}")
        for u in range(5):
            a(f"ds_write_b128 v4, {v(DA + 32 * t + 4 * u, 4)} offset:{t * ROW + u * 128}")
        a(f"s_mov_b32 exec_lo, 0xff00ff00")
        a(f"s_and_b32 exec_hi, s{hi}, 0xff00ff00")
        a(f"ds_write_b128 v4, {v(DA + 32 * t + 20, 4)} offset:{t * ROW + 640}")
        a("s_mov_b64 exec, -1")
        stamp(f'sw{t}')
        if t == 0:
            pad('sw')
    vRA, vOW, vLA, vG0, vG1, vRB, vOB = 4, 5, 6, 7, 8, 9, 10
    sPH, sMK, sEX = sNT, sP0, sT + 1
    a(f"""
    v_and_b32 v11, 15, v{LANE}
    v_mul_u32_u24 v{vRB}, {ROW}, v11
    v_lshl_add_u32 v{vRB}, v3, 4, v{vRB}
    s_and_b32 s{sT}, s{sWV}, 3
    s_lshl_b32 s{sT}, s{sT}, 5
    v_mul_u32_u24 v{vOB}, {OP}, v11
    v_lshl_add_u32 v12, v3, 3, s{sT}
    v_add_u32 v{vOB}, v{vOB}, v12
    s_mov_b32 s{sEX}, 0xbfb8aa3b
    s_mov_b64 {sp(sMK)}, -1
    s_cmp_lt_u32 s{sWV}, 4
    s_cbranch_scc1 k2_sb
    v_mov_b32 v12, {CB + ZI * 8}
    v_mov_b32 v13, 1
    v_add_u32 v{vRA}, {32 * ROW}, v{vRB}
    v_add_u32 v{vOW}, {OUTH}, v{vOB}
    s_mov_b32 s{sPH}, 0
    s_mov_b64 exec, 1
    ds_add_u32 v12, v13 offset:8
k2_hsp:
    ds_read_b32 v13, v12 offset:8
    s_waitcnt lgkmcnt(0)
    v_cmp_gt_u32 vcc, 4, v13
    s_cbranch_vccz k2_hgo
    s_sleep 2
    s_branch k2_hsp
""")
    pad('hg', True)
    a(f"""
k2_hgo:
    s_mov_b64 exec, -1
    s_branch k2_tile
k2_ph1:
    v_add_u32 v{vRA}, {48 * ROW}, v{vRB}
    v_add_u32 v{vOW}, {OUTH + 16 * OP}, v{vOB}
    s_mov_b32 s{sMK}, 0x01ff01ff
    s_mov_b32 s{sMK + 1}, 0x01ff01ff
    s_branch k2_tile
k2_ph2:
    s_mov_b64 {sp(sMK)}, -1
    s_cmp_lg_u32 s{sFIRST}, 0
    s_cbranch_scc1 k2_sb
    s_waitcnt vmcnt(0)
    v_cmp_ne_u32 vcc, s{sTAG}, v20
    s_cbranch_vccz k2_sb
    s_mov_b64 exec, 1
    v_mov_b32 v20, s{sTAG}
    buffer_store_dword v20, off, {W}, 0 sc1
    s_mov_b64 exec, -1
k2_sb:
    s_lshr_b32 s{sT}, s{sWV}, 2
    s_mul_i32 s{sT + 2}, s{sT}, {16 * OP}
    s_mul_i32 s{sT}, s{sT}, {16 * ROW}
    s_add_u32 s{sT + 2}, s{sT + 2}, {OUTL}
    v_add_u32 v{vRA}, s{sT}, v{vRB}
    v_add_u32 v{vOW}, s{sT + 2}, v{vOB}
    s_mul_i32 s{sT}, s{sWV}, 3
    v_lshrrev_b32 v12, 5, v{LANE}
    v_add_u32 v12, s{sT}, v12
    v_and_b32 v13, 31, v{LANE}
    v_lshlrev_b32 v13, 4, v13
    s_movk_i32 s{sT}, {OP}
    v_mad_u32_u24 v{vLA}, v12, s{sT}, v13
    v_add_u32 v{vLA}, {OUTH}, v{vLA}
    s_mov_b32 s{sPH}, 2
    s_waitcnt lgkmcnt(0)
    s_barrier
""")
    stamp('sbar')
    a(f"""
    ds_read_b128 v[64:67], v{vLA}
    ds_read_b128 v[68:71], v{vLA} offset:{2 * OP}
k2_tile:
""")
    slot = dict(F0=0, F21=1, F22=2, F23=3, F32=4, F31=5, F1=6, F43=7, F42=8, F33=9, F41=10)
    terms = {0: [(0, 'F0'), (1, 'F1')]}
    for i in (1, 2, 3):
        terms[i] = [(2, f'F2{i}'), (3, f'F3{i}'), (4, f'F4{i}')]
    AH = 12
    BB = 160
    OA = 128
    sq = []
    for ti in range(3):
        for h in range(2):
            for o in range(4):
                if ti < len(terms[o]):
                    tt, f = terms[o][ti]
                    sq.append(dict(off=slot[f] * 128 + h * 64, w=2 * tt + h, d=OA + 4 * o, first=(ti == 0 and h == 0)))
    n = len(sq)

    def rd(i):
        a(f"ds_read_b128 {v(BB + 4 * i, 4)}, v{vRA} offset:{sq[i]['off']}")

    def qsum(lo, hi, lab):
        a(f"s_cmp_lg_u32 s{sPH}, 1")
        a(f"s_cbranch_scc1 {lab}")
        for r in range(lo, hi):
            a(f"v_add_f32_dpp v{r}, v{r}, v{r} quad_perm:[2,3,0,1] row_mask:0xf bank_mask:0xc")
        for r in range(lo, hi):
            a(f"v_add_f32_dpp v{r}, v{r}, v{r} row_shl:4 row_mask:0xf bank_mask:0x4")
        a(f"{lab}:")
    for i in range(AH):
        rd(i)
    a(f"""
    s_cmp_lg_u32 s{sPH}, 2
    s_cbranch_scc1 k2_nhs
    s_lshl_b32 s{sT}, s2, 9
    v_add_u32 v13, s{sT}, v13
    v_add_u32 v14, 2, v12
    v_and_b32 v15, 24, v12
    v_add_u32 v12, v12, v15
    v_and_b32 v15, 24, v14
    v_add_u32 v14, v14, v15
    v_lshl_add_u32 v{vG0}, v12, 17, v13
    v_lshl_add_u32 v{vG1}, v14, 17, v13
    v_min_u32 v14, 40, v14
    s_mov_b32 s{sT}, {8 << 17}
    v_lshl_add_u32 v14, v14, 17, v13
    s_cmp_eq_u32 s{sWV}, 7
    s_waitcnt lgkmcnt({AH})
    buffer_store_dwordx4 v[64:67], v{vG0}, {O}, s{sT} offen{OSC}
    s_cselect_b32 exec_hi, -1, 0
    buffer_store_dwordx4 v[68:71], v14, {O}, s{sT} offen{OSC}
    s_mov_b32 exec_hi, -1
k2_nhs:
""")
    g = 16
    for i in range(n):
        e = sq[i]
        if i + AH < n:
            rd(i + AH)
        a(f"s_waitcnt lgkmcnt({min(AH, n - 1 - i)})")
        d = v(e['d'], 4)
        a(f"v_mfma_f32_16x16x32_bf16 {d}, {v(WF + 4 * e['w'], 4)}, {v(BB + 4 * i, 4)}, {'0' if e['first'] else d}")
        if i == 15:
            qsum(OA, OA + 4, "k2_q0")
            for k in range(4):
                a(f"v_mul_f32 v{g + k}, s{sEX}, v{OA + k}")
        if i == 12:
            pad('tl')
        if i == 16:
            for k in range(4):
                a(f"v_exp_f32 v{g + k}, v{g + k}")
        if i == 17:
            a(f"v_cvt_pk_bf16_f32 v{OA}, v{OA}, v{OA + 1}")
            a(f"v_cvt_pk_bf16_f32 v{OA + 1}, v{OA + 2}, v{OA + 3}")
            for k in range(4):
                a(f"v_add_f32 v{g + k}, 1.0, v{g + k}")
        if i == 18:
            for k in range(4):
                a(f"v_rcp_f32 v{g + k}, v{g + k}")
    qsum(OA + 4, OA + 16, "k2_q1")
    a(f"s_mov_b64 exec, {sp(sMK)}")
    a(f"ds_write_b64 v{vOW}, {v(OA, 2)}")
    for o in range(1, 4):
        b = OA + 4 * o
        for k in range(2):
            a(f"v_pk_mul_f32 {v(b + 2 * k, 2)}, {v(b + 2 * k, 2)}, {v(g + 2 * k, 2)}")
        a(f"v_cvt_pk_bf16_f32 v{b}, v{b}, v{b + 1}")
        a(f"v_cvt_pk_bf16_f32 v{b + 1}, v{b + 2}, v{b + 3}")
        a(f"ds_write_b64 v{vOW}, {v(b, 2)} offset:{128 * o}")
    a(f"""
    s_mov_b64 exec, -1
    s_add_u32 s{sPH}, s{sPH}, 1
    s_cmp_eq_u32 s{sPH}, 1
    s_cbranch_scc1 k2_ph1
    s_cmp_eq_u32 s{sPH}, 2
    s_cbranch_scc1 k2_ph2
""")
    stamp('fin0')
    a(f"""
    s_waitcnt lgkmcnt(0)
    s_barrier
    ds_read_b128 v[64:67], v{vLA} offset:{OUTL - OUTH}
    ds_read_b128 v[68:71], v{vLA} offset:{OUTL - OUTH + 2 * OP}
    s_waitcnt lgkmcnt(1)
    buffer_store_dwordx4 v[64:67], v{vG0}, {O}, 0 offen{OSC}
    s_mov_b32 exec_hi, 0
    s_waitcnt lgkmcnt(0)
    buffer_store_dwordx4 v[68:71], v{vG1}, {O}, 0 offen{OSC}
    s_mov_b32 exec_hi, -1
""")
    a("k2_out:")
    if OPT['stamps']:
        stamp('gend')
        a(f"""
    s_waitcnt vmcnt(0) lgkmcnt(0)
    s_memrealtime s[20:21]
    s_lshl_b32 s{sT}, s2, 3
    s_add_u32 s{sT}, s{sT}, s{sWV}
    s_lshl_b32 s{sT}, s{sT}, 6
    s_add_u32 s{sT}, s{sT}, {ST_OFF}
    v_mov_b32 v4, s{sT}
    s_waitcnt lgkmcnt(0)
""")
        for i in range(7):
            a(f"v_mov_b32 v{8 + 2 * i}, s{88 + 2 * i}")
            a(f"v_mov_b32 v{9 + 2 * i}, s{89 + 2 * i}")
        a(f"v_mov_b32 v22, s20")
        a(f"v_mov_b32 v23, s21")
        a("s_mov_b64 exec, 1")
        for i in range(4):
            a(f"global_store_dwordx4 v4, {v(8 + 4 * i, 4)}, s[{sW}:{sW + 1}] offset:{16 * i}")
    a("""
k2_end:
    s_endpgm
""")
    return a.lines, LDS


def main():
    out = sys.argv[1] if len(sys.argv) > 1 else f"cdna_kernels/{NAME}.s"
    ref = open(f"cdna_kernels/{NAME}.s.ref").read().split('\n')
    hdr = [l for l in ref if l.startswith(';') and '@launch' not in l and 'Override' not in l and 'grid=ceil' not in l]
    k2, lds2 = gen_k2()
    k2, n2 = pad_hazards(k2, OPT.get('verbose', 0))
    kk = f"kernel={KN} " if OPT['lst'] else ""
    txt = hdr + [
        f"; @launch {kk}grid=(256,1,1) block=(512,1,1) lds={lds2}",
        '.amdgcn_target "amdgcn-amd-amdhsa--gfx950"', '.text']
    txt += [f".globl {KN}", ".p2align 8", f".type {KN},@function"] + k2
    txt += ['.section .rodata,"a"']
    txt += [".p2align 6", f".amdhsa_kernel {KN}",
            f"  .amdhsa_next_free_vgpr 256", "  .amdhsa_next_free_sgpr 102",
            f"  .amdhsa_accum_offset 256", "  .amdhsa_group_segment_fixed_size 0",
            "  .amdhsa_kernarg_size 96", "  .amdhsa_user_sgpr_count 2",
            "  .amdhsa_user_sgpr_kernarg_segment_ptr 1", "  .amdhsa_system_sgpr_workgroup_id_x 1",
            ".end_amdhsa_kernel"]
    open(out, 'w').write('\n'.join(txt) + '\n')
    print(f"wrote {out}: pads {n2}, lines {len(txt)}")


main()
```

```python
import sys
from asmlib import Asm, v, s, pad_hazards

NAME = "gather_scatter__tensor_product_equiv_equiformer__graph"
OPT = dict(hp=0, ah=12, tb=2, sk=1, mx=0, xpad=0, rm=0, th=4, dsl=0, psl=0, cpf=2, hop=0, hmid=1, sl0=0, sl1=0, w7d=1, wb=2, dr=1, notbl=0, nodma=0, b1=2, pp=1, dbg=0, gsc=1, nst=7, stamps=0, prio=1, osc=1, lst=0, tlim=400, skip=-1, wpos=0, nt=3, ze=0, pf=1)
for a in sys.argv[2:]:
    k, val = a.split('=')
    OPT[k] = int(val, 0)

assert 0 <= OPT['b1'] <= 9
N = 12500
NCH = 250
CH = 3200
GR_OFF = 0x1000
TBL_OFF = 0xD00000
ALT = 0x1000000
WS_SIZE = ALT + 0xD80000
ST_OFF = 0xE00000
SDWA = "dst_sel:DWORD dst_unused:UNUSED_PAD"
KN = NAME + "_kernel"


def wave_scan(a, r):
    for m in ("row_shr:1", "row_shr:2", "row_shr:4", "row_shr:8"):
        a(f"v_add_u32_dpp {v(r)}, {v(r)}, {v(r)} {m} row_mask:0xf bank_mask:0xf")
    a(f"v_add_u32_dpp {v(r)}, {v(r)}, {v(r)} row_bcast:15 row_mask:0xa bank_mask:0xf")
    a(f"v_add_u32_dpp {v(r)}, {v(r)}, {v(r)} row_bcast:31 row_mask:0xc bank_mask:0xf")


def gen_k2():
    a = Asm()
    LDS = 163840
    HIST, PH, BTAB, FLAG = 0, 1024, 2048, 3072
    RAWW = 3136
    WRAD = RAWW + 40960
    STG = WRAD + 1280
    CB = 131040
    TENT = STG + CH * 16
    ZI = 4096
    ROW = 1440
    vL16, vP2, TM, A, BT, M, WF, DA, DB, ACC = 0, 1, 2, 4, 8, 16, 24, 64, 96, 128
    LANE, TID = 2, 3
    G, ADDR, BIN, META, RANK = 64, 96, 104, 112, 120
    DST, SRC, EA, RH, BOFF, RNK, SCN, UP, PG = 128, 136, 144, 148, 160, 168, 176, 184, 192
    sC = 3
    sX, sW, sO = 4, 8, 12
    sWV, sRND, sMORE, sTOT = 16, 17, 18, 19
    sP0, sE0, sP1, sE1, sNX, sNT = 20, 21, 22, 23, 24, 25
    sLO, sHI, s512, sZI, sCB, sMSK = 26, 27, 28, 29, 30, 31
    sT = 32
    sRST, sFIRST = 36, 37
    sDBG = 38
    sM = 40
    pR, pE, pS, pD, pWR, pW0, pW1 = 72, 74, 76, 78, 80, 82, 84
    sEP, sTAG = 86, 87
    sAM, sTM, sCNT, sK = 20, 22, 24, 25
    X = f"s[{sX}:{sX + 3}]"
    W = f"s[{sW}:{sW + 3}]"
    O = f"s[{sO}:{sO + 3}]"
    OSC = {0: "", 1: " sc1", 2: " sc0 sc1", 3: " nt", 4: " sc1 nt", 5: " sc0 sc1 nt"}[OPT['osc']]
    NT = " nt" if OPT['nt'] & 1 else ""
    NT2 = " nt" if OPT['nt'] & 2 else ""

    SMAP = {1: dict(start=0, tbl=1, lastmeta=2, sorted=3, mainend=4, sbar=5, gend=6),
            2: dict(start=0, drained=1, bar2p=2, rest=3, bar3=4, stored=5, tbl=6),
            7: dict(start=0, bar2p=1, n7b=2, g0=3, e0=4, e3=5, rest=6),
            9: dict(start=0, issued=1, dst=2, bar2p=3, g0=4, rest=5, bar3=6),
            6: dict(start=0, issued=1, pre1=2, dst=3, bar2p=4, rest=5, bar3=6),
            3: dict(start=0, drained=1, dissued=2, wdone=3, lastmeta=4, bar2=5, sorted=6),
            8: dict(start=0, tbl=1, expd=2, drained=3, dissued=4, lastmeta=5, sorted=6),
            4: dict(start=0, mainend=1, hsb=2, sw1=3, sbar=4, fin0=5, gend=6),
            10: dict(start=0, sbar=1, rd12=2, nhs=3, mf9=4, mf21=5, fin0=6),
            5: dict(start=0, bar2=1, scan=2, p2=3, sorted=4, first=5, it1=6)}.get(OPT['stamps'], {})

    def stamp(nm):
        if nm in SMAP:
            i = SMAP[nm]
            a(f"s_memrealtime s[{88 + 2 * i}:{89 + 2 * i}]")

    PADS = ['w1', 'now', 'dp', 'b2', 'lop', 'o0', 'm0', 'o1', 'm1', 't0', 't1', 'fin', 'sw', 'hg', 'tl']
    if not OPT['hmid']:
        PADS = [p for p in PADS if p not in ('m0', 'm1')]
    NCHAIN = max(OPT['hop'], 1)
    CHAINS = [PADS[i::NCHAIN] for i in range(NCHAIN)]
    NEXT = {}
    for c in CHAINS:
        for i, p in enumerate(c):
            NEXT[p] = f"k2_pad_{c[i + 1]}" if i + 1 < len(c) else "k2_b3b"

    def pad(nm, free=False):
        if OPT['hop'] and nm in NEXT:
            a(f"k2_pad_{nm}:")
            a(f"{'s_branch' if free else 's_cbranch_execz'} {NEXT[nm]}")

    def m1(i):
        return f"s[{sM + 4 * i}:{sM + 4 * i + 1}]"

    def m2(i):
        return f"s[{sM + 4 * i + 2}:{sM + 4 * i + 3}]"

    def sp(i):
        return f"s[{i}:{i + 1}]"

    a(f"""
{KN}:
    s_cmp_ge_u32 s2, 256
    s_cbranch_scc1 k2_end
""")
    stamp('start')
    a(f"""
    s_load_dwordx16 s[72:87], s[0:1], 8
    s_load_dwordx2 s[{sW}:{sW + 1}], s[0:1], 88
    s_load_dwordx2 s[{sX}:{sX + 1}], s[0:1], 0
    s_load_dwordx2 s[{sO}:{sO + 1}], s[0:1], 72
    v_lshrrev_b32 v3, 6, v0
    s_mov_b32 s{sC}, s2
    v_readfirstlane_b32 s{sWV}, v3
    s_and_b32 s{sT}, s2, 7
    s_lshr_b32 s2, s2, 3
    s_lshl_b32 s{sT}, s{sT}, 5
    s_or_b32 s2, s2, s{sT}
    s_mov_b32 s{sX + 2}, {N * 512}
    s_mov_b32 s{sX + 3}, 0x00020000
    s_mov_b32 s{sW + 2}, {WS_SIZE}
    s_mov_b32 s{sW + 3}, 0x00020000
    s_mov_b32 s{sO + 2}, {N * 512}
    s_mov_b32 s{sO + 3}, 0x00020000
    s_mov_b32 s{sRND}, 0
    s_mov_b32 s{sRST}, 0
""")
    if OPT['cpf'] == 2:
        a(f"""
    s_getpc_b64 s[{sT}:{sT + 1}]
k2_pc:
    v_lshlrev_b32 v252, 5, v0
    v_min_u32 v252, k2_end-k2_pc, v252
    v_add_co_u32 v252, vcc, s{sT}, v252
    v_mov_b32 v253, s{sT + 1}
    v_addc_co_u32 v253, vcc, 0, v253, vcc
    global_load_dword v255, v[252:253], off
""")
    if OPT['skip'] >= 0:
        a(f"""
    s_cmp_eq_u32 s{sC}, {OPT['skip']}
    s_cselect_b32 s{sC}, 255, s{sC}
""")
    def wdma():
        a(f"""
    s_lshl_b32 s{sT + 2}, s{sWV}, 11
    s_add_u32 m0, s{sT + 2}, {RAWW}
    v_add_u32 v4, s{sT + 2}, v9
    s_mul_i32 s{sT + 2}, s{sWV}, 3072
    global_load_lds_dwordx4 v4, {sp(pW0)}
    global_load_lds_dwordx4 v4, {sp(pW0)} offset:1024
    s_add_u32 m0, s{sT + 2}, {RAWW + 16384}
    v_add_u32 v5, s{sT + 2}, v9
    global_load_lds_dwordx4 v5, {sp(pW1)}
    global_load_lds_dwordx4 v5, {sp(pW1)} offset:1024
    global_load_lds_dwordx4 v5, {sp(pW1)} offset:2048
""")
    el = [f"global_load_dwordx4 {v(DST, 4)}, v4, {sp(pD)}{NT}",
          f"global_load_dwordx4 {v(DST + 4, 4)}, v7, {sp(pD)}{NT}",
          f"global_load_dwordx4 {v(SRC, 4)}, v4, {sp(pS)}{NT}",
          f"global_load_dwordx2 {v(EA, 2)}, v5, {sp(pE)}{NT}",
          f"global_load_dwordx4 {v(RH, 4)}, v6, {sp(pR)}{NT2}",
          f"global_load_dwordx2 {v(RH + 4, 2)}, v6, {sp(pR)} offset:16{NT2}",
          f"global_load_dwordx4 {v(SRC + 4, 4)}, v7, {sp(pS)}{NT}",
          f"global_load_dwordx2 {v(EA + 2, 2)}, v5, {sp(pE)} offset:{CH}{NT}",
          f"global_load_dwordx4 {v(RH + 6, 4)}, v8, {sp(pR)}{NT2}",
          f"global_load_dwordx2 {v(RH + 10, 2)}, v8, {sp(pR)} offset:16{NT2}"]
    a(f"""
k2_round:
    v_mbcnt_lo_u32_b32 v{LANE}, -1, 0
    v_mbcnt_hi_u32_b32 v{LANE}, -1, v{LANE}
    s_lshl_b32 s{sT}, s{sWV}, 6
    v_add_u32 v{TID}, s{sT}, v{LANE}
    v_mov_b32 v12, 0
    v_lshlrev_b32 v14, 2, v{TID}
    ds_write_b32 v14, v12 offset:{HIST}
    s_mul_i32 s{sT}, s{sC}, {CH * 4}
    s_mul_i32 s{sT + 1}, s{sC}, {CH * 2}
    s_mul_i32 s{sT + 2}, s{sC}, {CH * 6}
    v_lshl_add_u32 v4, v{TID}, 4, s{sT}
    v_lshl_add_u32 v5, v{TID}, 3, s{sT + 1}
    v_mul_u32_u24 v6, 24, v{TID}
    v_add_u32 v6, s{sT + 2}, v6
    v_add_u32 v7, {CH * 2}, v4
    v_add_u32 v8, {CH * 3}, v6
    v_cmp_gt_u32 vcc, {CH // 8}, v{TID}
    v_lshlrev_b32 v9, 4, v{LANE}
    s_mov_b64 {sp(sAM)}, vcc
    s_or_b32 s{sFIRST}, s{sRST}, s{sRND}
    s_cmp_ge_u32 s{sC}, {NCH}
    s_cselect_b64 vcc, 0, vcc
    s_waitcnt lgkmcnt(0)
    s_cbranch_vccz k2_noedge
    s_mov_b64 exec, vcc
""")
    for i in range(10):
        if i == OPT['b1']:
            a("s_barrier")
        a(el[i])
    a(f"""
    s_mov_b64 exec, -1
    s_branch k2_init
k2_noedge:
    s_cmp_lg_u32 s{sWV}, 7
    s_cbranch_scc1 k2_nb1
    s_cmp_lg_u32 s{sFIRST}, 0
    s_cbranch_scc1 k2_noep
    s_load_dword s{sEP}, s[{sW}:{sW + 1}], 0
k2_noep:
    v_min_u32 v99, {39 * 16}, v9
    s_and_b32 s{sT}, s2, 31
    s_mul_i32 s{sT + 1}, s{sT}, 768
    s_lshl_b32 s{sT}, s{sT}, 9
    v_min_u32 v100, 3, v{LANE}
    v_min_u32 v101, 5, v{LANE}
    v_lshl_add_u32 v100, v100, 7, s{sT}
    v_lshl_add_u32 v101, v101, 7, s{sT + 1}
    global_load_dwordx4 v[64:67], v99, {sp(pWR)}
    global_load_dword v100, v100, {sp(pW0)}
    global_load_dword v101, v101, {sp(pW1)}
""")
    if OPT['cpf'] == 1:
        a(f"""
    s_getpc_b64 s[{sT}:{sT + 1}]
k2_pc:
    v_lshlrev_b32 v132, 2, v9
    v_mov_b32 v133, s{sT + 1}
""")
        for k in range(4):
            a(f"""
    v_min_u32 v134, k2_end-k2_pc, v132
    v_add_co_u32 v134, vcc, s{sT}, v134
    v_addc_co_u32 v135, vcc, 0, v133, vcc
    v_add_u32 v132, 4096, v132
    global_load_dword v{128 + k}, v[134:135], off
""")
    a(f"""
k2_nb1:
    s_barrier
k2_init:
""")
    stamp('issued')
    if OPT['dbg'] == 3:
        for k, n in enumerate((8, 7, 6, 4, 3, 0)):
            a(f"s_waitcnt vmcnt({n})")
            a(f"s_memrealtime s[{90 + 2 * k}:{91 + 2 * k}]")
        a("s_branch k2_out")
    a(f"""
    v_mov_b32 v4, -1
    v_mov_b32 v5, -1
    v_mov_b32 v6, -1
    v_mov_b32 v7, -1
    v_mov_b32 v13, 0
    v_lshlrev_b32 v8, 2, v14
    v_add_u32 v8, {CB - 24576}, v8
    ds_write_b128 v8, v[4:7]
    ds_write_b128 v8, v[4:7] offset:8192
    ds_write_b128 v8, v[4:7] offset:16384
    s_lshl_b32 s{sT}, s{sWV}, 12
    s_add_u32 s{sT}, s{sT}, {CB}
    v_mov_b32 v16, 16
    v_mov_b32 v17, 16
    v_mov_b32 v18, 16
    v_mov_b32 v19, 16
    v_add_u32 v8, s{sT}, v9
    ds_write_b128 v8, v[16:19]
    ds_write_b128 v8, v[16:19] offset:1024
    v_mov_b32 v8, {CB + ZI * 8}
    s_mov_b64 exec, 1
    ds_write_b64 v12, v[12:13] offset:{FLAG}
    ds_write_b64 v8, v[12:13]
    ds_write_b32 v8, v12 offset:8
    s_mov_b64 exec, -1
    v_lshl_add_u32 v17, v{LANE}, 5, s{sT}
    v_lshl_add_u32 v18, v{LANE}, 2, s{sT}
    v_lshl_add_u32 v19, v{LANE}, 3, s{sT}
    s_lshl_b32 s{sT}, s{sWV}, 9
    v_add_u32 v{META}, s{sT}, v{LANE}
    s_lshl_b32 s{sT}, s{sWV}, 5
    v_add_u32 v16, s{sT}, v{LANE}
    s_mov_b32 s{sTM}, -1
    s_mov_b32 s{sTM + 1}, 0
    s_mov_b32 s{sT}, {TENT}
    v_lshl_add_u32 v10, v16, 2, s{sT}
    v_mul_u32_u24 v16, {CH * 16}, v16
    v_add_u32 v16, s{sRND}, v16
    s_cmp_lg_u32 s{sRST}, 0
    s_cselect_b32 s{sMORE}, {ALT}, 0
    s_cselect_b32 s{sCNT}, {OPT['tlim'] - 16}, 0
    v_mov_b32 v20, 0
    v_and_b32 v{vL16}, 15, v{LANE}
    v_lshlrev_b32 v{vL16}, 4, v{vL16}
    {f"v_lshrrev_b32 v{vP2}, 2, v{LANE}" if not OPT['sk'] else f"v_lshrrev_b32 v{vP2}, 4, v{LANE}"}
    {f"v_lshlrev_b32 v{vP2}, 3, v{vP2}" if not OPT['sk'] else f"v_and_b32 v15, 12, v{LANE}"}
    {f"v_lshl_add_u32 v{vP2}, v15, 1, v{vP2}" if OPT['sk'] else ""}
    {f"v_lshlrev_b32 v{vP2}, 2, v{vP2}" if OPT['sk'] else ""}
    v_lshl_or_b32 v{vP2}, v{LANE}, 30, v{vP2}
    v_and_b32 v15, 3, v{LANE}
    v_lshlrev_b32 v11, 3, v15
    v_lshlrev_b32 v5, 11, v15
    v_or_b32 v5, 0x2000, v5
    v_cmp_eq_u32 vcc, 3, v15
    v_mov_b32 v15, 0x7f
    s_mov_b32 s{sLO}, 0x05040100
    v_cndmask_b32 v15, 0, v15, vcc
    s_mov_b32 s{sHI}, 0x07060302
    s_movk_i32 s{s512}, 512
    s_movk_i32 s{sZI}, {ZI}
    s_mov_b32 s{sCB}, {CB}
    s_mov_b32 s{sMSK}, 0xffffc000
    s_lshr_b32 s{sK}, s2, 2
    s_lshl_b32 s{sK}, s{sK}, 12
    s_add_u32 s{sK}, s{sK}, {TBL_OFF}
    v_bfe_u32 v8, v{LANE}, 2, 2
    v_lshl_add_u32 v11, v8, 7, v11
    v_lshrrev_b32 v8, 4, v{LANE}
    v_lshl_add_u32 v11, v8, 10, v11
    v_lshlrev_b32 v13, 5, v8
    s_and_b32 s{sT}, s{sWV}, 3
    s_lshl_b32 s{sT}, s{sT}, 5
    v_add_u32 v11, s{sT}, v11
    v_mov_b32 v14, 4
    v_mov_b32 v4, 16
""")
    for j in range(1, 8):
        a(f"v_add_u32 v{META + j}, {64 * j}, v{META}")
    stamp('pre1')
    a(f"""
    s_cmp_eq_u32 s{sWV}, 7
    s_cbranch_scc1 k2_w7a
    s_cmp_ge_u32 s{sC}, {NCH}
    s_cbranch_scc1 k2_b3
    s_mov_b64 exec, {sp(sAM)}
    s_movk_i32 s{sT}, 12288
""")
    for i in range(8):
        if i % 4 == 0:
            a(f"s_waitcnt vmcnt({9 - i // 4})")
            if i == 0:
                stamp('dst')
        a(f"v_lshlrev_b32_sdwa v{BOFF + i}, 2, v{DST + i} {SDWA} src0_sel:DWORD src1_sel:BYTE_0")
        a(f"ds_add_rtn_u32 v{RNK + i}, v{BOFF + i}, v4 offset:{PH}")
    for i in range(8):
        a(f"v_cmp_le_u32 {m1(i)}, s{sT}, v{DST + i}")
        a(f"v_and_b32 v{DST + i}, 0x3f00, v{DST + i}")
    for i in range(8):
        a(f"v_cndmask_b32 v6, 0, v5, {m1(i)}")
        a(f"v_lshl_or_b32 v{DST + i}, v{DST + i}, 2, v6")
    a(f"""
    s_mov_b64 exec, -1
    s_branch k2_b2
k2_w7a:
    s_waitcnt lgkmcnt(0)
    s_mul_i32 s{sTAG}, s{sEP}, 0x9E3779B1
    s_add_u32 s{sTAG}, s{sTAG}, 0x7F4A7C15
    v_mov_b32 v76, 0
    v_mov_b32 v77, 0
    v_mov_b32 v78, 0
    v_mov_b32 v79, s{sTAG}
    s_mov_b32 s{sT}, 0xffff0000
    ds_write_b32 v12, v79 offset:{FLAG + 16}
    s_waitcnt vmcnt({6 if OPT['cpf'] == 1 else 2})
""")
    for k in range(4):
        a(f"v_lshlrev_b32 v{68 + 2 * k}, 16, v{64 + k}")
        a(f"v_and_b32 v{69 + 2 * k}, s{sT}, v{64 + k}")
    a(f"""
    v_lshlrev_b32 v99, 1, v99
    ds_write_b128 v99, v[68:71] offset:{WRAD}
    ds_write_b128 v99, v[72:75] offset:{WRAD + 16}
    v_lshlrev_b32 v4, 12, v{LANE}
    s_lshl_b32 s{sT}, s{sC}, 4
    s_add_u32 s{sT}, s{sT}, {TBL_OFF}
    s_cmp_ge_u32 s{sC}, {NCH}
    s_cbranch_scc1 k2_pub
k2_b2:
    s_waitcnt lgkmcnt(0)
    s_barrier
""")
    stamp('bar2p')
    H, B = SCN, SCN + 4
    a(f"""
    ds_read_b128 {v(H, 4)}, v9 offset:{PH}
    ds_read_b32 v8, v12 offset:{FLAG + 16}
    s_waitcnt lgkmcnt(1)
    v_add_u32 v{B + 1}, v{H}, v{H + 1}
    v_add_u32 v{B + 2}, v{B + 1}, v{H + 2}
    v_add_u32 v6, v{B + 2}, v{H + 3}
    v_mov_b32 v{B + 3}, v6
""")
    wave_scan(a, 6)
    a(f"""
    v_sub_u32 v{B}, v6, v{B + 3}
    v_add_u32 v{B + 3}, v{B}, v{B + 2}
    v_add_u32 v{B + 2}, v{B}, v{B + 1}
    v_add_u32 v{B + 1}, v{B}, v{H}
    ds_write_b128 v9, {v(B, 4)} offset:{BTAB}
    s_cmp_lg_u32 s{sWV}, 7
    s_cbranch_scc1 k2_n7b
""")
    a(f"""
    v_lshl_or_b32 v76, v{B + 1}, 16, v{B}
    v_lshl_or_b32 v77, v{B + 3}, 16, v{B + 2}
    v_mov_b32 v78, v6
    s_waitcnt lgkmcnt(1)
k2_pub:
    s_cmp_lg_u32 s{sFIRST}, 0
    s_cbranch_scc1 k2_hpub
    buffer_store_dwordx4 v[76:79], v4, {W}, s{sT} offen sc1
    v_mov_b32 v80, 0
    v_mov_b32 v81, 0
    v_mov_b32 v82, 0
    v_mov_b32 v83, 0
k2_w7p:
""")
    if OPT['w7d']:
        a(f"v_mov_b32 v96, v9")
        for g in range(10):
            if g == 4:
                a(f"v_mov_b32 v96, v9")
            a(f"s_mov_b32 m0, {RAWW + 4096 * g}")
            a("s_nop 0")
            for k in range(4):
                a(f"global_load_lds_dwordx4 v96, {sp(pW0 if g < 4 else pW1)}" + (f" offset:{1024 * k}" if k else ""))
            if g not in (3, 9):
                a(f"v_add_u32 v96, 4096, v96")
    a(f"""
    s_bitcmp1_b32 s2, 1
    s_cselect_b64 s[0:1], -1, 0
    s_lshl_b32 s{sT + 1}, s2, 4
    s_mov_b32 s{sT}, 0x000f000f
    v_add_u32 v7, {TENT - CB - 7 * 4096}, v18
    s_waitcnt lgkmcnt(0)
    s_barrier
""")
    for k in range(4):
        a(f"v_and_b32 v4, 2, v{80 + k}")
        a(f"v_cmp_eq_u32 {m1(k)}, 0, v4")
    if OPT['sl0']:
        a(f"s_sleep {OPT['sl0']}")
    if OPT['sl1']:
        a("s_branch k2_tp1")
    a("k2_tpoll:")
    if OPT['sl1']:
        a(f"s_sleep {OPT['sl1']}")
        a("k2_tp1:")
    for k in range(4):
        a(f"buffer_load_dwordx4 {v(64 + 4 * k, 4)}, v9, {W}, s{sK} offen offset:{1024 * k} sc1")
    for k in range(4):
        g = 64 + 4 * k
        a(f"""
    s_waitcnt vmcnt({3 - k})
    v_or3_b32 v4, v{g}, v{g + 1}, v{g + 2}
    v_xor_b32 v5, s{sTAG}, v{g + 3}
    v_and_or_b32 v4, v4, s{sT}, v5
    v_cndmask_b32 v{g}, v{g}, v{g + 1}, s[0:1]
    v_cmp_eq_u32 vcc, 0, v4
    v_cndmask_b32 v{g + 1}, v{g + 1}, v{g + 2}, s[0:1]
    s_and_b64 vcc, vcc, {m1(k)}
    v_alignbit_b32 v{g}, v{g + 1}, v{g}, s{sT + 1}
    s_andn2_b64 {m1(k)}, {m1(k)}, vcc
    v_or_b32 v{g}, 2, v{g}
    v_cndmask_b32 v{80 + k}, v{80 + k}, v{g}, vcc
""")
    a(f"""
    s_or_b64 {m2(0)}, {m1(0)}, {m1(1)}
    s_or_b64 {m2(1)}, {m1(2)}, {m1(3)}
    s_or_b64 vcc, {m2(0)}, {m2(1)}
    s_cbranch_scc0 k2_tok
    s_add_u32 s{sCNT}, s{sCNT}, 1
    s_cmp_lt_u32 s{sCNT}, {OPT['tlim']}
    s_cbranch_scc1 k2_tpoll
""")
    for k in range(4):
        a(f"""
    s_ff1_i32_b64 s{sT + 1}, {m1(k)}
    s_add_u32 s{sT + 2}, s{sT + 1}, {64 * k + 1}
    s_cmp_lt_i32 s{sT + 1}, 0
    s_cselect_b32 s{sT}, s{sT}, s{sT + 2}
""")
    a(f"""
    v_mov_b32 v4, s{sT}
    ds_write_b32 v12, v4 offset:{FLAG + 4}
k2_tok:
    ds_write2st64_b32 v7, v80, v81 offset0:0 offset1:1
    ds_write2st64_b32 v7, v82, v83 offset0:2 offset1:3
""")
    if OPT['pf'] == 5:
        a(f"""
    s_mov_b32 exec_hi, 0x3ffff
    s_mul_i32 s{sT + 2}, s{sC}, 25600
    v_lshlrev_b32 v4, 3, v9
""")
        for k in range(4):
            a(f"buffer_load_dword v{RANK + k}, v4, {X}, s{sT + 2} offen")
            if k < 3:
                a(f"s_add_u32 s{sT + 2}, s{sT + 2}, 6400")
        a("s_mov_b64 exec, -1")
    a(f"""
    s_branch k2_b3b
k2_n7b:
    s_mov_b64 exec, {sp(sAM)}
""")
    stamp('n7b')
    for i in range(8):
        a(f"ds_read_b32 v{BOFF + i}, v{BOFF + i} offset:{BTAB}")
    a(f"s_mov_b32 s{sT}, 0xffff0000")
    a(f"s_mov_b32 s{sT + 1}, 5497558")
    a(f"s_waitcnt lgkmcnt(9)")
    a(f"v_readfirstlane_b32 s{sTAG}, v8")
    for i in range(8):
        a(f"v_mov_b32 v{PG + 4 * i + 3}, v8")

    def unpack(dst, reg, hi):
        if hi:
            a(f"v_and_b32 v{dst}, s{sT}, v{reg}")
        else:
            a(f"v_lshlrev_b32 v{dst}, 16, v{reg}")
    for i in range(8):
        if i == 0:
            a(f"s_waitcnt vmcnt(4)")
            stamp('g0')
        if i == 4:
            a(f"s_waitcnt vmcnt(0)")
            stamp('rest')
        unpack(UP, EA + i // 2, i & 1)
        for j in range(3):
            hw = 3 * i + j
            unpack(UP + 1 + j, RH + hw // 2, hw & 1)
        for j in range(3):
            a(f"v_mul_f32 v{UP + 1 + j}, v{UP}, v{UP + 1 + j}")
        a(f"v_cvt_pk_bf16_f32 v{PG + 4 * i}, v{UP}, v{UP + 1}")
        a(f"v_cvt_pk_bf16_f32 v{PG + 4 * i + 1}, v{UP + 2}, v{UP + 3}")
        a(f"v_mul_hi_u32_u24 v6, s{sT + 1}, v{SRC + i}")
        a(f"v_lshl_or_b32 v6, v6, 6, v{DST + i}")
        a(f"v_lshl_or_b32 v{PG + 4 * i + 2}, v{SRC + i}, 16, v6")
        if i == 0:
            a("s_waitcnt lgkmcnt(0)")
        a(f"v_add_u32 v{BOFF + i}, v{BOFF + i}, v{RNK + i}")
        a(f"ds_write_b128 v{BOFF + i}, {v(PG + 4 * i, 4)} offset:{STG}")
        stamp(f'e{i}')
    def wbuild():
        T, U = ACC, ACC + 80
        a(f"s_mov_b32 s{sT}, 0xffff0000")

        def rd(f):
            a(f"ds_read_b64_tr_b16 {v(WF + 4 * f, 2)}, v11 offset:{RAWW + f * 4096}")
            a(f"ds_read_b64_tr_b16 {v(WF + 4 * f + 2, 2)}, v11 offset:{RAWW + f * 4096 + 512}")
            a(f"ds_read_b128 {v(T + 8 * f, 4)}, v13 offset:{WRAD + f * 128}")
            a(f"ds_read_b128 {v(T + 8 * f + 4, 4)}, v13 offset:{WRAD + f * 128 + 16}")
        for f in range(3):
            rd(f)
        for f in range(10):
            a(f"s_waitcnt lgkmcnt({4 * min(2, 9 - f)})")
            if f + 3 < 10:
                rd(f + 3)
            if f == 5:
                pad('w1')
            for k in range(4):
                a(f"v_lshlrev_b32 v{U + 2 * k}, 16, v{WF + 4 * f + k}")
                a(f"v_and_b32 v{U + 2 * k + 1}, s{sT}, v{WF + 4 * f + k}")
            for k in range(4):
                a(f"v_pk_mul_f32 {v(U + 2 * k, 2)}, {v(U + 2 * k, 2)}, {v(T + 8 * f + 2 * k, 2)}")
            for k in range(4):
                a(f"v_cvt_pk_bf16_f32 v{WF + 4 * f + k}, v{U + 2 * k}, v{U + 2 * k + 1}")
    def xpf(d):
        a(f"""
    s_mov_b64 exec, 0x1ffffff
    s_lshl_b32 s{sT + 3}, s{sC}, 3
    s_add_u32 s{sT + 3}, s{sT + 3}, s{sWV}
    s_mul_i32 s{sT + 3}, s{sT + 3}, 3200
    v_lshlrev_b32 v{d}, 3, v9
    buffer_load_dword v{d}, v{d}, {X}, s{sT + 3} offen
    s_mov_b64 exec, -1
""")
    GSC = {0: "", 1: " sc1", 2: " sc0 sc1", 3: " nt"}[OPT['gsc']]
    a(f"""
k2_b3:
    s_mul_i32 s{sT}, s{sWV}, 7168
    s_mov_b64 exec, -1
    v_add_u32 v8, s{sT}, v9
    s_mul_i32 s{sT}, s{sC}, {CH * 16}
    s_add_u32 s{sT}, s{sT}, {GR_OFF}
    s_add_u32 s{sT}, s{sT}, s{sMORE}
    s_add_u32 s{sT + 1}, s{sT}, 4096
    s_cmp_ge_u32 s{sC}, {NCH}
    s_waitcnt lgkmcnt(0)
    s_barrier
""")
    stamp('bar3')
    a("s_cbranch_scc1 k2_np")
    for j in range(8):
        a(f"ds_read_b128 {v(PG + 4 * j, 4)}, v8 offset:{STG + 1024 * j}")
    a(f"s_cmp_lg_u32 s{sRST}, 0")
    a(f"s_cbranch_scc1 k2_hst")
    a(f"s_cmp_lg_u32 s{sWV}, 6")
    for j in range(8):
        if j == 7:
            a("s_cbranch_scc1 k2_hop")
        a(f"s_waitcnt lgkmcnt({7 - j})")
        a(f"buffer_store_dwordx4 {v(PG + 4 * j, 4)}, v8, {W}, s{sT + j // 4} offen offset:{1024 * (j % 4)}{GSC}")
    a("k2_hop:")
    if OPT['hop']:
        a("s_mov_b64 exec, 0")
        for i, c in enumerate(CHAINS):
            a(f"s_cmp_eq_u32 s{sWV}, {i}")
            a(f"s_cbranch_scc1 k2_pad_{c[0]}")
    a("k2_b3b:")
    stamp('stored')
    if OPT['pf'] == 3:
        xpf(RANK)
    a(f"""
    s_waitcnt lgkmcnt(0)
    s_barrier
    s_mov_b64 exec, {sp(sTM)}
    ds_read_b32 v20, v10
    s_mov_b64 exec, -1
    ds_read_b32 v21, v12 offset:{FLAG + 4}
""")
    stamp('tbl')
    if OPT['pf'] == 2:
        xpf(RANK)
    if not OPT['w7d']:
        wdma()
    if OPT['wb'] == 2:
        a(f"""
    s_cmp_lg_u32 s{sRND}, 0
    s_cbranch_scc1 k2_now
""")
        wbuild()
        a("k2_now:")
        pad('now')
    Q = G
    a(f"""
    s_waitcnt lgkmcnt(0)
    v_cmp_ne_u32 vcc, 0, v21
    v_and_b32 v4, 1, v20
    v_and_b32 v20, -4, v20
    s_cbranch_vccnz k2_p1h
    v_lshl_add_u32 v16, v4, 24, v16
    v_sub_u32_sdwa v4, v20, v20 {SDWA} src0_sel:WORD_1 src1_sel:WORD_0
    v_mov_b32 v5, v4
    v_add_u32_sdwa v6, v16, v20 {SDWA} src0_sel:DWORD src1_sel:WORD_0
    s_movk_i32 s{sT + 1}, 8192
""")
    for m in ("row_shr:1", "row_shr:2", "row_shr:4", "row_shr:8"):
        a(f"v_add_u32_dpp v5, v5, v5 {m} row_mask:0xf bank_mask:0xf")
    a(f"""
    v_add_u32_dpp v5, v5, v5 row_bcast:15 row_mask:0xa bank_mask:0xf
    s_lshl_b32 s{sT}, s{sWV}, 12
    s_add_u32 s{sT}, s{sT}, {CB}
    v_sub_u32 v4, v5, v4
    v_readlane_b32 s{sTOT}, v5, 31
    v_sub_u32 v6, v6, v4
    v_subrev_u32 v4, s{sRND}, v4
    v_subrev_u32 v5, s{sRND}, v5
    v_med3_i32 v4, v4, 0, s{sT + 1}
    v_med3_i32 v5, v5, 0, s{sT + 1}
    v_lshrrev_b32 v4, 2, v4
    v_lshrrev_b32 v5, 2, v5
    v_add_u32 v4, s{sT}, v4
    v_add_u32 v5, s{sT}, v5
    s_mov_b64 exec, {sp(sTM)}
    ds_add_u32 v4, v6
    ds_sub_u32 v5, v6
    s_mov_b64 exec, -1
    ds_read_b128 {v(Q, 4)}, v17
    ds_read_b128 {v(Q + 4, 4)}, v17 offset:16
    s_sub_u32 s{sTOT}, s{sTOT}, s{sRND}
    s_cmp_le_i32 s{sTOT}, 8192
    s_cbranch_scc1 k2_nomore
    ds_write_b32 v12, v14 offset:{FLAG}
k2_nomore:
""")
    for i in range(8):
        a(f"v_cmp_gt_i32 {m1(i)}, s{sTOT}, v9")
        if i < 7:
            a(f"s_sub_u32 s{sTOT}, s{sTOT}, 1024")
    a("s_waitcnt lgkmcnt(0)")
    for j in range(1, 8):
        a(f"v_add_u32 v{Q + j}, v{Q + j}, v{Q + j - 1}")
    a(f"v_mov_b32 v4, v{Q + 7}")
    wave_scan(a, Q + 7)
    a(f"v_sub_u32 v4, v{Q + 7}, v4")
    for j in range(7):
        a(f"v_add_u32 v{Q + j}, v{Q + j}, v4")
    a(f"""
    ds_write_b128 v17, {v(Q, 4)}
    ds_write_b128 v17, {v(Q + 4, 4)} offset:16
""")
    for j in range(4):
        a(f"ds_read2st64_b32 {v(ADDR + 2 * j, 2)}, v18 offset0:{2 * j} offset1:{2 * j + 1}")
    for i in range(8):
        a(f"s_mov_b64 {m2(i)}, {m1(i)}")
    a(f"""
    s_movk_i32 s{sK}, {GR_OFF - 16}
    s_mov_b32 s{sT + 3}, 0xc000003f
    s_mov_b32 s{sCNT}, 0
""")
    if OPT['pf'] == 9:
        a(f"""
    s_mov_b64 s[0:1], 0x1ffffff
    s_lshl_b32 s{sT + 2}, s{sC}, 3
    s_add_u32 s{sT + 2}, s{sT + 2}, s{sWV}
    s_mul_i32 s{sT + 2}, s{sT + 2}, 3200
    v_lshlrev_b32 v23, 3, v9
""")

    def dload(i):
        a(f"s_mov_b64 exec, {m2(i)}")
        a(f"buffer_load_dwordx4 {v(G + 4 * i, 4)}, v{ADDR + i}, {W}, s{sK} offen sc1")
    stamp('expd')
    if OPT['dr'] or (OPT['wb'] == 0 and not OPT['w7d']):
        a("s_waitcnt vmcnt(0)")
    if (OPT['wb'] == 0 and not OPT['w7d']) or OPT['dr'] == 2:
        a("s_barrier")
    if OPT['dsl']:
        a(f"s_sleep {OPT['dsl']}")
    stamp('drained')
    for i in range(8):
        if i % 2 == 0:
            a(f"s_waitcnt lgkmcnt({3 - i // 2})")
        dload(i)
    stamp('dissued')

    if OPT['wb'] == 0:
        a(f"""
    s_cmp_lg_u32 s{sRND}, 0
    s_cbranch_scc1 k2_dchk
    s_mov_b64 exec, -1
""")
        wbuild()
    stamp('wdone')
    a("s_branch k2_dchk")
    pad('dp', True)
    a("k2_dpoll:")
    if OPT['psl']:
        a(f"s_sleep {OPT['psl']}")
    for i in range(8):
        dload(i)
    a("k2_dchk:")
    PFX = 0
    if OPT['pf'] == 9:
        PFX = 1
        a(f"""
    s_mov_b64 exec, s[0:1]
    buffer_load_dword v22, v23, {X}, s{sT + 2} offen
    s_mov_b64 s[0:1], 0
""")
    for i in range(8):
        g = G + 4 * i
        a(f"""
    s_mov_b64 exec, {m2(i)}
    s_waitcnt vmcnt({7 - i + PFX})
    v_xor_b32 v4, s{sTAG}, v{g + 3}
    v_and_or_b32 v4, v{g + 2}, s{sT + 3}, v4
    v_cmpx_eq_u32 vcc, 0, v4
    v_bfe_u32 v{BIN + i}, v{g + 2}, 4, 10
    s_andn2_b64 {m2(i)}, {m2(i)}, vcc
    ds_add_rtn_u32 v{RANK + i}, v{BIN + i}, v14 offset:{HIST}
    v_and_or_b32 v{META + i}, v{g + 2}, s{sMSK}, v{META + i}
    ds_write_b64 v19, {v(g, 2)} offset:{512 * i}
""")
        if i == 1:
            a(f"s_or_b64 {sp(sAM)}, {m2(0)}, {m2(1)}")
        if i > 1:
            a(f"s_or_b64 {sp(sAM)}, {sp(sAM)}, {m2(i)}")
    a(f"""
    s_cbranch_scc0 k2_p1e
    s_add_u32 s{sCNT}, s{sCNT}, 1
    s_cmp_lt_u32 s{sCNT}, 0x20000
    s_cbranch_scc1 k2_dpoll
k2_p1e:
""")
    stamp('lastmeta')
    if OPT['pf'] == 1:
        xpf(ADDR)
    a(f"""
    s_mov_b64 exec, -1
    s_lshl_b32 s{sT}, s{sWV}, 3
    s_add_u32 s{sT + 1}, s{sT}, 4
    s_add_u32 s{sT + 2}, s{sT}, 7
    {f"s_add_u32 s{sT + 3}, s{sT}, 3" if OPT['sk'] else ""}
    s_waitcnt lgkmcnt(0)
    s_barrier
""")
    stamp('bar2')
    pad('b2')
    a(f"""
    ds_read_b128 v[4:7], v9 offset:{HIST}
    ds_read_b32 v20, v12 offset:{FLAG}
""")
    if OPT['pf'] == 6:
        xpf(ADDR)
    a(f"""
    s_waitcnt lgkmcnt(1)
    v_add_u32 v5, v4, v5
    v_add_u32 v6, v5, v6
    v_add_u32 v7, v6, v7
    v_add_u32_dpp v10, v7, v7 quad_perm:[1,0,3,2] row_mask:0xf bank_mask:0xf
    v_add_u32_dpp v10, v10, v10 quad_perm:[2,3,0,1] row_mask:0xf bank_mask:0xf
    v_sub_u32 v10, 0, v10
    v_and_b32 v22, v15, v10
    v_add_u32 v7, v7, v22
    {"v_add_u32 v10, 1, v15" if OPT['xpad'] else ""}
    {"v_and_b32 v10, 0x80, v10" if OPT['xpad'] else ""}
    {"v_add_u32 v7, v7, v10" if OPT['xpad'] else ""}
    v_mov_b32 v10, v7
""")
    wave_scan(a, 10)
    a(f"""
    v_readlane_b32 s{sTOT}, v10, 63
    {"v_sub_u32 v22, v10, v22" if OPT['sk'] else f"v_readlane_b32 s{sE1}, v10, s{sT + 2}"}
    v_sub_u32 v10, v10, v7
    s_sub_u32 s{sTOT}, {CB}, s{sTOT}
    v_add_u32 v10, s{sTOT}, v10
    v_add_u32 v7, v10, v6
    v_add_u32 v6, v10, v5
    v_add_u32 v5, v10, v4
    v_mov_b32 v4, v10
    ds_write_b128 v9, v[4:7] offset:{BTAB}
    {f"v_add_u32 v22, s{sTOT}, v22" if OPT['sk'] else f"s_add_u32 s{sE1}, s{sE1}, s{sTOT}"}
    v_readlane_b32 s{sP0}, v10, s{sT}
    v_readlane_b32 s{sP1}, v10, s{sT + 1}
    {f"v_readlane_b32 s{sE0}, v22, s{sT + 3}" if OPT['sk'] else ""}
    {f"v_readlane_b32 s{sE1}, v22, s{sT + 2}" if OPT['sk'] else ""}
    s_waitcnt lgkmcnt(1)
    v_readfirstlane_b32 s{sMORE}, v20
""")
    stamp('scan')
    for i in range(8):
        a(f"ds_read_b32 v{BIN + i}, v{BIN + i} offset:{BTAB}")
    if not OPT['sk']:
        a(f"s_mov_b32 s{sE0}, s{sP1}")
    for i in range(8):
        a(f"s_mov_b64 exec, {m1(i)}")
        a(f"s_waitcnt lgkmcnt(7)")
        a(f"v_add_u32 v{BIN + i}, v{BIN + i}, v{RANK + i}")
        a(f"ds_write_b32 v{BIN + i}, v{META + i}")
    stamp('p2')
    if OPT['pf'] == 8:
        xpf(ADDR)
    a(f"""
    s_mov_b64 exec, -1
    s_cmp_lt_u32 s{sP0}, s{sE0}
    s_cselect_b32 s{sNT}, 0, 1
    s_cselect_b32 s{sNX}, s{sP0}, s{sP1}
    s_cselect_b32 s{sT}, 128, 0
    s_add_u32 s{sP0}, s{sP0}, s{sT}
    s_sub_u32 s{sT}, 128, s{sT}
    s_add_u32 s{sP1}, s{sP1}, s{sT}
    s_mov_b32 s40, s{sMORE}
    s_waitcnt {"vmcnt(0) " if OPT['pf'] == 9 else ""}lgkmcnt(0)
    s_barrier
""")
    stamp('sorted')
    ZE = 0

    def zero(lo, hi):
        for i in range(lo, hi):
            a(f"v_mov_b64 {v(ACC + 2 * i, 2)}, 0")

    sR, sRT, sD0, sTH = 38, 39, 40, 41

    def meta_reads():
        a(f"v_add_u32_sdwa v{TM}, s{sNX}, v{vP2} {SDWA} src0_sel:DWORD src1_sel:WORD_0")
        if OPT['sk']:
            a(f"v_and_or_b32 v{BT}, v{vP2}, 12, s{sNX}")
            for j in range(4):
                a(f"ds_read2_b32 {v(M + 2 * j, 2)}, v{BT} offset0:{8 * j} offset1:{8 * j + 4}")
            a(f"ds_read2_b32 {v(TM, 2)}, v{TM} offset0:0 offset1:4")
            return
        a(f"v_and_b32 v{BT}, -32, v{TM}")
        a(f"ds_read_b128 {v(M, 4)}, v{BT}")
        a(f"ds_read_b128 {v(M + 4, 4)}, v{BT} offset:16")
        a(f"ds_read_b64 {v(TM, 2)}, v{TM}")

    def loads(h, mask=False):
        D = DA if h == 0 else DB
        if mask and OPT['mx']:
            if h == 0:
                for e in range(8):
                    a(f"v_mad_u32_u16 v{M + e}, v{M + e}, s{s512}, v{vL16} op_sel:[1,0,0,0]")
            for e in range(8):
                a(f"v_cmpx_gt_u32 vcc, s{sX + 2}, v{M + e}")
                a(f"buffer_load_dwordx4 {v(D + 4 * e, 4)}, v{M + e}, {X}, 0 offen" + (" offset:256" if h else ""))
            a("s_mov_b64 exec, -1")
            return
        for e in range(8):
            if h == 0:
                a(f"v_mad_u32_u16 v{M + e}, v{M + e}, s{s512}, v{vL16} op_sel:[1,0,0,0]")
            a(f"buffer_load_dwordx4 {v(D + 4 * e, 4)}, v{M + e}, {X}, 0 offen" + (" offset:256" if h else ""))

    def tr_addr():
        for i in range(2):
            a(f"v_xor_b32_sdwa v{TM + i}, v{TM + i}, v{vP2} {SDWA} src0_sel:WORD_0 src1_sel:WORD_1")
        for i in range(2):
            a(f"v_min_u32 v{TM + i}, s{sZI}, v{TM + i}")
        for i in range(2):
            a(f"v_lshl_add_u32 v{TM + i}, v{TM + i}, 3, s{sCB}")

    def tr_reads():
        a(f"ds_read_b64_tr_b16 {v(A, 2)}, v{TM}")
        a(f"ds_read_b64_tr_b16 {v(A + 2, 2)}, v{TM + 1}")

    def half(t, h, lg):
        D = DA if h == 0 else DB
        pairs = [(0, 2), (4, 6), (1, 3), (5, 7)]

        def perms(j):
            r, p = j >> 1, j & 1
            for k, (e0, e1) in enumerate(pairs):
                a(f"v_perm_b32 v{BT + 4 * (j & 1) + k}, v{D + 4 * e1 + r}, v{D + 4 * e0 + r}, s{sHI if p else sLO}")
        perms(0)
        for j in range(8):
            if j + 1 < 8:
                perms(j + 1)
            if j == 0 and lg is not None:
                a(f"s_waitcnt lgkmcnt({lg})")
            c = v(ACC + 64 * t + (8 * h + j) * 4, 4)
            a(f"v_mfma_f32_16x16x32_bf16 {c}, {v(A, 4)}, {v(BT + 4 * (j & 1), 4)}, {c}")

    if OPT['prio'] >= 1:
        a(f"""
    s_cmp_lt_u32 s{sWV}, 4
    s_cselect_b64 vcc, -1, 0
    {f"s_cselect_b32 s41, -1, {OPT['th'] * 128}" if OPT['prio'] == 5 else ""}
    s_cbranch_scc1 k2_lop
    s_setprio {0 if OPT['prio'] >= 5 else 1}
k2_lop:
""")
    pad('lop')
    pcnt = [0]

    def tprio(p):
        pcnt[0] += 1
        a(f"""
    s_cbranch_vccz k2_pr{pcnt[0]}
    s_setprio {p}
k2_pr{pcnt[0]}:
""")

    def hprio():
        pcnt[0] += 1
        a(f"""
    s_cbranch_vccnz k2_pr{pcnt[0]}
    s_setprio 1
k2_pr{pcnt[0]}:
""")

    a(f"""
    s_cmp_ge_u32 s{sNX}, s{sE1}
    s_cbranch_scc1 k2_wz
""")
    meta_reads()
    a("s_waitcnt lgkmcnt(1)")
    loads(0)
    loads(1)
    a("s_waitcnt lgkmcnt(0)")
    tr_addr()
    tr_reads()
    stamp('first')
    a(f"""
k2_wz:
    s_cmp_lg_u32 s{sRND}, 0
    s_cbranch_scc1 k2_noz
""")
    if OPT['wb'] == 1:
        wbuild()
    zero(ZE, 64)
    a(f"""
    s_xor_b32 s{sT}, s{sWV}, 7
    s_or_b32 s{sT}, s{sT}, s2
    s_or_b32 s{sT}, s{sT}, s{sRST}
    s_cbranch_scc1 k2_noz
    s_mov_b64 exec, 1
    v_mov_b32 v{BT}, s{sTAG}
    buffer_store_dword v{BT}, off, {W}, 0 sc1
    s_mov_b64 exec, -1
""")
    a(f"""
k2_noz:
    s_cmp_ge_u32 s{sNX}, s{sE1}
    s_cbranch_scc1 k2_done
""")
    if 'it1' in SMAP:
        a("s_waitcnt vmcnt(8)")
        stamp('it1')
    a(f"""
    s_cmp_eq_u32 s{sNT}, 0
    s_cbranch_scc0 k2_stub1
""")
    for t in range(2):
        po, eo, ps, es = (sP1, sE1, sP0, sE0) if t == 0 else (sP0, sE0, sP1, sE1)
        a(f"""
k2_stub{t}:
""")
        if t == 0:
            a(f"""
    s_add_u32 s{sT}, s{po}, {128 * OPT['tb']}
    s_cmp_lt_u32 s{sT}, s{eo}
    s_cbranch_scc1 k2_oth0
    s_cmp_lt_u32 s{ps}, s{es}
    s_cbranch_scc1 k2_same0
    s_cmp_lt_u32 s{po}, s{eo}
    s_cbranch_scc1 k2_oth0
    s_branch k2_tail0
k2_same0:
""")
        else:
            a(f"""
    s_cmp_lt_u32 s{po}, s{eo}
    s_cbranch_scc1 k2_oth1
    s_cmp_eq_u32 s{sD0}, 0
    s_cbranch_scc1 k2_sw0
k2_st1b:
    s_cmp_lt_u32 s{ps}, s{es}
    s_cbranch_scc0 k2_tail1
""")
        a(f"""
    s_mov_b32 s{sNX}, s{ps}
    {f"s_sub_u32 s{sR}, s{es}, s{ps}" if OPT['sk'] else ""}
    s_add_u32 s{ps}, s{ps}, 128
    s_mov_b32 s{sNT}, {t}
    s_branch k2_body{t}
""")
        pad(f'o{t}', True)
        a(f"""
k2_oth{t}:
    s_mov_b32 s{sNX}, s{po}
    {f"s_sub_u32 s{sR}, s{eo}, s{po}" if OPT['sk'] else ""}
    s_add_u32 s{po}, s{po}, 128
    s_mov_b32 s{sNT}, {1 - t}
k2_body{t}:
""")
        if OPT['prio'] == 5 and t == 0:
            a(f"""
    s_sub_u32 s{sT}, s{sE0}, s{sP0}
    s_cmp_gt_i32 s{sT}, s41
    s_cbranch_scc1 k2_np5
    s_setprio 1
k2_np5:
""")
        if (OPT['prio'] == 6 and t == 1) or (OPT['prio'] == 9 and t == 0):
            hprio()
        if OPT['prio'] == 2:
            tprio(2 - 2 * t)
        if OPT['prio'] == 3:
            tprio(2)
        meta_reads()
        a("s_waitcnt vmcnt(8)")
        half(t, 0, 5 if OPT['sk'] else 3)
        if OPT['sk'] == 1:
            a(f"s_cmp_le_u32 s{sR}, 112")
        a("s_waitcnt lgkmcnt(0)")
        if OPT['sk'] == 1:
            a(f"s_cbranch_scc1 k2_sa{t}")
        loads(0, True)
        a(f"k2_ra{t}:")
        tr_addr()
        pad(f'm{t}')
        if (OPT['prio'] == 7 and t == 0) or (OPT['prio'] == 8 and t == 1):
            hprio()
        if OPT['prio'] == 3 or (OPT['prio'] == 4 and t == 1):
            tprio(0)
        if OPT['prio'] == 4 and t == 0:
            tprio(2)
        a("s_waitcnt vmcnt(8)")
        half(t, 1, None)
        if OPT['sk'] == 1:
            a(f"s_cmp_le_u32 s{sR}, 112")
            a(f"s_cbranch_scc1 k2_sbb")
        loads(1, True)
        tr_reads()
        a(f"s_cmp_eq_u32 s{sNT}, 0")
        a(f"s_cbranch_scc1 k2_stub0")
        if t == 1:
            a("s_branch k2_stub1")
    if OPT['sk'] == 1:
        for h in range(2):
            D = DA if h == 0 else DB
            if h == 0:
                a(f"""
k2_sa0:
    s_mov_b32 s{sRT}, 0
    s_branch k2_sa
k2_sa1:
    s_mov_b32 s{sRT}, 1
k2_sa:
""")
            else:
                a("k2_sbb:")
            for e in range(7):
                if h == 0:
                    a(f"v_mad_u32_u16 v{M + e}, v{M + e}, s{s512}, v{vL16} op_sel:[1,0,0,0]")
                if e < 6:
                    a(f"s_cmp_le_u32 s{sR}, {16 * (e + 1)}")
                a(f"buffer_load_dwordx4 {v(D + 4 * e, 4)}, v{M + e}, {X}, 0 offen" + (" offset:256" if h else ""))
                if h == 1 and e == 0:
                    tr_reads()
                a(f"{'s_cbranch_scc1' if e < 6 else 's_branch'} k2_x{h}{e + 1}")
            for e in range(1, 8):
                a(f"k2_x{h}{e}:")
                a(f"s_waitcnt vmcnt({e})")
            if h == 0:
                a(f"s_cmp_eq_u32 s{sRT}, 0")
                a(f"s_cbranch_scc1 k2_ra0")
                a(f"s_branch k2_ra1")
            else:
                a(f"s_cmp_eq_u32 s{sNT}, 0")
                a(f"s_cbranch_scc1 k2_stub0")
                a(f"s_branch k2_stub1")
    for t in range(2):
        pad(f't{t}', True)
        a(f"k2_tail{t}:")
        a("s_waitcnt vmcnt(8)")
        half(t, 0, 0)
        a("s_waitcnt vmcnt(0)")
        half(t, 1, None)
        if t == 0:
            a("s_branch k2_done")
    a(f"""
k2_done:
    {"s_setprio 0" if 2 <= OPT['prio'] <= 4 else ""}
    s_waitcnt vmcnt(0)
    s_cmp_eq_u32 s{sMORE}, 0
    s_cbranch_scc1 k2_fin
    s_add_u32 s{sRND}, s{sRND}, 8192
    s_movk_i32 s{sC}, 255
    s_barrier
    s_branch k2_round
k2_p1h:
    v_readfirstlane_b32 s{sC}, v21
    s_sub_u32 s{sC}, s{sC}, 1
    s_add_u32 s{sRST}, s{sRST}, 1
    s_cmp_gt_u32 s{sRST}, 2000
    s_cbranch_scc1 k2_end
    s_waitcnt vmcnt(0) lgkmcnt(0)
    s_barrier
    s_branch k2_round
k2_np:
    ds_read_b32 v8, v12 offset:{FLAG + 16}
    s_waitcnt lgkmcnt(0)
    v_readfirstlane_b32 s{sTAG}, v8
    s_branch k2_b3b
k2_hpub:
    s_bitcmp1_b32 s2, 1
    s_cselect_b64 vcc, -1, 0
    s_lshl_b32 s{sT + 1}, s2, 4
    s_lshr_b32 s{sT + 2}, s2, 2
    s_lshl_b32 s{sT}, s{sC}, 2
    s_add_u32 s{sT}, s{sT}, {TENT}
    v_cndmask_b32 v76, v76, v77, vcc
    v_cndmask_b32 v77, v77, v78, vcc
    v_mov_b32 v4, s{sT}
    v_alignbit_b32 v76, v77, v76, s{sT + 1}
    v_or_b32 v76, 3, v76
    s_lshl_b64 exec, 1, s{sT + 2}
    ds_write_b32 v4, v76
    s_mov_b64 exec, -1
    v_add_u32 v7, {TENT - CB - 7 * 4096}, v18
    ds_read2st64_b32 v[80:81], v7 offset0:0 offset1:1
    ds_read2st64_b32 v[82:83], v7 offset0:2 offset1:3
    s_branch k2_w7p
k2_hst:
    v_mov_b32 v5, s2
    v_lshlrev_b32 v5, 2, v5
    ds_read_b32 v4, v5 offset:{PH}
    ds_read_b32 v6, v5 offset:{BTAB}
    s_waitcnt lgkmcnt(0)
    v_sub_u32 v6, v8, v6
""")
    for j in range(8):
        a(f"""
    s_mov_b64 exec, -1
    v_cmp_lt_u32 vcc, v6, v4
    v_add_u32 v6, 1024, v6
    s_mov_b64 exec, vcc
    buffer_store_dwordx4 {v(PG + 4 * j, 4)}, v8, {W}, s{sT + j // 4} offen offset:{1024 * (j % 4)} sc1
""")
    a(f"""
    s_waitcnt vmcnt(0)
    s_branch k2_b3b
""")
    pad('fin', True)
    a("k2_fin:")
    stamp('mainend')
    OP = 528
    OUT = 56 * ROW
    vTG = 127
    vS, vRB, vOB, vL31, vHB, vCN, vFL, vFG = 144, 145, 146, 147, 148, 149, 150, 151
    a(f"""
    s_xor_b32 s{sFIRST}, s{sWV}, 7
    s_or_b32 s{sFIRST}, s{sFIRST}, s{sRST}
    s_cbranch_scc1 k2_ne
    buffer_load_dword v{vTG}, off, {W}, 0 sc1
k2_ne:
    {"s_setprio 0" if not OPT['hp'] else ""}
    s_cmp_lg_u32 s{sD0}, 0
    s_cbranch_scc1 k2_sw1
    s_mov_b32 s{sD0}, 1
k2_sw0:
    v_mbcnt_lo_u32_b32 v2, -1, 0
    v_mbcnt_hi_u32_b32 v2, -1, v2
    s_and_b32 s{sT}, s{sWV}, 3
    s_lshr_b32 s{sT + 1}, s{sWV}, 2
    s_mul_i32 s{sT + 2}, s{sT + 1}, 28
    s_add_u32 s{sT + 2}, s{sT}, s{sT + 2}
    v_lshrrev_b32 v3, 4, v2
    v_lshl_add_u32 v3, v3, 2, s{sT + 2}
    v_mul_u32_u24 v3, {ROW}, v3
    v_bfe_u32 v9, v2, 3, 1
    v_mul_u32_u24 v9, 640, v9
    v_and_b32 v10, 7, v2
    v_lshl_add_u32 v9, v10, 4, v9
    v_add_u32 v3, v3, v9
    s_cmp_lg_u32 s{sT + 1}, 0
    s_cselect_b32 s{sT + 1}, -1, 0xffff
    s_cselect_b32 s{sT + 2}, 1, 0x10000
""")

    def R(t, h, q, jj):
        return ACC + 64 * t + (8 * h + jj) * 4 + q
    DP = "row_mask:0xf bank_mask:0xc"

    def swrite(t, dst, va, hi):
        for jj in range(8):
            a(f"v_add_f32_dpp v{R(t, 0, 1, jj)}, v{R(t, 1, 3, jj)}, v{R(t, 0, 1, jj)} quad_perm:[0,1,2,3] {DP}")
            a(f"v_sub_f32_dpp v{R(t, 0, 2, jj)}, v{R(t, 1, 1, jj)}, v{R(t, 0, 2, jj)} row_shr:8 {DP}")
            a(f"v_subrev_f32_dpp v{R(t, 0, 3, jj)}, v{R(t, 1, 1, jj)}, v{R(t, 0, 3, jj)} quad_perm:[0,1,2,3] {DP}")
            a(f"v_add_f32_dpp v{R(t, 0, 1, jj)}, v{R(t, 1, 2, jj)}, v{R(t, 0, 1, jj)} row_shr:8 {DP}")
            a(f"v_subrev_f32_dpp v{R(t, 1, 2, jj)}, v{R(t, 1, 3, jj)}, v{R(t, 1, 2, jj)} row_shr:8 {DP}")
        regs = [(0, 0), (0, 1), (0, 2), (0, 3), (1, 0), (1, 2)]
        a(f"s_mov_b32 exec_hi, {hi}")
        for u, (h, q) in enumerate(regs):
            for k in range(4):
                a(f"v_cvt_pk_bf16_f32 v{dst[u] + k}, v{R(t, h, q, 2 * k)}, v{R(t, h, q, 2 * k + 1)}")
            if u == 5:
                a(f"s_mov_b32 exec_lo, 0xff00ff00")
                a(f"s_and_b32 exec_hi, exec_hi, 0xff00ff00")
            a(f"ds_write_b128 v{va}, {v(dst[u], 4)} offset:{t * 16 * ROW + u * 128}")
    swrite(0, [8, 12, 16, 20, 128, 132], 3, f"s{sT + 1}")
    a(f"""
    s_mov_b64 exec, -1
    v_mov_b32 v{vCN}, {CB + ZI * 8 + 8}
    v_mov_b32 v{vS}, s{sT + 2}
    s_mov_b64 exec, 1
    ds_add_u32 v{vCN}, v{vS}
    s_mov_b64 exec, -1
    v_mov_b32 v{vS}, v3
    v_lshrrev_b32 v3, 4, v2
    v_and_b32 v{vFL}, 15, v2
    v_mul_u32_u24 v{vRB}, {ROW}, v{vFL}
    v_lshl_add_u32 v{vRB}, v3, 4, v{vRB}
    s_lshl_b32 s{sT}, s{sT}, 5
    v_mul_u32_u24 v{vOB}, {OP}, v{vFL}
    v_lshl_add_u32 v3, v3, 3, s{sT}
    v_add_u32 v{vOB}, v{vOB}, v3
    v_lshrrev_b32 v{vHB}, 5, v2
    v_and_b32 v{vL31}, 31, v2
    v_lshlrev_b32 v{vL31}, 4, v{vL31}
    s_lshl_b32 s{sT}, s{sWV}, 1
    v_add_u32 v2, s{sT}, v{vHB}
    v_mul_u32_u24 v{vFL}, {OP}, v2
    v_add_u32 v{vFL}, v{vFL}, v{vL31}
    v_add_u32 v{vFL}, {OUT + 37 * OP}, v{vFL}
    v_and_b32 v3, 12, v2
    v_add_u32 v2, v2, v3
    v_lshl_or_b32 v2, v2, 1, 1
    s_lshl_b32 s{sT}, s2, 9
    v_lshl_add_u32 v{vFG}, v2, 17, s{sT}
    s_add_u32 s{sD0}, s{sD0}, 1
    s_cmp_eq_u32 s{sD0}, 1
    s_cbranch_scc1 k2_st1b
k2_sw1:
""")
    stamp('dpp0')
    swrite(1, [DA + 4 * u for u in range(6)], vS, "0xffff")
    stamp('sw1')
    vRA, vOW = 4, 5
    sPH, sMK, sEX = sNT, sP0, sT + 1
    a(f"""
    s_cmp_lt_u32 s{sWV}, 4
    s_cbranch_scc1 k2_lsb
    s_mov_b64 exec, -1
    v_mov_b32 v13, 0x100
    s_mov_b32 s{sEX}, 0xbfb8aa3b
    s_mov_b32 s{sMK}, 0x1fff1fff
    s_mov_b32 s{sMK + 1}, 0x1fff1fff
    v_add_u32 v{vRA}, {28 * ROW}, v{vRB}
    v_add_u32 v{vOW}, {OUT + 24 * OP}, v{vOB}
    s_mov_b32 s{sPH}, 0
    s_mov_b64 exec, 1
    ds_add_u32 v{vCN}, v13
k2_hsp:
    ds_read_u8 v13, v{vCN}
    s_waitcnt lgkmcnt(0)
    v_cmp_gt_u32 vcc, 4, v13
    s_cbranch_vccz k2_hgo
    s_sleep 2
    s_branch k2_hsp
k2_lsb:
    s_mov_b64 exec, -1
    s_waitcnt lgkmcnt(0)
    s_barrier
""")
    stamp('sbar')
    a(f"""
    v_mad_u32_u24 v8, v{vHB}, 20, s{sWV}
    v_mul_u32_u24 v8, {OP}, v8
    v_add_u32 v8, v8, v{vL31}
    v_add_u32 v8, {OUT}, v8
""")
    for i in range(5):
        a(f"ds_read_b128 {v(64 + 4 * i, 4)}, v8 offset:{4 * i * OP}")
    a(f"""
    s_lshl_b32 s{sT}, s2, 9
    s_lshl_b32 s{sT + 1}, s{sWV}, 18
    s_add_u32 s{sT}, s{sT}, s{sT + 1}
    v_add_u32 v9, s{sT}, v{vL31}
""")
    for i, (c0, c1) in enumerate([(0, 41), (16, 8), (32, 24), (9, 40), (25, 48)]):
        a(f"v_mad_i32_i24 v{10 + i}, v{vHB}, {c1 - c0}, {c0}")
        a(f"v_lshl_add_u32 v{10 + i}, v{10 + i}, 17, v9")
    a(f"s_cmp_eq_u32 s{sWV}, 0")
    for i in range(5):
        if i == 4:
            a("s_cselect_b32 exec_hi, -1, 0")
        a(f"s_waitcnt lgkmcnt({4 - i})")
        a(f"buffer_store_dwordx4 {v(64 + 4 * i, 4)}, v{10 + i}, {O}, 0 offen{OSC}")
    a(f"""
    s_mov_b32 exec_hi, -1
    s_branch k2_fb
k2_ph1:
    v_add_u32 v{vRA}, {44 * ROW}, v{vRB}
    v_add_u32 v{vOW}, {OUT + 12 * OP}, v{vOB}
    s_mov_b32 s{sMK}, 0x0fff0fff
    s_mov_b32 s{sMK + 1}, 0x0fff0fff
    s_mov_b64 exec, 1
    s_branch k2_hsp
k2_ph2:
    v_mov_b32 v{vRA}, v{vRB}
    v_add_u32 v{vOW}, {OUT}, v{vOB}
    s_mov_b64 exec, 1
    s_branch k2_hsp
k2_ph3:
    s_cmp_lg_u32 s{sFIRST}, 0
    s_cbranch_scc1 k2_sb
    s_waitcnt vmcnt(0)
    v_cmp_ne_u32 vcc, s{sTAG}, v{vTG}
    s_cbranch_vccz k2_sb
    s_mov_b64 exec, 1
    v_mov_b32 v{vTG}, s{sTAG}
    buffer_store_dword v{vTG}, off, {W}, 0 sc1
    s_mov_b64 exec, -1
k2_sb:
    v_add_u32 v{vRA}, {16 * ROW}, v{vRB}
    v_add_u32 v{vOW}, {OUT + 37 * OP}, v{vOB}
    s_waitcnt lgkmcnt(0)
""")
    stamp('hsb')
    a("s_barrier")
    stamp('sbar')
    a(f"""
k2_hgo:
    s_mov_b64 exec, -1
""")
    slot = dict(F0=0, F21=1, F22=2, F23=3, F32=4, F31=5, F1=6, F43=7, F42=8, F33=9, F41=10)
    terms = {0: [(0, 'F0'), (1, 'F1')]}
    for i in (1, 2, 3):
        terms[i] = [(2, f'F2{i}'), (3, f'F3{i}'), (4, f'F4{i}')]
    AH = OPT['ah']
    BB = 160
    OA = 128
    sq = []
    for ti in range(3):
        for h in range(2):
            for o in range(4):
                if ti < len(terms[o]):
                    tt, f = terms[o][ti]
                    sq.append(dict(off=slot[f] * 128 + h * 64, w=2 * tt + h, d=OA + 4 * o, first=(ti == 0 and h == 0)))
    n = len(sq)

    def rd(i):
        a(f"ds_read_b128 {v(BB + 4 * i, 4)}, v{vRA} offset:{sq[i]['off']}")

    def qsum(lo, hi, lab):
        a(f"s_cmp_lg_u32 s{sPH}, 0")
        a(f"s_cbranch_scc1 {lab}")
        for r in range(lo, hi):
            a(f"v_add_f32_dpp v{r}, v{r}, v{r} quad_perm:[1,0,3,2] row_mask:0xf bank_mask:0x8")
        for r in range(lo, hi):
            a(f"v_add_f32_dpp v{r}, v{r}, v{r} quad_perm:[2,3,0,1] row_mask:0xf bank_mask:0x8")
        a(f"{lab}:")
    for i in range(AH):
        rd(i)
    stamp('rd12')
    a(f"v_add_u32 v{vCN}, 1, v{vCN}")
    g = 16
    for i in range(n):
        e = sq[i]
        if i + AH < n:
            rd(i + AH)
        a(f"s_waitcnt lgkmcnt({min(AH, n - 1 - i)})")
        d = v(e['d'], 4)
        a(f"v_mfma_f32_16x16x32_bf16 {d}, {v(WF + 4 * e['w'], 4)}, {v(BB + 4 * i, 4)}, {'0' if e['first'] else d}")
        stamp(f'mf{i}')
        if i == 15:
            qsum(OA, OA + 4, "k2_q0")
            for k in range(4):
                a(f"v_mul_f32 v{g + k}, s{sEX}, v{OA + k}")
        if i == 16:
            for k in range(4):
                a(f"v_exp_f32 v{g + k}, v{g + k}")
        if i == 17:
            a(f"v_cvt_pk_bf16_f32 v{OA}, v{OA}, v{OA + 1}")
            a(f"v_cvt_pk_bf16_f32 v{OA + 1}, v{OA + 2}, v{OA + 3}")
            for k in range(4):
                a(f"v_add_f32 v{g + k}, 1.0, v{g + k}")
        if i == 18:
            for k in range(4):
                a(f"v_rcp_f32 v{g + k}, v{g + k}")
    qsum(OA + 4, OA + 16, "k2_q1")
    a(f"s_mov_b64 exec, {sp(sMK)}")
    a(f"ds_write_b64 v{vOW}, {v(OA, 2)}")
    for o in range(1, 4):
        b = OA + 4 * o
        for k in range(2):
            a(f"v_pk_mul_f32 {v(b + 2 * k, 2)}, {v(b + 2 * k, 2)}, {v(g + 2 * k, 2)}")
        a(f"v_cvt_pk_bf16_f32 v{b}, v{b}, v{b + 1}")
        a(f"v_cvt_pk_bf16_f32 v{b + 1}, v{b + 2}, v{b + 3}")
        a(f"ds_write_b64 v{vOW}, {v(b, 2)} offset:{128 * o}")
    a(f"""
    s_mov_b64 exec, -1
    s_cmp_eq_u32 s{sPH}, 3
    s_cbranch_scc1 k2_fb
    s_add_u32 s{sPH}, s{sPH}, 1
    s_cmp_eq_u32 s{sPH}, 1
    s_cbranch_scc1 k2_ph1
    s_cmp_eq_u32 s{sPH}, 2
    s_cbranch_scc1 k2_ph2
    s_branch k2_ph3
k2_fb:
""")
    stamp('fin0')
    a(f"""
    v_add_u32 v{vFG}, v{vFG}, v{vL31}
    s_cmp_ge_u32 s{sWV}, 6
    s_waitcnt lgkmcnt(0)
    s_barrier
    s_cbranch_scc1 k2_out
    ds_read_b128 v[88:91], v{vFL}
    s_waitcnt lgkmcnt(0)
    buffer_store_dwordx4 v[88:91], v{vFG}, {O}, 0 offen{OSC}
""")
    a("k2_out:")
    if OPT['stamps']:
        stamp('gend')
        a(f"""
    s_waitcnt vmcnt(0) lgkmcnt(0)
    s_memrealtime s[20:21]
    s_lshl_b32 s{sT}, s2, 3
    s_add_u32 s{sT}, s{sT}, s{sWV}
    s_lshl_b32 s{sT}, s{sT}, 6
    s_add_u32 s{sT}, s{sT}, {ST_OFF}
    v_mov_b32 v4, s{sT}
    s_waitcnt lgkmcnt(0)
""")
        for i in range(7):
            a(f"v_mov_b32 v{8 + 2 * i}, s{88 + 2 * i}")
            a(f"v_mov_b32 v{9 + 2 * i}, s{89 + 2 * i}")
        a(f"v_mov_b32 v22, s20")
        a(f"v_mov_b32 v23, s21")
        a("s_mov_b64 exec, 1")
        for i in range(4):
            a(f"global_store_dwordx4 v4, {v(8 + 4 * i, 4)}, s[{sW}:{sW + 1}] offset:{16 * i}")
    a("""
k2_end:
    s_endpgm
""")
    return a.lines, LDS


def main():
    out = sys.argv[1] if len(sys.argv) > 1 else f"cdna_kernels/{NAME}.s"
    ref = open(f"cdna_kernels/{NAME}.s.ref").read().split('\n')
    hdr = [l for l in ref if l.startswith(';') and '@launch' not in l and 'Override' not in l and 'grid=ceil' not in l]
    k2, lds2 = gen_k2()
    k2, n2 = pad_hazards(k2, OPT.get('verbose', 0))
    kk = f"kernel={KN} " if OPT['lst'] else ""
    txt = hdr + [
        f"; @launch {kk}grid=(256,1,1) block=(512,1,1) lds={lds2}",
        '.amdgcn_target "amdgcn-amd-amdhsa--gfx950"', '.text']
    txt += [f".globl {KN}", ".p2align 8", f".type {KN},@function"] + k2
    txt += ['.section .rodata,"a"']
    txt += [".p2align 6", f".amdhsa_kernel {KN}",
            f"  .amdhsa_next_free_vgpr 256", "  .amdhsa_next_free_sgpr 102",
            f"  .amdhsa_accum_offset 256", "  .amdhsa_group_segment_fixed_size 0",
            "  .amdhsa_kernarg_size 96", "  .amdhsa_user_sgpr_count 2",
            "  .amdhsa_user_sgpr_kernarg_segment_ptr 1", "  .amdhsa_system_sgpr_workgroup_id_x 1",
            ".end_amdhsa_kernel"]
    open(out, 'w').write('\n'.join(txt) + '\n')
    print(f"wrote {out}: pads {n2}, lines {len(txt)}")


main()
```

```python
import sys
from asmlib import Asm, v, s, pad_hazards

NAME = "gather_scatter__tensor_product_equiv_equiformer__graph"
OPT = dict(rs=0, xm=0, rv=1, se=1, el=0, dsc=1, ds=0, hp=0, ah=12, tb=2, sk=1, mx=0, xpad=0, rm=0, th=4, dsl=0, psl=0, cpf=2, hop=0, hmid=1, sl0=0, sl1=0, w7d=1, wb=2, dr=1, notbl=0, nodma=0, b1=2, pp=1, dbg=0, gsc=1, nst=7, stamps=0, prio=1, osc=1, lst=0, tlim=400, skip=-1, wpos=0, nt=3, ze=0, pf=1)
for a in sys.argv[2:]:
    k, val = a.split('=')
    OPT[k] = int(val, 0)

assert 0 <= OPT['b1'] <= 9
N = 12500
NCH = 250
CH = 3200
GR_OFF = 0x1000
TBL_OFF = 0xD00000
ALT = 0x1000000
WS_SIZE = ALT + 0xD80000
ST_OFF = 0xE00000
SDWA = "dst_sel:DWORD dst_unused:UNUSED_PAD"
KN = NAME + "_kernel"


def wave_scan(a, r):
    for m in ("row_shr:1", "row_shr:2", "row_shr:4", "row_shr:8"):
        a(f"v_add_u32_dpp {v(r)}, {v(r)}, {v(r)} {m} row_mask:0xf bank_mask:0xf")
    a(f"v_add_u32_dpp {v(r)}, {v(r)}, {v(r)} row_bcast:15 row_mask:0xa bank_mask:0xf")
    a(f"v_add_u32_dpp {v(r)}, {v(r)}, {v(r)} row_bcast:31 row_mask:0xc bank_mask:0xf")


def gen_k2():
    a = Asm()
    LDS = 163840
    HIST, PH, BTAB, FLAG = 0, 1024, 2048, 3072
    RAWW = 3136
    WRAD = RAWW + 40960
    STG = WRAD + 1280
    CB = 131040
    TENT = STG + CH * 16
    ZI = 4096
    ROW = 1440
    vL16, vP2, TM, A, BT, M, WF, DA, DB, ACC = 0, 1, 2, 4, 8, 16, 24, 64, 96, 128
    LANE, TID = 2, 3
    G, ADDR, BIN, META, RANK = 64, 96, 104, 112, 120
    DST, SRC, EA, RH, BOFF, RNK, SCN, UP, PG = 128, 136, 144, 148, 160, 168, 176, 184, 192
    sC = 3
    sX, sW, sO = 4, 8, 12
    sWV, sRND, sMORE, sTOT = 16, 17, 18, 19
    sP0, sE0, sP1, sE1, sNX, sNT = 20, 21, 22, 23, 24, 25
    sLO, sHI, s512, sZI, sCB, sMSK = 26, 27, 28, 29, 30, 31
    sT = 32
    sRST, sFIRST = 36, 37
    sDBG = 38
    sM = 40
    pR, pE, pS, pD, pWR, pW0, pW1 = 72, 74, 76, 78, 80, 82, 84
    sEP, sTAG = 86, 87
    sAM, sTM, sCNT, sK = 20, 22, 24, 25
    X = f"s[{sX}:{sX + 3}]"
    W = f"s[{sW}:{sW + 3}]"
    O = f"s[{sO}:{sO + 3}]"
    OSC = {0: "", 1: " sc1", 2: " sc0 sc1", 3: " nt", 4: " sc1 nt", 5: " sc0 sc1 nt"}[OPT['osc']]
    NT = " nt" if OPT['nt'] & 1 else ""
    NT2 = " nt" if OPT['nt'] & 2 else ""

    SMAP = {1: dict(start=0, tbl=1, lastmeta=2, sorted=3, mainend=4, sbar=5, gend=6),
            2: dict(start=0, drained=1, bar2p=2, rest=3, bar3=4, stored=5, tbl=6),
            7: dict(start=0, bar2p=1, n7b=2, g0=3, e0=4, e3=5, rest=6),
            9: dict(start=0, issued=1, dst=2, bar2p=3, g0=4, rest=5, bar3=6),
            6: dict(start=0, issued=1, pre1=2, dst=3, bar2p=4, rest=5, bar3=6),
            3: dict(start=0, drained=1, dissued=2, wdone=3, lastmeta=4, bar2=5, sorted=6),
            8: dict(start=0, tbl=1, expd=2, drained=3, dissued=4, lastmeta=5, sorted=6),
            4: dict(start=0, mainend=1, hsb=2, sw1=3, sbar=4, fin0=5, gend=6),
            10: dict(start=0, sbar=1, rd12=2, nhs=3, mf9=4, mf21=5, fin0=6),
            11: dict(start=0, b3=1, b5=2, sorted=3, mainend=4, b7=5, b9=6),
            12: dict(start=0, b2=1, b11=2, sorted=3, mainend=4, b6=5, b10=6),
            5: dict(start=0, bar2=1, scan=2, p2=3, sorted=4, first=5, it1=6)}.get(OPT['stamps'], {})

    def stamp(nm):
        if nm in SMAP:
            i = SMAP[nm]
            a(f"s_memrealtime s[{88 + 2 * i}:{89 + 2 * i}]")

    PADS = ['w1', 'now', 'dp', 'b2', 'lop', 'o0', 'm0', 'o1', 'm1', 't0', 't1', 'fin', 'sw', 'hg', 'tl']
    if not OPT['hmid']:
        PADS = [p for p in PADS if p not in ('m0', 'm1')]
    NCHAIN = max(OPT['hop'], 1)
    CHAINS = [PADS[i::NCHAIN] for i in range(NCHAIN)]
    NEXT = {}
    for c in CHAINS:
        for i, p in enumerate(c):
            NEXT[p] = f"k2_pad_{c[i + 1]}" if i + 1 < len(c) else "k2_b3b"

    def pad(nm, free=False):
        if OPT['hop'] and nm in NEXT:
            a(f"k2_pad_{nm}:")
            a(f"{'s_branch' if free else 's_cbranch_execz'} {NEXT[nm]}")

    def m1(i):
        return f"s[{sM + 4 * i}:{sM + 4 * i + 1}]"

    def m2(i):
        return f"s[{sM + 4 * i + 2}:{sM + 4 * i + 3}]"

    def sp(i):
        return f"s[{i}:{i + 1}]"

    a(f"""
{KN}:
    s_cmp_ge_u32 s2, 256
    s_cbranch_scc1 k2_end
""")
    stamp('start')
    a(f"""
    s_load_dwordx16 s[72:87], s[0:1], 8
    s_load_dwordx2 s[{sW}:{sW + 1}], s[0:1], 88
    s_load_dwordx2 s[{sX}:{sX + 1}], s[0:1], 0
    s_load_dwordx2 s[{sO}:{sO + 1}], s[0:1], 72
    v_lshrrev_b32 v3, 6, v0
    s_mov_b32 s{sC}, s2
    v_readfirstlane_b32 s{sWV}, v3
    s_and_b32 s{sT}, s2, 7
    {f"s_lshl_b32 s{sT}, s{sT}, 2" if OPT['xm'] else ""}
    {f"s_lshr_b32 s{sT}, {hex(OPT['xm'])}, s{sT}" if OPT['xm'] else ""}
    {f"s_and_b32 s{sT}, s{sT}, 7" if OPT['xm'] else ""}
    s_lshr_b32 s2, s2, 3
    s_lshl_b32 s{sT}, s{sT}, 5
    s_or_b32 s2, s2, s{sT}
    s_mov_b32 s{sX + 2}, {N * 512}
    s_mov_b32 s{sX + 3}, 0x00020000
    s_mov_b32 s{sW + 2}, {WS_SIZE}
    s_mov_b32 s{sW + 3}, 0x00020000
    s_mov_b32 s{sO + 2}, {N * 512}
    s_mov_b32 s{sO + 3}, 0x00020000
    s_mov_b32 s{sRND}, 0
    s_mov_b32 s{sRST}, 0
""")
    if OPT['cpf'] == 2:
        a(f"""
    s_getpc_b64 s[{sT}:{sT + 1}]
k2_pc:
    v_lshlrev_b32 v252, 5, v0
    v_min_u32 v252, k2_end-k2_pc, v252
    v_add_co_u32 v252, vcc, s{sT}, v252
    v_mov_b32 v253, s{sT + 1}
    v_addc_co_u32 v253, vcc, 0, v253, vcc
    global_load_dword v255, v[252:253], off
""")
    if OPT['skip'] >= 0:
        a(f"""
    s_cmp_eq_u32 s{sC}, {OPT['skip']}
    s_cselect_b32 s{sC}, 255, s{sC}
""")
    def wdma():
        a(f"""
    s_lshl_b32 s{sT + 2}, s{sWV}, 11
    s_add_u32 m0, s{sT + 2}, {RAWW}
    v_add_u32 v4, s{sT + 2}, v9
    s_mul_i32 s{sT + 2}, s{sWV}, 3072
    global_load_lds_dwordx4 v4, {sp(pW0)}
    global_load_lds_dwordx4 v4, {sp(pW0)} offset:1024
    s_add_u32 m0, s{sT + 2}, {RAWW + 16384}
    v_add_u32 v5, s{sT + 2}, v9
    global_load_lds_dwordx4 v5, {sp(pW1)}
    global_load_lds_dwordx4 v5, {sp(pW1)} offset:1024
    global_load_lds_dwordx4 v5, {sp(pW1)} offset:2048
""")
    el = [f"global_load_dwordx4 {v(DST, 4)}, v4, {sp(pD)}{NT}",
          f"global_load_dwordx4 {v(DST + 4, 4)}, v7, {sp(pD)}{NT}",
          f"global_load_dwordx4 {v(SRC, 4)}, v4, {sp(pS)}{NT}",
          f"global_load_dwordx2 {v(EA, 2)}, v5, {sp(pE)}{NT}",
          f"global_load_dwordx4 {v(RH, 4)}, v6, {sp(pR)}{NT2}",
          f"global_load_dwordx2 {v(RH + 4, 2)}, v6, {sp(pR)} offset:16{NT2}",
          f"global_load_dwordx4 {v(SRC + 4, 4)}, v7, {sp(pS)}{NT}",
          f"global_load_dwordx2 {v(EA + 2, 2)}, v5, {sp(pE)} offset:{CH}{NT}",
          f"global_load_dwordx4 {v(RH + 6, 4)}, v8, {sp(pR)}{NT2}",
          f"global_load_dwordx2 {v(RH + 10, 2)}, v8, {sp(pR)} offset:16{NT2}"]
    a(f"""
k2_round:
    v_mbcnt_lo_u32_b32 v{LANE}, -1, 0
    v_mbcnt_hi_u32_b32 v{LANE}, -1, v{LANE}
    s_lshl_b32 s{sT}, s{sWV}, 6
    v_add_u32 v{TID}, s{sT}, v{LANE}
    v_mov_b32 v12, 0
    v_lshlrev_b32 v14, 2, v{TID}
    ds_write_b32 v14, v12 offset:{HIST}
    s_mul_i32 s{sT}, s{sC}, {CH * 4}
    s_mul_i32 s{sT + 1}, s{sC}, {CH * 2}
    s_mul_i32 s{sT + 2}, s{sC}, {CH * 6}
    v_lshl_add_u32 v4, v{TID}, 4, s{sT}
    v_lshl_add_u32 v5, v{TID}, 3, s{sT + 1}
    v_mul_u32_u24 v6, 24, v{TID}
    v_add_u32 v6, s{sT + 2}, v6
    v_add_u32 v7, {CH * 2}, v4
    v_add_u32 v8, {CH * 3}, v6
    v_cmp_gt_u32 vcc, {CH // 8}, v{TID}
    v_lshlrev_b32 v9, 4, v{LANE}
    s_mov_b64 {sp(sAM)}, vcc
    s_or_b32 s{sFIRST}, s{sRST}, s{sRND}
    s_cmp_ge_u32 s{sC}, {NCH}
    s_cselect_b64 vcc, 0, vcc
    s_waitcnt lgkmcnt(0)
    s_cbranch_vccz k2_noedge
    s_mov_b64 exec, vcc
""")
    for i in range(10):
        if i == OPT['b1']:
            a("s_barrier")
        a(el[i])
    a(f"""
    s_mov_b64 exec, -1
    s_branch k2_init
k2_noedge:
    s_cmp_lg_u32 s{sWV}, 7
    s_cbranch_scc1 k2_nb1
    s_cmp_lg_u32 s{sFIRST}, 0
    s_cbranch_scc1 k2_noep
    s_load_dword s{sEP}, s[{sW}:{sW + 1}], 0
k2_noep:
    v_min_u32 v99, {39 * 16}, v9
    s_and_b32 s{sT}, s2, 31
    s_mul_i32 s{sT + 1}, s{sT}, 768
    s_lshl_b32 s{sT}, s{sT}, 9
    v_min_u32 v100, 3, v{LANE}
    v_min_u32 v101, 5, v{LANE}
    v_lshl_add_u32 v100, v100, 7, s{sT}
    v_lshl_add_u32 v101, v101, 7, s{sT + 1}
    global_load_dwordx4 v[64:67], v99, {sp(pWR)}
    global_load_dword v100, v100, {sp(pW0)}
    global_load_dword v101, v101, {sp(pW1)}
""")
    if OPT['cpf'] == 1:
        a(f"""
    s_getpc_b64 s[{sT}:{sT + 1}]
k2_pc:
    v_lshlrev_b32 v132, 2, v9
    v_mov_b32 v133, s{sT + 1}
""")
        for k in range(4):
            a(f"""
    v_min_u32 v134, k2_end-k2_pc, v132
    v_add_co_u32 v134, vcc, s{sT}, v134
    v_addc_co_u32 v135, vcc, 0, v133, vcc
    v_add_u32 v132, 4096, v132
    global_load_dword v{128 + k}, v[134:135], off
""")
    a(f"""
k2_nb1:
    s_barrier
k2_init:
""")
    stamp('issued')
    if OPT['dbg'] == 3:
        for k, n in enumerate((8, 7, 6, 4, 3, 0)):
            a(f"s_waitcnt vmcnt({n})")
            a(f"s_memrealtime s[{90 + 2 * k}:{91 + 2 * k}]")
        a("s_branch k2_out")
    a(f"""
    v_mov_b32 v4, -1
    v_mov_b32 v5, -1
    v_mov_b32 v6, -1
    v_mov_b32 v7, -1
    v_mov_b32 v13, 0
    v_lshlrev_b32 v8, 2, v14
    v_add_u32 v8, {CB - 24576}, v8
    ds_write_b128 v8, v[4:7]
    ds_write_b128 v8, v[4:7] offset:8192
    ds_write_b128 v8, v[4:7] offset:16384
    s_lshl_b32 s{sT}, s{sWV}, 12
    s_add_u32 s{sT}, s{sT}, {CB}
    v_mov_b32 v16, 16
    v_mov_b32 v17, 16
    v_mov_b32 v18, 16
    v_mov_b32 v19, 16
    v_add_u32 v8, s{sT}, v9
    ds_write_b128 v8, v[16:19]
    ds_write_b128 v8, v[16:19] offset:1024
    v_mov_b32 v8, {CB + ZI * 8}
    s_mov_b64 exec, 1
    ds_write_b64 v12, v[12:13] offset:{FLAG}
    ds_write_b64 v8, v[12:13]
    ds_write_b32 v8, v12 offset:8
    s_mov_b64 exec, -1
    v_lshl_add_u32 v17, v{LANE}, 5, s{sT}
    v_lshl_add_u32 v18, v{LANE}, 2, s{sT}
    v_lshl_add_u32 v19, v{LANE}, 3, s{sT}
    s_lshl_b32 s{sT}, s{sWV}, 9
    v_add_u32 v{META}, s{sT}, v{LANE}
    s_lshl_b32 s{sT}, s{sWV}, 5
    v_add_u32 v16, s{sT}, v{LANE}
    s_mov_b32 s{sTM}, -1
    s_mov_b32 s{sTM + 1}, 0
    s_mov_b32 s{sT}, {TENT}
    v_lshl_add_u32 v10, v16, 2, s{sT}
    v_mul_u32_u24 v16, {CH * 16}, v16
    v_add_u32 v16, s{sRND}, v16
    s_cmp_lg_u32 s{sRST}, 0
    s_cselect_b32 s{sMORE}, {ALT}, 0
    s_cselect_b32 s{sCNT}, {OPT['tlim'] - 16}, 0
    v_mov_b32 v20, 0
    v_and_b32 v{vL16}, 15, v{LANE}
    v_lshlrev_b32 v{vL16}, 4, v{vL16}
    {f"v_lshrrev_b32 v{vP2}, 2, v{LANE}" if not OPT['sk'] else f"v_lshrrev_b32 v{vP2}, 4, v{LANE}"}
    {f"v_lshlrev_b32 v{vP2}, 3, v{vP2}" if not OPT['sk'] else f"v_and_b32 v15, 12, v{LANE}"}
    {f"v_lshl_add_u32 v{vP2}, v15, 1, v{vP2}" if OPT['sk'] else ""}
    {f"v_lshlrev_b32 v{vP2}, 2, v{vP2}" if OPT['sk'] else ""}
    v_lshl_or_b32 v{vP2}, v{LANE}, 30, v{vP2}
    v_and_b32 v15, 3, v{LANE}
    v_lshlrev_b32 v11, 3, v15
    v_lshlrev_b32 v5, 11, v15
    v_or_b32 v5, 0x2000, v5
    {"v_cmp_eq_u32 vcc, 3, v15" if not OPT['se'] else "s_mov_b32 vcc_lo, 0x80808080"}
    {"s_mov_b32 vcc_hi, 0x88888888" if OPT['se'] else ""}
    v_mov_b32 v15, 0x7f
    s_mov_b32 s{sLO}, 0x05040100
    v_cndmask_b32 v15, 0, v15, vcc
    s_mov_b32 s{sHI}, 0x07060302
    s_movk_i32 s{s512}, 512
    s_movk_i32 s{sZI}, {ZI}
    s_mov_b32 s{sCB}, {CB}
    s_mov_b32 s{sMSK}, 0xffffc000
    s_lshr_b32 s{sK}, s2, 2
    s_lshl_b32 s{sK}, s{sK}, 12
    s_add_u32 s{sK}, s{sK}, {TBL_OFF}
    v_bfe_u32 v8, v{LANE}, 2, 2
    v_lshl_add_u32 v11, v8, 7, v11
    v_lshrrev_b32 v8, 4, v{LANE}
    v_lshl_add_u32 v11, v8, 10, v11
    v_lshlrev_b32 v13, 5, v8
    s_and_b32 s{sT}, s{sWV}, 3
    s_lshl_b32 s{sT}, s{sT}, 5
    v_add_u32 v11, s{sT}, v11
    v_mov_b32 v14, 4
    v_mov_b32 v4, 16
""")
    for j in range(1, 8):
        a(f"v_add_u32 v{META + j}, {64 * j}, v{META}")
    stamp('pre1')
    a(f"""
    s_cmp_eq_u32 s{sWV}, 7
    s_cbranch_scc1 k2_w7a
    s_cmp_ge_u32 s{sC}, {NCH}
    s_cbranch_scc1 k2_b3
    s_mov_b64 exec, {sp(sAM)}
    s_movk_i32 s{sT}, 12288
""")
    for i in range(8):
        if i % 4 == 0:
            a(f"s_waitcnt vmcnt({9 - i // 4})")
            if i == 0:
                stamp('dst')
        a(f"v_lshlrev_b32_sdwa v{BOFF + i}, 2, v{DST + i} {SDWA} src0_sel:DWORD src1_sel:BYTE_0")
        a(f"ds_add_rtn_u32 v{RNK + i}, v{BOFF + i}, v4 offset:{PH}")
    for i in range(8):
        a(f"v_cmp_le_u32 {m1(i)}, s{sT}, v{DST + i}")
        a(f"v_and_b32 v{DST + i}, 0x3f00, v{DST + i}")
    for i in range(8):
        a(f"v_cndmask_b32 v6, 0, v5, {m1(i)}")
        a(f"v_lshl_or_b32 v{DST + i}, v{DST + i}, 2, v6")
    a(f"""
    s_mov_b64 exec, -1
    s_branch k2_b2
k2_w7a:
    s_waitcnt lgkmcnt(0)
    s_mul_i32 s{sTAG}, s{sEP}, 0x9E3779B1
    s_add_u32 s{sTAG}, s{sTAG}, 0x7F4A7C15
    v_mov_b32 v76, 0
    v_mov_b32 v77, 0
    v_mov_b32 v78, 0
    v_mov_b32 v79, s{sTAG}
    s_mov_b32 s{sT}, 0xffff0000
    ds_write_b32 v12, v79 offset:{FLAG + 16}
    s_waitcnt vmcnt({6 if OPT['cpf'] == 1 else 2})
""")
    for k in range(4):
        a(f"v_lshlrev_b32 v{68 + 2 * k}, 16, v{64 + k}")
        a(f"v_and_b32 v{69 + 2 * k}, s{sT}, v{64 + k}")
    a(f"""
    v_lshlrev_b32 v99, 1, v99
    ds_write_b128 v99, v[68:71] offset:{WRAD}
    ds_write_b128 v99, v[72:75] offset:{WRAD + 16}
    v_lshlrev_b32 v4, 12, v{LANE}
    s_lshl_b32 s{sT}, s{sC}, 4
    s_add_u32 s{sT}, s{sT}, {TBL_OFF}
    s_cmp_ge_u32 s{sC}, {NCH}
    s_cbranch_scc1 k2_pub
k2_b2:
    s_waitcnt lgkmcnt(0)
    s_barrier
""")
    stamp('bar2p')
    H, B = SCN, SCN + 4
    a(f"""
    ds_read_b128 {v(H, 4)}, v9 offset:{PH}
    ds_read_b32 v8, v12 offset:{FLAG + 16}
    s_waitcnt lgkmcnt(1)
    v_add_u32 v{B + 1}, v{H}, v{H + 1}
    v_add_u32 v{B + 2}, v{B + 1}, v{H + 2}
    v_add_u32 v6, v{B + 2}, v{H + 3}
    v_mov_b32 v{B + 3}, v6
""")
    wave_scan(a, 6)
    a(f"""
    v_sub_u32 v{B}, v6, v{B + 3}
    v_add_u32 v{B + 3}, v{B}, v{B + 2}
    v_add_u32 v{B + 2}, v{B}, v{B + 1}
    v_add_u32 v{B + 1}, v{B}, v{H}
    ds_write_b128 v9, {v(B, 4)} offset:{BTAB}
    s_cmp_lg_u32 s{sWV}, 7
    s_cbranch_scc1 k2_n7b
""")
    a(f"""
    v_lshl_or_b32 v76, v{B + 1}, 16, v{B}
    v_lshl_or_b32 v77, v{B + 3}, 16, v{B + 2}
    v_mov_b32 v78, v6
    s_waitcnt lgkmcnt(1)
k2_pub:
    s_cmp_lg_u32 s{sFIRST}, 0
    s_cbranch_scc1 k2_hpub
    buffer_store_dwordx4 v[76:79], v4, {W}, s{sT} offen sc1
    v_mov_b32 v80, 0
    v_mov_b32 v81, 0
    v_mov_b32 v82, 0
    v_mov_b32 v83, 0
k2_w7p:
""")
    if OPT['w7d']:
        a(f"v_mov_b32 v96, v9")
        for g in range(10):
            if g == 4:
                a(f"v_mov_b32 v96, v9")
            a(f"s_mov_b32 m0, {RAWW + 4096 * g}")
            a("s_nop 0")
            for k in range(4):
                a(f"global_load_lds_dwordx4 v96, {sp(pW0 if g < 4 else pW1)}" + (f" offset:{1024 * k}" if k else ""))
            if g not in (3, 9):
                a(f"v_add_u32 v96, 4096, v96")
    a(f"""
    s_bitcmp1_b32 s2, 1
    s_cselect_b64 s[0:1], -1, 0
    s_lshl_b32 s{sT + 1}, s2, 4
    s_mov_b32 s{sT}, 0x000f000f
    v_add_u32 v7, {TENT - CB - 7 * 4096}, v18
    s_waitcnt lgkmcnt(0)
    s_barrier
""")
    for k in range(4):
        a(f"v_and_b32 v4, 2, v{80 + k}")
        a(f"v_cmp_eq_u32 {m1(k)}, 0, v4")
    if OPT['sl0']:
        a(f"s_sleep {OPT['sl0']}")
    if OPT['sl1']:
        a("s_branch k2_tp1")
    a("k2_tpoll:")
    if OPT['sl1']:
        a(f"s_sleep {OPT['sl1']}")
        a("k2_tp1:")
    for k in range(4):
        a(f"buffer_load_dwordx4 {v(64 + 4 * k, 4)}, v9, {W}, s{sK} offen offset:{1024 * k} sc1")
    for k in range(4):
        g = 64 + 4 * k
        a(f"""
    s_waitcnt vmcnt({3 - k})
    v_or3_b32 v4, v{g}, v{g + 1}, v{g + 2}
    v_xor_b32 v5, s{sTAG}, v{g + 3}
    v_and_or_b32 v4, v4, s{sT}, v5
    v_cndmask_b32 v{g}, v{g}, v{g + 1}, s[0:1]
    v_cmp_eq_u32 vcc, 0, v4
    v_cndmask_b32 v{g + 1}, v{g + 1}, v{g + 2}, s[0:1]
    s_and_b64 vcc, vcc, {m1(k)}
    v_alignbit_b32 v{g}, v{g + 1}, v{g}, s{sT + 1}
    s_andn2_b64 {m1(k)}, {m1(k)}, vcc
    v_or_b32 v{g}, 2, v{g}
    v_cndmask_b32 v{80 + k}, v{80 + k}, v{g}, vcc
""")
    a(f"""
    s_or_b64 {m2(0)}, {m1(0)}, {m1(1)}
    s_or_b64 {m2(1)}, {m1(2)}, {m1(3)}
    s_or_b64 vcc, {m2(0)}, {m2(1)}
    s_cbranch_scc0 k2_tok
    s_add_u32 s{sCNT}, s{sCNT}, 1
    s_cmp_lt_u32 s{sCNT}, {OPT['tlim']}
    s_cbranch_scc1 k2_tpoll
""")
    for k in range(4):
        a(f"""
    s_ff1_i32_b64 s{sT + 1}, {m1(k)}
    s_add_u32 s{sT + 2}, s{sT + 1}, {64 * k + 1}
    s_cmp_lt_i32 s{sT + 1}, 0
    s_cselect_b32 s{sT}, s{sT}, s{sT + 2}
""")
    a(f"""
    v_mov_b32 v4, s{sT}
    ds_write_b32 v12, v4 offset:{FLAG + 4}
k2_tok:
    ds_write2st64_b32 v7, v80, v81 offset0:0 offset1:1
    ds_write2st64_b32 v7, v82, v83 offset0:2 offset1:3
""")
    if OPT['pf'] == 5:
        a(f"""
    s_mov_b32 exec_hi, 0x3ffff
    s_mul_i32 s{sT + 2}, s{sC}, 25600
    v_lshlrev_b32 v4, 3, v9
""")
        for k in range(4):
            a(f"buffer_load_dword v{RANK + k}, v4, {X}, s{sT + 2} offen")
            if k < 3:
                a(f"s_add_u32 s{sT + 2}, s{sT + 2}, 6400")
        a("s_mov_b64 exec, -1")
    a(f"""
    s_branch k2_b3b
k2_n7b:
    s_mov_b64 exec, {sp(sAM)}
""")
    stamp('n7b')
    for i in range(8):
        a(f"ds_read_b32 v{BOFF + i}, v{BOFF + i} offset:{BTAB}")
    a(f"s_mov_b32 s{sT}, 0xffff0000")
    a(f"s_mov_b32 s{sT + 1}, 5497558")
    a(f"s_waitcnt lgkmcnt(9)")
    a(f"v_readfirstlane_b32 s{sTAG}, v8")
    for i in range(8):
        a(f"v_mov_b32 v{PG + 4 * i + 3}, v8")

    def unpack(dst, reg, hi):
        if hi:
            a(f"v_and_b32 v{dst}, s{sT}, v{reg}")
        else:
            a(f"v_lshlrev_b32 v{dst}, 16, v{reg}")
    for i in range(8):
        if i == 0:
            a(f"s_waitcnt vmcnt(4)")
            stamp('g0')
        if i == 4:
            a(f"s_waitcnt vmcnt(0)")
            stamp('rest')
        unpack(UP, EA + i // 2, i & 1)
        for j in range(3):
            hw = 3 * i + j
            unpack(UP + 1 + j, RH + hw // 2, hw & 1)
        for j in range(3):
            a(f"v_mul_f32 v{UP + 1 + j}, v{UP}, v{UP + 1 + j}")
        a(f"v_cvt_pk_bf16_f32 v{PG + 4 * i}, v{UP}, v{UP + 1}")
        a(f"v_cvt_pk_bf16_f32 v{PG + 4 * i + 1}, v{UP + 2}, v{UP + 3}")
        a(f"v_mul_hi_u32_u24 v6, s{sT + 1}, v{SRC + i}")
        a(f"v_lshl_or_b32 v6, v6, 6, v{DST + i}")
        a(f"v_lshl_or_b32 v{PG + 4 * i + 2}, v{SRC + i}, 16, v6")
        if i == 0:
            a("s_waitcnt lgkmcnt(0)")
        a(f"v_add_u32 v{BOFF + i}, v{BOFF + i}, v{RNK + i}")
        a(f"ds_write_b128 v{BOFF + i}, {v(PG + 4 * i, 4)} offset:{STG}")
        stamp(f'e{i}')
    def wbuild():
        T, U = ACC, ACC + 80
        a(f"s_mov_b32 s{sT}, 0xffff0000")

        def rd(f):
            a(f"ds_read_b64_tr_b16 {v(WF + 4 * f, 2)}, v11 offset:{RAWW + f * 4096}")
            a(f"ds_read_b64_tr_b16 {v(WF + 4 * f + 2, 2)}, v11 offset:{RAWW + f * 4096 + 512}")
            a(f"ds_read_b128 {v(T + 8 * f, 4)}, v13 offset:{WRAD + f * 128}")
            a(f"ds_read_b128 {v(T + 8 * f + 4, 4)}, v13 offset:{WRAD + f * 128 + 16}")
        for f in range(3):
            rd(f)
        for f in range(10):
            a(f"s_waitcnt lgkmcnt({4 * min(2, 9 - f)})")
            if f + 3 < 10:
                rd(f + 3)
            if f == 5:
                pad('w1')
            for k in range(4):
                a(f"v_lshlrev_b32 v{U + 2 * k}, 16, v{WF + 4 * f + k}")
                a(f"v_and_b32 v{U + 2 * k + 1}, s{sT}, v{WF + 4 * f + k}")
            for k in range(4):
                a(f"v_pk_mul_f32 {v(U + 2 * k, 2)}, {v(U + 2 * k, 2)}, {v(T + 8 * f + 2 * k, 2)}")
            for k in range(4):
                a(f"v_cvt_pk_bf16_f32 v{WF + 4 * f + k}, v{U + 2 * k}, v{U + 2 * k + 1}")
    def xpf(d):
        a(f"""
    s_mov_b64 exec, 0x1ffffff
    s_lshl_b32 s{sT + 3}, s{sC}, 3
    s_add_u32 s{sT + 3}, s{sT + 3}, s{sWV}
    s_mul_i32 s{sT + 3}, s{sT + 3}, 3200
    v_lshlrev_b32 v{d}, 3, v9
    buffer_load_dword v{d}, v{d}, {X}, s{sT + 3} offen
    s_mov_b64 exec, -1
""")
    GSC = {0: "", 1: " sc1", 2: " sc0 sc1", 3: " nt"}[OPT['gsc']]
    a(f"""
k2_b3:
    {f"s_sub_u32 s{sT}, 6, s{sWV}" if OPT['rs'] else ""}
    s_mul_i32 s{sT}, s{sT if OPT['rs'] else sWV}, 7168
    s_mov_b64 exec, -1
    v_add_u32 v8, s{sT}, v9
    s_mul_i32 s{sT}, s{sC}, {CH * 16}
    s_add_u32 s{sT}, s{sT}, {GR_OFF}
    s_add_u32 s{sT}, s{sT}, s{sMORE}
    s_add_u32 s{sT + 1}, s{sT}, 4096
    s_cmp_ge_u32 s{sC}, {NCH}
    s_waitcnt lgkmcnt(0)
    s_barrier
""")
    stamp('bar3')
    a("s_cbranch_scc1 k2_np")
    for j in range(8):
        a(f"ds_read_b128 {v(PG + 4 * j, 4)}, v8 offset:{STG + 1024 * j}")
    a(f"s_cmp_lg_u32 s{sRST}, 0")
    a(f"s_cbranch_scc1 k2_hst")
    a(f"s_cmp_lg_u32 s{sWV}, {0 if OPT['rs'] else 6}")
    for j in range(8):
        if j == 7:
            a("s_cbranch_scc1 k2_hop")
        a(f"s_waitcnt lgkmcnt({7 - j})")
        a(f"buffer_store_dwordx4 {v(PG + 4 * j, 4)}, v8, {W}, s{sT + j // 4} offen offset:{1024 * (j % 4)}{GSC}")
    a("k2_hop:")
    if OPT['hop']:
        a("s_mov_b64 exec, 0")
        for i, c in enumerate(CHAINS):
            a(f"s_cmp_eq_u32 s{sWV}, {i}")
            a(f"s_cbranch_scc1 k2_pad_{c[0]}")
    a("k2_b3b:")
    stamp('stored')
    if OPT['pf'] == 3:
        xpf(RANK)
    a(f"""
    s_waitcnt lgkmcnt(0)
    s_barrier
    s_mov_b64 exec, {sp(sTM)}
    ds_read_b32 v20, v10
    s_mov_b64 exec, -1
    ds_read_b32 v21, v12 offset:{FLAG + 4}
""")
    stamp('tbl')
    if OPT['pf'] == 2:
        xpf(RANK)
    if not OPT['w7d']:
        wdma()
    if OPT['wb'] == 2:
        a(f"""
    s_cmp_lg_u32 s{sRND}, 0
    s_cbranch_scc1 k2_now
""")
        wbuild()
        a("k2_now:")
        pad('now')
    Q = G
    a(f"""
    s_waitcnt lgkmcnt(0)
    v_cmp_ne_u32 vcc, 0, v21
    v_and_b32 v4, 1, v20
    v_and_b32 v20, -4, v20
    s_cbranch_vccnz k2_p1h
    v_lshl_add_u32 v16, v4, 24, v16
    v_sub_u32_sdwa v4, v20, v20 {SDWA} src0_sel:WORD_1 src1_sel:WORD_0
    v_mov_b32 v5, v4
    v_add_u32_sdwa v6, v16, v20 {SDWA} src0_sel:DWORD src1_sel:WORD_0
    s_movk_i32 s{sT + 1}, 8192
""")
    for m in ("row_shr:1", "row_shr:2", "row_shr:4", "row_shr:8"):
        a(f"v_add_u32_dpp v5, v5, v5 {m} row_mask:0xf bank_mask:0xf")
    a(f"""
    v_add_u32_dpp v5, v5, v5 row_bcast:15 row_mask:0xa bank_mask:0xf
    s_lshl_b32 s{sT}, s{sWV}, 12
    s_add_u32 s{sT}, s{sT}, {CB}
    v_sub_u32 v4, v5, v4
    v_readlane_b32 s{sTOT}, v5, 31
    v_sub_u32 v6, v6, v4
    v_subrev_u32 v4, s{sRND}, v4
    v_subrev_u32 v5, s{sRND}, v5
    v_med3_i32 v4, v4, 0, s{sT + 1}
    v_med3_i32 v5, v5, 0, s{sT + 1}
    v_lshrrev_b32 v4, 2, v4
    v_lshrrev_b32 v5, 2, v5
    v_add_u32 v4, s{sT}, v4
    v_add_u32 v5, s{sT}, v5
    s_mov_b64 exec, {sp(sTM)}
    ds_add_u32 v4, v6
    ds_sub_u32 v5, v6
    s_mov_b64 exec, -1
    ds_read_b128 {v(Q, 4)}, v17
    ds_read_b128 {v(Q + 4, 4)}, v17 offset:16
    s_sub_u32 s{sTOT}, s{sTOT}, s{sRND}
    s_cmp_le_i32 s{sTOT}, 8192
    s_cbranch_scc1 k2_nomore
    ds_write_b32 v12, v14 offset:{FLAG}
k2_nomore:
""")
    for i in range(8):
        a(f"v_cmp_gt_i32 {m1(i)}, s{sTOT}, v9")
        if i < 7:
            a(f"s_sub_u32 s{sTOT}, s{sTOT}, 1024")
    a("s_waitcnt lgkmcnt(0)")
    for j in range(1, 8):
        a(f"v_add_u32 v{Q + j}, v{Q + j}, v{Q + j - 1}")
    a(f"v_mov_b32 v4, v{Q + 7}")
    wave_scan(a, Q + 7)
    a(f"v_sub_u32 v4, v{Q + 7}, v4")
    for j in range(7):
        a(f"v_add_u32 v{Q + j}, v{Q + j}, v4")
    a(f"""
    ds_write_b128 v17, {v(Q, 4)}
    ds_write_b128 v17, {v(Q + 4, 4)} offset:16
""")
    for j in range(4):
        a(f"ds_read2st64_b32 {v(ADDR + 2 * j, 2)}, v18 offset0:{2 * j} offset1:{2 * j + 1}")
    for i in range(8):
        a(f"s_mov_b64 {m2(i)}, {m1(i)}")
    a(f"""
    s_movk_i32 s{sK}, {GR_OFF - 16}
    s_mov_b32 s{sT + 3}, 0xc000003f
    s_mov_b32 s{sCNT}, 0
""")
    if OPT['pf'] == 9:
        a(f"""
    s_mov_b64 s[0:1], 0x1ffffff
    s_lshl_b32 s{sT + 2}, s{sC}, 3
    s_add_u32 s{sT + 2}, s{sT + 2}, s{sWV}
    s_mul_i32 s{sT + 2}, s{sT + 2}, 3200
    v_lshlrev_b32 v23, 3, v9
""")

    def dload(i, first=False):
        a(f"s_mov_b64 exec, {m2(i)}")
        sc = {0: "", 1: " sc1", 2: " sc0", 3: " nt", 4: " sc1 nt"}[OPT['dsc']] if first else " sc1"
        a(f"buffer_load_dwordx4 {v(G + 4 * i, 4)}, v{ADDR + i}, {W}, s{sK} offen{sc}")
    stamp('expd')
    if OPT['dr'] or (OPT['wb'] == 0 and not OPT['w7d']):
        a("s_waitcnt vmcnt(0)")
    if (OPT['wb'] == 0 and not OPT['w7d']) or OPT['dr'] == 2:
        a("s_barrier")
    if OPT['dsl']:
        a(f"s_sleep {OPT['dsl']}")
    stamp('drained')
    for i in range(8):
        if i % 2 == 0:
            a(f"s_waitcnt lgkmcnt({3 - i // 2})")
        dload(i, True)
    stamp('dissued')

    if OPT['wb'] == 0:
        a(f"""
    s_cmp_lg_u32 s{sRND}, 0
    s_cbranch_scc1 k2_dchk
    s_mov_b64 exec, -1
""")
        wbuild()
    stamp('wdone')
    a("s_branch k2_dchk")
    pad('dp', True)
    a("k2_dpoll:")
    if OPT['psl']:
        a(f"s_sleep {OPT['psl']}")
    for i in range(8):
        dload(i)
    a("k2_dchk:")
    PFX = 0
    if OPT['pf'] == 9:
        PFX = 1
        a(f"""
    s_mov_b64 exec, s[0:1]
    buffer_load_dword v22, v23, {X}, s{sT + 2} offen
    s_mov_b64 s[0:1], 0
""")
    for i in range(8):
        g = G + 4 * i
        a(f"""
    s_mov_b64 exec, {m2(i)}
    s_waitcnt vmcnt({7 - i + PFX})
    v_xor_b32 v4, s{sTAG}, v{g + 3}
    v_and_or_b32 v4, v{g + 2}, s{sT + 3}, v4
    v_cmpx_eq_u32 vcc, 0, v4
    v_bfe_u32 v{BIN + i}, v{g + 2}, 4, 10
    s_andn2_b64 {m2(i)}, {m2(i)}, vcc
    ds_add_rtn_u32 v{RANK + i}, v{BIN + i}, v14 offset:{HIST}
    v_and_or_b32 v{META + i}, v{g + 2}, s{sMSK}, v{META + i}
    ds_write_b64 v19, {v(g, 2)} offset:{512 * i}
""")
        if i == 1:
            a(f"s_or_b64 {sp(sAM)}, {m2(0)}, {m2(1)}")
        if i > 1:
            a(f"s_or_b64 {sp(sAM)}, {sp(sAM)}, {m2(i)}")
    a(f"""
    s_cbranch_scc0 k2_p1e
    s_add_u32 s{sCNT}, s{sCNT}, 1
    s_cmp_lt_u32 s{sCNT}, 0x20000
    s_cbranch_scc1 k2_dpoll
k2_p1e:
""")
    stamp('lastmeta')
    if OPT['pf'] == 1:
        xpf(ADDR)
    a(f"""
    s_mov_b64 exec, -1
    s_lshl_b32 s{sT}, s{sWV}, 3
    s_add_u32 s{sT + 1}, s{sT}, 4
    s_add_u32 s{sT + 2}, s{sT}, 7
    {f"s_add_u32 s{sT + 3}, s{sT}, 3" if OPT['sk'] else ""}
    s_waitcnt lgkmcnt(0)
    s_barrier
""")
    stamp('bar2')
    pad('b2')
    a(f"""
    ds_read_b128 v[4:7], v9 offset:{HIST}
    ds_read_b32 v20, v12 offset:{FLAG}
""")
    if OPT['pf'] == 6:
        xpf(ADDR)
    a(f"""
    s_waitcnt lgkmcnt(1)
    v_add_u32 v5, v4, v5
    v_add_u32 v6, v5, v6
    v_add_u32 v7, v6, v7
    v_add_u32_dpp v10, v7, v7 quad_perm:[1,0,3,2] row_mask:0xf bank_mask:0xf
    v_add_u32_dpp v10, v10, v10 quad_perm:[2,3,0,1] row_mask:0xf bank_mask:0xf
    {"v_add_u32_dpp v10, v10, v10 row_half_mirror row_mask:0x3 bank_mask:0xf" if OPT['se'] else ""}
    v_sub_u32 v10, 0, v10
    v_and_b32 v22, v15, v10
    v_add_u32 v7, v7, v22
    {"v_add_u32 v10, 1, v15" if OPT['xpad'] else ""}
    {"v_and_b32 v10, 0x80, v10" if OPT['xpad'] else ""}
    {"v_add_u32 v7, v7, v10" if OPT['xpad'] else ""}
    v_mov_b32 v10, v7
""")
    wave_scan(a, 10)
    a(f"""
    v_readlane_b32 s{sTOT}, v10, 63
    {"v_sub_u32 v22, v10, v22" if OPT['sk'] else f"v_readlane_b32 s{sE1}, v10, s{sT + 2}"}
    v_sub_u32 v10, v10, v7
    s_sub_u32 s{sTOT}, {CB}, s{sTOT}
    v_add_u32 v10, s{sTOT}, v10
    v_add_u32 v7, v10, v6
    v_add_u32 v6, v10, v5
    v_add_u32 v5, v10, v4
    v_mov_b32 v4, v10
""")
    RV = OPT['rv'] and OPT['se']
    if RV:
        RD = "quad_perm:[0,1,2,3] row_mask:0x3 bank_mask:0x5"
        a(f"""
    v_add_u32 v22, s{sTOT}, v22
    v_mov_b32_dpp v23, v10 quad_perm:[0,0,0,0] row_mask:0xf bank_mask:0xf
    v_add_u32_dpp v23, v22, v23 quad_perm:[3,3,3,3] row_mask:0xf bank_mask:0xf
    v_subrev_u32_dpp v4, v5, v23 {RD}
    v_subrev_u32_dpp v5, v6, v23 {RD}
    v_subrev_u32_dpp v6, v7, v23 {RD}
    v_subrev_u32_dpp v7, v22, v23 {RD}
""")
    a(f"""
    ds_write_b128 v9, v[4:7] offset:{BTAB}
    {"" if RV else f"v_add_u32 v22, s{sTOT}, v22" if OPT['sk'] else f"s_add_u32 s{sE1}, s{sE1}, s{sTOT}"}
    v_readlane_b32 s{sP0}, v10, s{sT}
    v_readlane_b32 s{sP1}, v10, s{sT + 1}
    {f"v_readlane_b32 s{sE0}, v22, s{sT + 3}" if OPT['sk'] else ""}
    {f"v_readlane_b32 s{sE1}, v22, s{sT + 2}" if OPT['sk'] else ""}
    s_waitcnt lgkmcnt(1)
    v_readfirstlane_b32 s{sMORE}, v20
""")
    stamp('scan')
    for i in range(8):
        a(f"ds_read_b32 v{BIN + i}, v{BIN + i} offset:{BTAB}")
    if not OPT['sk']:
        a(f"s_mov_b32 s{sE0}, s{sP1}")
    for i in range(8):
        a(f"s_mov_b64 exec, {m1(i)}")
        a(f"s_waitcnt lgkmcnt(7)")
        a(f"v_add_u32 v{BIN + i}, v{BIN + i}, v{RANK + i}")
        a(f"ds_write_b32 v{BIN + i}, v{META + i}")
    stamp('p2')
    if OPT['pf'] == 8:
        xpf(ADDR)
    a("s_mov_b64 exec, -1")
    if OPT['se']:
        a(f"""
    s_cmp_ge_u32 s{sWV}, 4
    s_cbranch_scc1 k2_hsel
    s_sub_u32 s{sT}, s{sE0}, s{sP0}
    s_mov_b32 s43, s{sE0}
    s_max_u32 s{sT}, s{sT}, 4
    s_sub_u32 s{sT}, s{sT}, 4
    s_andn2_b32 s{sT}, s{sT}, 127
    s_add_u32 s{sE0}, s{sP0}, s{sT}
    s_mov_b32 s{sNX}, s{sE0}
    s_add_u32 s{sP1}, s{sE0}, 128
    {f"s_sub_u32 s45, s{sE0}, 128" if RV else ""}
    {f"s_movk_i32 s46, -128" if RV else ""}
    s_branch k2_sel
k2_hsel:
""")
    a(f"""
    s_cmp_lt_u32 s{sP0}, s{sE0}
    s_cselect_b32 s{sNT}, 0, 1
    s_cselect_b32 s{sNX}, s{sP0}, s{sP1}
    s_cselect_b32 s{sT}, 128, 0
    s_add_u32 s{sP0}, s{sP0}, s{sT}
    s_sub_u32 s{sT}, 128, s{sT}
    s_add_u32 s{sP1}, s{sP1}, s{sT}
    {f"s_mov_b32 s45, s{sP0}" if RV else ""}
    {f"s_movk_i32 s46, 128" if RV else ""}
k2_sel:
    s_mov_b32 s40, s{sMORE}
    s_waitcnt {"vmcnt(0) " if OPT['pf'] == 9 else ""}lgkmcnt(0)
    s_barrier
""")
    stamp('sorted')
    if OPT['stamps'] in (11, 12):
        a("s_mov_b32 s42, 0")
    ZE = 0

    def zero(lo, hi):
        for i in range(lo, hi):
            a(f"v_mov_b64 {v(ACC + 2 * i, 2)}, 0")

    sR, sRT, sD0, sTH = 38, 39, 40, 41

    def meta_reads():
        a(f"v_add_u32_sdwa v{TM}, s{sNX}, v{vP2} {SDWA} src0_sel:DWORD src1_sel:WORD_0")
        if OPT['sk']:
            a(f"v_and_or_b32 v{BT}, v{vP2}, 12, s{sNX}")
            for j in range(4):
                a(f"ds_read2_b32 {v(M + 2 * j, 2)}, v{BT} offset0:{8 * j} offset1:{8 * j + 4}")
            a(f"ds_read2_b32 {v(TM, 2)}, v{TM} offset0:0 offset1:4")
            return
        a(f"v_and_b32 v{BT}, -32, v{TM}")
        a(f"ds_read_b128 {v(M, 4)}, v{BT}")
        a(f"ds_read_b128 {v(M + 4, 4)}, v{BT} offset:16")
        a(f"ds_read_b64 {v(TM, 2)}, v{TM}")

    def loads(h, mask=False):
        D = DA if h == 0 else DB
        if mask and OPT['mx']:
            if h == 0:
                for e in range(8):
                    a(f"v_mad_u32_u16 v{M + e}, v{M + e}, s{s512}, v{vL16} op_sel:[1,0,0,0]")
            for e in range(8):
                a(f"v_cmpx_gt_u32 vcc, s{sX + 2}, v{M + e}")
                a(f"buffer_load_dwordx4 {v(D + 4 * e, 4)}, v{M + e}, {X}, 0 offen" + (" offset:256" if h else ""))
            a("s_mov_b64 exec, -1")
            return
        for e in range(8):
            if h == 0:
                a(f"v_mad_u32_u16 v{M + e}, v{M + e}, s{s512}, v{vL16} op_sel:[1,0,0,0]")
            a(f"buffer_load_dwordx4 {v(D + 4 * e, 4)}, v{M + e}, {X}, 0 offen" + (" offset:256" if h else ""))

    def tr_addr():
        for i in range(2):
            a(f"v_xor_b32_sdwa v{TM + i}, v{TM + i}, v{vP2} {SDWA} src0_sel:WORD_0 src1_sel:WORD_1")
        for i in range(2):
            a(f"v_min_u32 v{TM + i}, s{sZI}, v{TM + i}")
        for i in range(2):
            a(f"v_lshl_add_u32 v{TM + i}, v{TM + i}, 3, s{sCB}")

    def tr_reads():
        a(f"ds_read_b64_tr_b16 {v(A, 2)}, v{TM}")
        a(f"ds_read_b64_tr_b16 {v(A + 2, 2)}, v{TM + 1}")

    A1 = WF

    def mf(t, h, j, ar=A):
        if t == 2:
            mf(0, h, j)
            mf(1, h, j, A1)
            return
        c = v(ACC + 64 * t + (8 * h + j) * 4, 4)
        a(f"v_mfma_f32_16x16x32_bf16 {c}, {v(ar, 4)}, {v(BT + 4 * (j & 1), 4)}, {c}")

    def half(t, h, lg, stop=8):
        D = DA if h == 0 else DB
        pairs = [(0, 2), (4, 6), (1, 3), (5, 7)]

        def perms(j):
            r, p = j >> 1, j & 1
            for k, (e0, e1) in enumerate(pairs):
                a(f"v_perm_b32 v{BT + 4 * (j & 1) + k}, v{D + 4 * e1 + r}, v{D + 4 * e0 + r}, s{sHI if p else sLO}")
        perms(0)
        for j in range(8):
            if j + 1 < 8:
                perms(j + 1)
            if j == 0 and lg is not None:
                a(f"s_waitcnt lgkmcnt({lg})")
            if j < stop:
                mf(t, h, j)

    if OPT['prio'] >= 1:
        a(f"""
    s_cmp_lt_u32 s{sWV}, 4
    s_cselect_b64 vcc, -1, 0
    {f"s_cselect_b32 s41, -1, {OPT['th'] * 128}" if OPT['prio'] == 5 else ""}
    s_cbranch_scc1 k2_lop
    s_setprio {0 if OPT['prio'] >= 5 else 1}
k2_lop:
""")
    pad('lop')
    pcnt = [0]

    def tprio(p):
        pcnt[0] += 1
        a(f"""
    s_cbranch_vccz k2_pr{pcnt[0]}
    s_setprio {p}
k2_pr{pcnt[0]}:
""")

    def hprio():
        pcnt[0] += 1
        a(f"""
    s_cbranch_vccnz k2_pr{pcnt[0]}
    s_setprio 1
k2_pr{pcnt[0]}:
""")

    a(f"""
    s_cmp_ge_u32 s{sNX}, s{sE1}
    s_cbranch_scc1 k2_wz
""")
    meta_reads()
    a("s_waitcnt lgkmcnt(1)")
    loads(0)
    loads(1)
    a("s_waitcnt lgkmcnt(0)")
    tr_addr()
    if OPT['se']:
        a(f"""
    s_cmp_ge_u32 s{sWV}, 4
    s_cbranch_scc1 k2_nse
    v_add_u32_sdwa v{BT}, s{sNX}, v{vP2} {SDWA} src0_sel:DWORD src1_sel:WORD_0
    v_mov_b32 v{BT + 1}, {CB + ZI * 8}
    v_cmp_{"gt" if OPT['se'] == 1 else "le"}_u32 vcc, s43, v{BT}
    v_add_u32 v{BT}, 16, v{BT}
    v_cndmask_b32 v{BT + 2}, v{TM}, v{BT + 1}, vcc
    v_cndmask_b32 v{TM}, v{BT + 1}, v{TM}, vcc
    v_cmp_{"gt" if OPT['se'] == 1 else "le"}_u32 vcc, s43, v{BT}
    ds_read_b64_tr_b16 {v(A1, 2)}, v{BT + 2}
    v_cndmask_b32 v{BT + 3}, v{TM + 1}, v{BT + 1}, vcc
    v_cndmask_b32 v{TM + 1}, v{BT + 1}, v{TM + 1}, vcc
    ds_read_b64_tr_b16 {v(A1 + 2, 2)}, v{BT + 3}
k2_nse:
""")
    tr_reads()
    stamp('first')
    a(f"""
k2_wz:
    s_cmp_lg_u32 s{sRND}, 0
    s_cbranch_scc1 k2_noz
""")
    if OPT['wb'] == 1:
        wbuild()
    zero(ZE, 64)
    a(f"""
    s_xor_b32 s{sT}, s{sWV}, 7
    s_or_b32 s{sT}, s{sT}, s2
    s_or_b32 s{sT}, s{sT}, s{sRST}
    s_cbranch_scc1 k2_noz
    s_mov_b64 exec, 1
    v_mov_b32 v{BT}, s{sTAG}
    buffer_store_dword v{BT}, off, {W}, 0 sc1
    s_mov_b64 exec, -1
""")
    a(f"""
k2_noz:
    s_cmp_ge_u32 s{sNX}, s{sE1}
    s_cbranch_scc1 k2_done
""")
    if 'it1' in SMAP:
        a("s_waitcnt vmcnt(8)")
        stamp('it1')
    if OPT['se'] == 2:
        a(f"""
    s_cmp_lt_u32 s{sWV}, 4
    s_cselect_b32 s44, 1, 0
    s_cbranch_scc1 k2_tail1
""")
    if OPT['se'] == 1:
        assert OPT['prio'] == 1 and OPT['sk'] == 1
        a(f"""
    s_cmp_ge_u32 s{sWV}, 4
    s_cbranch_scc1 k2_hdis
    s_mov_b32 s{sNT}, 0
    s_cmp_lt_u32 s{sP0}, s{sE0}
    s_cbranch_scc1 k2_m0
    s_mov_b32 s{sNX}, {CB - 24576 + 128}
    s_cmp_lt_u32 s{sP1}, s{sE1}
    s_cbranch_scc0 k2_mb
    s_mov_b32 s{sNX}, s{sP1}
    s_add_u32 s{sP1}, s{sP1}, 128
    s_mov_b32 s{sNT}, 1
    s_branch k2_mb
k2_m0:
    s_mov_b32 s{sNX}, s{45 if RV else sP0}
    {"s_add_u32 s45, s45, s46" if RV else ""}
    s_add_u32 s{sP0}, s{sP0}, 128
k2_mb:
""")
        meta_reads()
        a("s_waitcnt vmcnt(8)")
        half(2, 0, 5)
        a("s_waitcnt lgkmcnt(0)")
        loads(0)
        tr_addr()
        a("s_waitcnt vmcnt(8)")
        half(2, 1, None)
        loads(1)
        tr_reads()
        a("k2_hdis:")
    a(f"""
    s_cmp_eq_u32 s{sNT}, 0
    s_cbranch_scc0 k2_stub1
""")
    for t in range(2):
        po, eo, ps, es = (sP1, sE1, sP0, sE0) if t == 0 else (sP0, sE0, sP1, sE1)
        a(f"""
k2_stub{t}:
""")
        if t == 0:
            a(f"""
    s_add_u32 s{sT}, s{po}, {128 * OPT['tb']}
    s_cmp_lt_u32 s{sT}, s{eo}
    s_cbranch_scc1 k2_oth0
    s_cmp_lt_u32 s{ps}, s{es}
    s_cbranch_scc1 k2_same0
    s_cmp_lt_u32 s{po}, s{eo}
    s_cbranch_scc1 k2_oth0
    s_branch k2_tail0
k2_same0:
""")
        else:
            a(f"""
    s_cmp_lt_u32 s{po}, s{eo}
    s_cbranch_scc1 k2_oth1
    s_cmp_eq_u32 s{sD0}, 0
    s_cbranch_scc1 k2_sw0
k2_st1b:
    s_cmp_lt_u32 s{ps}, s{es}
    s_cbranch_scc0 k2_tail1
""")
        a(f"""
    s_mov_b32 s{sNX}, s{45 if RV and t == 0 else ps}
    {"s_add_u32 s45, s45, s46" if RV and t == 0 else ""}
    {f"s_sub_u32 s{sR}, s{es}, s{ps}" if OPT['sk'] else ""}
    s_add_u32 s{ps}, s{ps}, 128
    s_mov_b32 s{sNT}, {t}
    s_branch k2_body{t}
""")
        pad(f'o{t}', True)
        a(f"""
k2_oth{t}:
    s_mov_b32 s{sNX}, s{45 if RV and t == 1 else po}
    {"s_add_u32 s45, s45, s46" if RV and t == 1 else ""}
    {f"s_sub_u32 s{sR}, s{eo}, s{po}" if OPT['sk'] else ""}
    s_add_u32 s{po}, s{po}, 128
    s_mov_b32 s{sNT}, {1 - t}
k2_body{t}:
""")
        if OPT['stamps'] in (11, 12):
            a("s_add_u32 s42, s42, 1")
            for nm in SMAP:
                if nm[0] == 'b':
                    a(f"s_cmp_lg_u32 s42, {int(nm[1:])}")
                    a(f"s_cbranch_scc1 k2_bs{t}{nm}")
                    stamp(nm)
                    a(f"k2_bs{t}{nm}:")
        if OPT['prio'] == 5 and t == 0:
            a(f"""
    s_sub_u32 s{sT}, s{sE0}, s{sP0}
    s_cmp_gt_i32 s{sT}, s41
    s_cbranch_scc1 k2_np5
    s_setprio 1
k2_np5:
""")
        if (OPT['prio'] == 6 and t == 1) or (OPT['prio'] == 9 and t == 0):
            hprio()
        if OPT['prio'] == 2:
            tprio(2 - 2 * t)
        if OPT['prio'] == 3:
            tprio(2)
        meta_reads()
        a("s_waitcnt vmcnt(8)")
        ES = 8 - OPT['el']
        half(t, 0, 5 if OPT['sk'] else 3, ES)
        if OPT['sk'] == 1:
            a(f"s_cmp_le_u32 s{sR}, 112")
        a("s_waitcnt lgkmcnt(0)")
        if OPT['sk'] == 1:
            a(f"s_cbranch_scc1 k2_sa{t}")
        loads(0, True)
        for j in range(ES, 8):
            mf(t, 0, j)
        a(f"k2_ra{t}:")
        tr_addr()
        pad(f'm{t}')
        if (OPT['prio'] == 7 and t == 0) or (OPT['prio'] == 8 and t == 1):
            hprio()
        if OPT['prio'] == 3 or (OPT['prio'] == 4 and t == 1):
            tprio(0)
        if OPT['prio'] == 4 and t == 0:
            tprio(2)
        a("s_waitcnt vmcnt(8)")
        half(t, 1, None, ES)
        if OPT['sk'] == 1:
            a(f"s_cmp_le_u32 s{sR}, 112")
            a(f"s_cbranch_scc1 k2_sbb{t if OPT['el'] else ''}")
        loads(1, True)
        for j in range(ES, 8):
            mf(t, 1, j)
        tr_reads()
        a(f"s_cmp_eq_u32 s{sNT}, 0")
        a(f"s_cbranch_scc1 k2_stub0")
        if t == 1:
            a("s_branch k2_stub1")
    if OPT['sk'] == 1:
        for h in range(2):
            D = DA if h == 0 else DB
            if h == 0:
                a("k2_sa0:")
                for j in range(8 - OPT['el'], 8):
                    mf(0, 0, j)
                a(f"""
    s_mov_b32 s{sRT}, 0
    s_branch k2_sa
k2_sa1:
""")
                for j in range(8 - OPT['el'], 8):
                    mf(1, 0, j)
                a(f"""
    s_mov_b32 s{sRT}, 1
k2_sa:
""")
            else:
                if OPT['el']:
                    a("k2_sbb0:")
                    for j in range(8 - OPT['el'], 8):
                        mf(0, 1, j)
                    a("s_branch k2_sbb")
                    a("k2_sbb1:")
                    for j in range(8 - OPT['el'], 8):
                        mf(1, 1, j)
                a("k2_sbb:")
            for e in range(7):
                if h == 0:
                    a(f"v_mad_u32_u16 v{M + e}, v{M + e}, s{s512}, v{vL16} op_sel:[1,0,0,0]")
                if e < 6:
                    a(f"s_cmp_le_u32 s{sR}, {16 * (e + 1)}")
                a(f"buffer_load_dwordx4 {v(D + 4 * e, 4)}, v{M + e}, {X}, 0 offen" + (" offset:256" if h else ""))
                if h == 1 and e == 0:
                    tr_reads()
                a(f"{'s_cbranch_scc1' if e < 6 else 's_branch'} k2_x{h}{e + 1}")
            for e in range(1, 8):
                a(f"k2_x{h}{e}:")
                a(f"s_waitcnt vmcnt({e})")
            if h == 0:
                a(f"s_cmp_eq_u32 s{sRT}, 0")
                a(f"s_cbranch_scc1 k2_ra0")
                a(f"s_branch k2_ra1")
            else:
                a(f"s_cmp_eq_u32 s{sNT}, 0")
                a(f"s_cbranch_scc1 k2_stub0")
                a(f"s_branch k2_stub1")
    for t in range(2):
        pad(f't{t}', True)
        a(f"k2_tail{t}:")
        a("s_waitcnt vmcnt(8)")
        half(t, 0, 0)
        a("s_waitcnt vmcnt(0)")
        half(t, 1, None)
        if t == 0:
            a("s_branch k2_done")
            if OPT['se'] == 2:
                a(f"""
k2_seam2:
    s_mov_b32 s44, 0
    v_mov_b64 {v(A, 2)}, {v(A1, 2)}
    v_mov_b64 {v(A + 2, 2)}, {v(A1 + 2, 2)}
    s_branch k2_stub0
""")
    if OPT['se'] == 2:
        a(f"""
    s_cmp_lg_u32 s44, 0
    s_cbranch_scc1 k2_seam2
""")
    a(f"""
k2_done:
    {"s_setprio 0" if 2 <= OPT['prio'] <= 4 else ""}
    s_waitcnt vmcnt(0)
    s_cmp_eq_u32 s{sMORE}, 0
    s_cbranch_scc1 k2_fin
    s_add_u32 s{sRND}, s{sRND}, 8192
    s_movk_i32 s{sC}, 255
    s_barrier
    s_branch k2_round
k2_p1h:
    v_readfirstlane_b32 s{sC}, v21
    s_sub_u32 s{sC}, s{sC}, 1
    s_add_u32 s{sRST}, s{sRST}, 1
    s_cmp_gt_u32 s{sRST}, 2000
    s_cbranch_scc1 k2_end
    s_waitcnt vmcnt(0) lgkmcnt(0)
    s_barrier
    s_branch k2_round
k2_np:
    ds_read_b32 v8, v12 offset:{FLAG + 16}
    s_waitcnt lgkmcnt(0)
    v_readfirstlane_b32 s{sTAG}, v8
    s_branch k2_b3b
k2_hpub:
    s_bitcmp1_b32 s2, 1
    s_cselect_b64 vcc, -1, 0
    s_lshl_b32 s{sT + 1}, s2, 4
    s_lshr_b32 s{sT + 2}, s2, 2
    s_lshl_b32 s{sT}, s{sC}, 2
    s_add_u32 s{sT}, s{sT}, {TENT}
    v_cndmask_b32 v76, v76, v77, vcc
    v_cndmask_b32 v77, v77, v78, vcc
    v_mov_b32 v4, s{sT}
    v_alignbit_b32 v76, v77, v76, s{sT + 1}
    v_or_b32 v76, 3, v76
    s_lshl_b64 exec, 1, s{sT + 2}
    ds_write_b32 v4, v76
    s_mov_b64 exec, -1
    v_add_u32 v7, {TENT - CB - 7 * 4096}, v18
    ds_read2st64_b32 v[80:81], v7 offset0:0 offset1:1
    ds_read2st64_b32 v[82:83], v7 offset0:2 offset1:3
    s_branch k2_w7p
k2_hst:
    v_mov_b32 v5, s2
    v_lshlrev_b32 v5, 2, v5
    ds_read_b32 v4, v5 offset:{PH}
    ds_read_b32 v6, v5 offset:{BTAB}
    s_waitcnt lgkmcnt(0)
    v_sub_u32 v6, v8, v6
""")
    for j in range(8):
        a(f"""
    s_mov_b64 exec, -1
    v_cmp_lt_u32 vcc, v6, v4
    v_add_u32 v6, 1024, v6
    s_mov_b64 exec, vcc
    buffer_store_dwordx4 {v(PG + 4 * j, 4)}, v8, {W}, s{sT + j // 4} offen offset:{1024 * (j % 4)} sc1
""")
    a(f"""
    s_waitcnt vmcnt(0)
    s_branch k2_b3b
""")
    pad('fin', True)
    a("k2_fin:")
    stamp('mainend')
    OP = 528
    OUT = 56 * ROW
    vTG = 127
    vS, vRB, vOB, vL31, vHB, vCN, vFL, vFG = 144, 145, 146, 147, 148, 149, 150, 151
    a(f"""
    s_xor_b32 s{sFIRST}, s{sWV}, 7
    s_or_b32 s{sFIRST}, s{sFIRST}, s{sRST}
    s_cbranch_scc1 k2_ne
    buffer_load_dword v{vTG}, off, {W}, 0 sc1
k2_ne:
    {"s_setprio 0" if not OPT['hp'] else ""}
    s_cmp_lg_u32 s{sD0}, 0
    s_cbranch_scc1 k2_sw1
    s_mov_b32 s{sD0}, 1
k2_sw0:
    v_mbcnt_lo_u32_b32 v2, -1, 0
    v_mbcnt_hi_u32_b32 v2, -1, v2
    s_and_b32 s{sT}, s{sWV}, 3
    s_lshr_b32 s{sT + 1}, s{sWV}, 2
    s_mul_i32 s{sT + 2}, s{sT + 1}, 28
    s_add_u32 s{sT + 2}, s{sT}, s{sT + 2}
    v_lshrrev_b32 v3, 4, v2
    v_lshl_add_u32 v3, v3, 2, s{sT + 2}
    v_mul_u32_u24 v3, {ROW}, v3
    v_bfe_u32 v9, v2, 3, 1
    v_mul_u32_u24 v9, 640, v9
    v_and_b32 v10, 7, v2
    v_lshl_add_u32 v9, v10, 4, v9
    v_add_u32 v3, v3, v9
    s_cmp_lg_u32 s{sT + 1}, 0
    s_cselect_b32 s{sT + 1}, -1, 0xffff
    s_cselect_b32 s{sT + 2}, 1, 0x10000
""")

    def R(t, h, q, jj):
        return ACC + 64 * t + (8 * h + jj) * 4 + q
    DP = "row_mask:0xf bank_mask:0xc"

    def swrite(t, dst, va, hi):
        for jj in range(8):
            a(f"v_add_f32_dpp v{R(t, 0, 1, jj)}, v{R(t, 1, 3, jj)}, v{R(t, 0, 1, jj)} quad_perm:[0,1,2,3] {DP}")
            a(f"v_sub_f32_dpp v{R(t, 0, 2, jj)}, v{R(t, 1, 1, jj)}, v{R(t, 0, 2, jj)} row_shr:8 {DP}")
            a(f"v_subrev_f32_dpp v{R(t, 0, 3, jj)}, v{R(t, 1, 1, jj)}, v{R(t, 0, 3, jj)} quad_perm:[0,1,2,3] {DP}")
            a(f"v_add_f32_dpp v{R(t, 0, 1, jj)}, v{R(t, 1, 2, jj)}, v{R(t, 0, 1, jj)} row_shr:8 {DP}")
            a(f"v_subrev_f32_dpp v{R(t, 1, 2, jj)}, v{R(t, 1, 3, jj)}, v{R(t, 1, 2, jj)} row_shr:8 {DP}")
        regs = [(0, 0), (0, 1), (0, 2), (0, 3), (1, 0), (1, 2)]
        a(f"s_mov_b32 exec_hi, {hi}")
        for u, (h, q) in enumerate(regs):
            for k in range(4):
                a(f"v_cvt_pk_bf16_f32 v{dst[u] + k}, v{R(t, h, q, 2 * k)}, v{R(t, h, q, 2 * k + 1)}")
            if u == 5:
                a(f"s_mov_b32 exec_lo, 0xff00ff00")
                a(f"s_and_b32 exec_hi, exec_hi, 0xff00ff00")
            a(f"ds_write_b128 v{va}, {v(dst[u], 4)} offset:{t * 16 * ROW + u * 128}")
    swrite(0, [8, 12, 16, 20, 128, 132], 3, f"s{sT + 1}")
    a(f"""
    s_mov_b64 exec, -1
    v_mov_b32 v{vCN}, {CB + ZI * 8 + 8}
    v_mov_b32 v{vS}, s{sT + 2}
    s_mov_b64 exec, 1
    ds_add_u32 v{vCN}, v{vS}
    s_mov_b64 exec, -1
    v_mov_b32 v{vS}, v3
    v_lshrrev_b32 v3, 4, v2
    v_and_b32 v{vFL}, 15, v2
    v_mul_u32_u24 v{vRB}, {ROW}, v{vFL}
    v_lshl_add_u32 v{vRB}, v3, 4, v{vRB}
    s_lshl_b32 s{sT}, s{sT}, 5
    v_mul_u32_u24 v{vOB}, {OP}, v{vFL}
    v_lshl_add_u32 v3, v3, 3, s{sT}
    v_add_u32 v{vOB}, v{vOB}, v3
    v_lshrrev_b32 v{vHB}, 5, v2
    v_and_b32 v{vL31}, 31, v2
    v_lshlrev_b32 v{vL31}, 4, v{vL31}
""")
    if OPT['ds']:
        a(f"""
    v_and_b32 v2, 12, v{vFL}
    v_add_u32 v2, v2, v{vFL}
    v_lshl_or_b32 v2, v2, 1, 1
    v_lshl_add_u32 v{vFG}, v2, 17, v3
""")
    else:
        a(f"""
    s_lshl_b32 s{sT}, s{sWV}, 1
    v_add_u32 v2, s{sT}, v{vHB}
    v_mul_u32_u24 v{vFL}, {OP}, v2
    v_add_u32 v{vFL}, v{vFL}, v{vL31}
    v_add_u32 v{vFL}, {OUT + 37 * OP}, v{vFL}
    v_and_b32 v3, 12, v2
    v_add_u32 v2, v2, v3
    v_lshl_or_b32 v2, v2, 1, 1
    s_lshl_b32 s{sT}, s2, 9
    v_lshl_add_u32 v{vFG}, v2, 17, s{sT}
""")
    a(f"""
    s_add_u32 s{sD0}, s{sD0}, 1
    s_cmp_eq_u32 s{sD0}, 1
    s_cbranch_scc1 k2_st1b
k2_sw1:
""")
    stamp('dpp0')
    swrite(1, [DA + 4 * u for u in range(6)], vS, "0xffff")
    stamp('sw1')
    vRA, vOW = 4, 5
    sPH, sMK, sEX = sNT, sP0, sT + 1
    a(f"""
    s_cmp_lt_u32 s{sWV}, 4
    s_cbranch_scc1 k2_lsb
    s_mov_b64 exec, -1
    v_mov_b32 v13, 0x100
    s_mov_b32 s{sEX}, 0xbfb8aa3b
    s_mov_b32 s{sMK}, 0x1fff1fff
    s_mov_b32 s{sMK + 1}, 0x1fff1fff
    v_add_u32 v{vRA}, {28 * ROW}, v{vRB}
    v_add_u32 v{vOW}, {OUT + 24 * OP}, v{vOB}
    s_mov_b32 s{sPH}, 0
    s_mov_b64 exec, 1
    ds_add_u32 v{vCN}, v13
k2_hsp:
    ds_read_u8 v13, v{vCN}
    s_waitcnt lgkmcnt(0)
    v_cmp_gt_u32 vcc, 4, v13
    s_cbranch_vccz k2_hgo
    s_sleep 2
    s_branch k2_hsp
k2_lsb:
    s_mov_b64 exec, -1
    s_waitcnt lgkmcnt(0)
    s_barrier
""")
    stamp('sbar')
    a(f"""
    v_mad_u32_u24 v8, v{vHB}, 20, s{sWV}
    v_mul_u32_u24 v8, {OP}, v8
    v_add_u32 v8, v8, v{vL31}
    v_add_u32 v8, {OUT}, v8
""")
    for i in range(5):
        a(f"ds_read_b128 {v(64 + 4 * i, 4)}, v8 offset:{4 * i * OP}")
    a(f"""
    s_lshl_b32 s{sT}, s2, 9
    s_lshl_b32 s{sT + 1}, s{sWV}, 18
    s_add_u32 s{sT}, s{sT}, s{sT + 1}
    v_add_u32 v9, s{sT}, v{vL31}
""")
    for i, (c0, c1) in enumerate([(0, 41), (16, 8), (32, 24), (9, 40), (25, 48)]):
        a(f"v_mad_i32_i24 v{10 + i}, v{vHB}, {c1 - c0}, {c0}")
        a(f"v_lshl_add_u32 v{10 + i}, v{10 + i}, 17, v9")
    a(f"s_cmp_eq_u32 s{sWV}, 0")
    for i in range(5):
        if i == 4:
            a("s_cselect_b32 exec_hi, -1, 0")
        a(f"s_waitcnt lgkmcnt({4 - i})")
        a(f"buffer_store_dwordx4 {v(64 + 4 * i, 4)}, v{10 + i}, {O}, 0 offen{OSC}")
    a(f"""
    s_mov_b32 exec_hi, -1
    s_branch {"k2_out" if OPT['ds'] else "k2_fb"}
k2_ph1:
    v_add_u32 v{vRA}, {44 * ROW}, v{vRB}
    v_add_u32 v{vOW}, {OUT + 12 * OP}, v{vOB}
    s_mov_b32 s{sMK}, 0x0fff0fff
    s_mov_b32 s{sMK + 1}, 0x0fff0fff
    s_mov_b64 exec, 1
    s_branch k2_hsp
k2_ph2:
    v_mov_b32 v{vRA}, v{vRB}
    v_add_u32 v{vOW}, {OUT}, v{vOB}
    s_mov_b64 exec, 1
    s_branch k2_hsp
k2_ph3:
    s_cmp_lg_u32 s{sFIRST}, 0
    s_cbranch_scc1 k2_sb
    s_waitcnt vmcnt(0)
    v_cmp_ne_u32 vcc, s{sTAG}, v{vTG}
    s_cbranch_vccz k2_sb
    s_mov_b64 exec, 1
    v_mov_b32 v{vTG}, s{sTAG}
    buffer_store_dword v{vTG}, off, {W}, 0 sc1
    s_mov_b64 exec, -1
k2_sb:
    v_add_u32 v{vRA}, {16 * ROW}, v{vRB}
    {f"s_lshl_b32 s{sT}, s2, 9" if OPT['ds'] else ""}
    {f"v_add_u32 v{vOW}, s{sT}, v{vFG}" if OPT['ds'] else f"v_add_u32 v{vOW}, {OUT + 37 * OP}, v{vOB}"}
    s_waitcnt lgkmcnt(0)
""")
    stamp('hsb')
    a("s_barrier")
    stamp('sbar')
    a(f"""
k2_hgo:
    s_mov_b64 exec, -1
""")
    slot = dict(F0=0, F21=1, F22=2, F23=3, F32=4, F31=5, F1=6, F43=7, F42=8, F33=9, F41=10)
    terms = {0: [(0, 'F0'), (1, 'F1')]}
    for i in (1, 2, 3):
        terms[i] = [(2, f'F2{i}'), (3, f'F3{i}'), (4, f'F4{i}')]
    AH = OPT['ah']
    BB = 160
    OA = 128
    sq = []
    for ti in range(3):
        for h in range(2):
            for o in range(4):
                if ti < len(terms[o]):
                    tt, f = terms[o][ti]
                    sq.append(dict(off=slot[f] * 128 + h * 64, w=2 * tt + h, d=OA + 4 * o, first=(ti == 0 and h == 0)))
    n = len(sq)

    def rd(i):
        a(f"ds_read_b128 {v(BB + 4 * i, 4)}, v{vRA} offset:{sq[i]['off']}")

    def qsum(lo, hi, lab):
        a(f"s_cmp_lg_u32 s{sPH}, 0")
        a(f"s_cbranch_scc1 {lab}")
        for r in range(lo, hi):
            a(f"v_add_f32_dpp v{r}, v{r}, v{r} quad_perm:[1,0,3,2] row_mask:0xf bank_mask:0x8")
        for r in range(lo, hi):
            a(f"v_add_f32_dpp v{r}, v{r}, v{r} quad_perm:[2,3,0,1] row_mask:0xf bank_mask:0x8")
        a(f"{lab}:")
    for i in range(AH):
        rd(i)
    stamp('rd12')
    a(f"v_add_u32 v{vCN}, 1, v{vCN}")
    g = 16
    for i in range(n):
        e = sq[i]
        if i + AH < n:
            rd(i + AH)
        a(f"s_waitcnt lgkmcnt({min(AH, n - 1 - i)})")
        d = v(e['d'], 4)
        a(f"v_mfma_f32_16x16x32_bf16 {d}, {v(WF + 4 * e['w'], 4)}, {v(BB + 4 * i, 4)}, {'0' if e['first'] else d}")
        stamp(f'mf{i}')
        if i == 15:
            qsum(OA, OA + 4, "k2_q0")
            for k in range(4):
                a(f"v_mul_f32 v{g + k}, s{sEX}, v{OA + k}")
        if i == 16:
            for k in range(4):
                a(f"v_exp_f32 v{g + k}, v{g + k}")
        if i == 17:
            a(f"v_cvt_pk_bf16_f32 v{OA}, v{OA}, v{OA + 1}")
            a(f"v_cvt_pk_bf16_f32 v{OA + 1}, v{OA + 2}, v{OA + 3}")
            for k in range(4):
                a(f"v_add_f32 v{g + k}, 1.0, v{g + k}")
        if i == 18:
            for k in range(4):
                a(f"v_rcp_f32 v{g + k}, v{g + k}")
    qsum(OA + 4, OA + 16, "k2_q1")
    a(f"s_mov_b64 exec, {sp(sMK)}")

    def outw(direct):
        for o in range(4):
            b = OA + 4 * o
            if o:
                for k in range(2):
                    a(f"v_pk_mul_f32 {v(b + 2 * k, 2)}, {v(b + 2 * k, 2)}, {v(g + 2 * k, 2)}")
                a(f"v_cvt_pk_bf16_f32 v{b}, v{b}, v{b + 1}")
                a(f"v_cvt_pk_bf16_f32 v{b + 1}, v{b + 2}, v{b + 3}")
            if direct:
                a(f"buffer_store_dwordx2 {v(b, 2)}, v{vOW}, {O}, 0 offen offset:{128 * o}{OSC}")
            else:
                a(f"ds_write_b64 v{vOW}, {v(b, 2)} offset:{128 * o}")
    if OPT['ds']:
        a(f"s_cmp_eq_u32 s{sPH}, 3")
        a(f"s_cbranch_scc1 k2_fb")
    outw(False)
    a(f"""
    s_mov_b64 exec, -1
    {f"s_cmp_eq_u32 s{sPH}, 3" if not OPT['ds'] else ""}
    {"s_cbranch_scc1 k2_fb" if not OPT['ds'] else ""}
    s_add_u32 s{sPH}, s{sPH}, 1
    s_cmp_eq_u32 s{sPH}, 1
    s_cbranch_scc1 k2_ph1
    s_cmp_eq_u32 s{sPH}, 2
    s_cbranch_scc1 k2_ph2
    s_branch k2_ph3
k2_fb:
""")
    if OPT['ds']:
        outw(True)
        a("s_mov_b64 exec, -1")
        stamp('fin0')
    else:
        stamp('fin0')
        a(f"""
    v_add_u32 v{vFG}, v{vFG}, v{vL31}
    s_cmp_ge_u32 s{sWV}, 6
    s_waitcnt lgkmcnt(0)
    s_barrier
    s_cbranch_scc1 k2_out
    ds_read_b128 v[88:91], v{vFL}
    s_waitcnt lgkmcnt(0)
    buffer_store_dwordx4 v[88:91], v{vFG}, {O}, 0 offen{OSC}
""")
    a("k2_out:")
    if OPT['stamps']:
        stamp('gend')
        a(f"""
    s_waitcnt vmcnt(0) lgkmcnt(0)
    s_memrealtime s[20:21]
    s_lshl_b32 s{sT}, s2, 3
    s_add_u32 s{sT}, s{sT}, s{sWV}
    s_lshl_b32 s{sT}, s{sT}, 6
    s_add_u32 s{sT}, s{sT}, {ST_OFF}
    v_mov_b32 v4, s{sT}
    s_waitcnt lgkmcnt(0)
""")
        for i in range(7):
            a(f"v_mov_b32 v{8 + 2 * i}, s{88 + 2 * i}")
            a(f"v_mov_b32 v{9 + 2 * i}, s{89 + 2 * i}")
        a(f"v_mov_b32 v22, s20")
        a(f"v_mov_b32 v23, s21")
        a("s_mov_b64 exec, 1")
        for i in range(4):
            a(f"global_store_dwordx4 v4, {v(8 + 4 * i, 4)}, s[{sW}:{sW + 1}] offset:{16 * i}")
    a("""
k2_end:
    s_endpgm
""")
    return a.lines, LDS


def main():
    out = sys.argv[1] if len(sys.argv) > 1 else f"cdna_kernels/{NAME}.s"
    ref = open(f"cdna_kernels/{NAME}.s.ref").read().split('\n')
    hdr = [l for l in ref if l.startswith(';') and '@launch' not in l and 'Override' not in l and 'grid=ceil' not in l]
    k2, lds2 = gen_k2()
    k2, n2 = pad_hazards(k2, OPT.get('verbose', 0))
    kk = f"kernel={KN} " if OPT['lst'] else ""
    txt = hdr + [
        f"; @launch {kk}grid=(256,1,1) block=(512,1,1) lds={lds2}",
        '.amdgcn_target "amdgcn-amd-amdhsa--gfx950"', '.text']
    txt += [f".globl {KN}", ".p2align 8", f".type {KN},@function"] + k2
    txt += ['.section .rodata,"a"']
    txt += [".p2align 6", f".amdhsa_kernel {KN}",
            f"  .amdhsa_next_free_vgpr 256", "  .amdhsa_next_free_sgpr 102",
            f"  .amdhsa_accum_offset 256", "  .amdhsa_group_segment_fixed_size 0",
            "  .amdhsa_kernarg_size 96", "  .amdhsa_user_sgpr_count 2",
            "  .amdhsa_user_sgpr_kernarg_segment_ptr 1", "  .amdhsa_system_sgpr_workgroup_id_x 1",
            ".end_amdhsa_kernel"]
    open(out, 'w').write('\n'.join(txt) + '\n')
    print(f"wrote {out}: pads {n2}, lines {len(txt)}")


main()
```
